```python
import torch

def _softmax(x, axis=-1):
    return torch.softmax(x, dim=axis)
def _gelu(x):
    return torch.nn.functional.gelu(x, approximate="tanh")
def _silu(x):
    return torch.nn.functional.silu(x)
def _sigmoid(x):
    return torch.sigmoid(x)
def _layernorm(x, axis=-1, eps=1e-5):
    m = x.mean(dim=axis, keepdim=True)
    v = x.var(dim=axis, keepdim=True, unbiased=False)
    return (x - m) / torch.sqrt(v + eps)
def _scatter_add(tgt, idx, src, axis=0):
    return tgt.clone().index_add_(axis, idx, src)
def _segment_sum(src, seg, n):
    out = torch.zeros((n,) + src.shape[1:], dtype=src.dtype)
    return out.index_add_(0, seg, src)
def _pad(x, pw):
    flat = tuple(v for pair in reversed(pw) for v in pair)
    return torch.nn.functional.pad(x, flat)

kernel_name = 'standalone__adm_resblock__diffusion'

def setup_inputs():

    _w = (lambda a: (lambda t: t.to(torch.bfloat16) if t.is_floating_point() else t)(torch.as_tensor(a)))
    B, C, HW, E = 2, 512, 64, 768
    sc = (9.0 * C) ** -0.5
    return {
        "x": _w((lambda *s: torch.randn(*s, dtype=torch.bfloat16) * 0.05)(B, C, HW, HW)),
        "t_emb": _w((lambda *s: torch.randn(*s, dtype=torch.bfloat16) * 0.2)(B, E)),
        "g1": _w(1.0 + 0.1 * (lambda *s: torch.randn(*s, dtype=torch.bfloat16) * 0.2)(C)),
        "be1": _w(0.1 * (lambda *s: torch.randn(*s, dtype=torch.bfloat16) * 0.2)(C)),
        "w1": _w((lambda *s: torch.randn(*s, dtype=torch.bfloat16) * 0.2)(C, C, 3, 3) * sc),
        "w_emb": _w((lambda *s: torch.randn(*s, dtype=torch.bfloat16) * 0.2)(E, C) * (E ** -0.5)),
        "g2": _w(1.0 + 0.1 * (lambda *s: torch.randn(*s, dtype=torch.bfloat16) * 0.2)(C)),
        "be2": _w(0.1 * (lambda *s: torch.randn(*s, dtype=torch.bfloat16) * 0.2)(C)),
        "w2": _w((lambda *s: torch.randn(*s, dtype=torch.bfloat16) * 0.2)(C, C, 3, 3) * sc),
    }

def reference(x, t_emb, g1, be1, w1, w_emb, g2, be2, w2):
    B, C, H, W = x.shape
    G, eps = 4, 1e-5
    def gn(z, gamma, beta):
        zr = z.reshape(B, G, (C // G) * H * W)
        mu = zr.mean(-1).reshape(B, G, 1)
        var = ((zr - mu) ** 2).mean(-1).reshape(B, G, 1)
        zn = ((zr - mu) / torch.sqrt(var + eps)).reshape(B, C, H, W)
        return zn * gamma.reshape(1, C, 1, 1) + beta.reshape(1, C, 1, 1)
    def conv3(z, w):
        zp = _pad(z, ((0, 0), (0, 0), (1, 1), (1, 1)))
        taps = [torch.einsum("bchw,oc->bohw", zp[:, :, i:i+H, j:j+W], w[:, :, i, j]) for i in range(3) for j in range(3)]
        out = taps[0]
        for t in taps[1:]:
            out = out + t
        return out
    h = conv3(_silu(gn(x, g1, be1)), w1)
    emb = _silu(t_emb) @ w_emb
    h = h + emb.reshape(B, C, 1, 1)
    h = conv3(_silu(gn(h, g2, be2)), w2)
    return x + h
```

```python
import struct
import sys

WS_A1 = 0x0000000
WS_A2 = 0x0800000
WS_W1 = 0x1000000
WS_W2 = 0x1800000
WS_ST1 = 0x2000000
WS_ST2 = 0x2010000
WS_EMB = 0x2020000
IMG_BYTES = 8 << 20
WP_BYTES = 512 * 4608 * 2

K_X, K_TEMB, K_G1, K_BE1, K_W1, K_WEMB, K_G2, K_BE2, K_W2, K_OUT, K_DBG, K_WS = [8 * i for i in range(12)]

XPITCH = 4224
XBUF = 6 * XPITCH
WBUF = 36864
LDS_W = 2 * XBUF
CONV_LDS = LDS_W + 2 * WBUF
MARK = 0xFFFFFFFF


def f2u(f):
    return struct.unpack("<I", struct.pack("<f", f))[0]


def fx(f):
    return "0x%08x" % f2u(f)


LOG2E = 1.4426950408889634


class Asm:
    def __init__(self):
        self.lines = []
        self.uid = 0

    def __call__(self, s):
        for l in s.strip("\n").split("\n"):
            self.lines.append("    " + l.strip())

    def label(self, l):
        self.lines.append(l + ":")

    def raw(self, s):
        self.lines.append(s)

    def newlabel(self, base):
        self.uid += 1
        return "L_%s_%d" % (base, self.uid)

    def text(self):
        return "\n".join(self.lines) + "\n"


def vr(a, n=1):
    return "v%d" % a if n == 1 else "v[%d:%d]" % (a, a + n - 1)


def sr(a, n=1):
    return "s%d" % a if n == 1 else "s[%d:%d]" % (a, a + n - 1)


def srd(a, d, ptr, off, nbytes):
    if off:
        a("s_add_u32 s%d, s%d, 0x%x" % (d, ptr, off))
        a("s_addc_u32 s%d, s%d, 0" % (d + 1, ptr + 1))
    else:
        a("s_mov_b32 s%d, s%d" % (d, ptr))
        a("s_mov_b32 s%d, s%d" % (d + 1, ptr + 1))
    a("s_mov_b32 s%d, 0x%x" % (d + 2, nbytes))
    a("s_mov_b32 s%d, 0x20000" % (d + 3))


def wave_reduce(a, regs):
    n = len(regs)
    steps = [
        "quad_perm:[1,0,3,2] row_mask:0xf bank_mask:0xf",
        "quad_perm:[2,3,0,1] row_mask:0xf bank_mask:0xf",
        "row_half_mirror row_mask:0xf bank_mask:0xf",
        "row_mirror row_mask:0xf bank_mask:0xf",
        "row_bcast:15 row_mask:0xa bank_mask:0xf",
        "row_bcast:31 row_mask:0xc bank_mask:0xf",
    ]
    a("s_nop 1")
    for st in steps:
        for r in regs:
            a("v_add_f32_dpp v%d, v%d, v%d %s" % (r, r, r, st))
        if n == 1:
            a("s_nop 1")
        elif n == 2:
            a("s_nop 0")


def kernel_begin(a, name):
    a.raw(".globl %s" % name)
    a.raw(".p2align 8")
    a.raw(".type %s,@function" % name)
    a.label(name)


def kernel_desc(name, vgpr, sgpr=96):
    acc = (vgpr + 3) // 4 * 4
    return """.p2align 6
.amdhsa_kernel %s
  .amdhsa_next_free_vgpr %d
  .amdhsa_next_free_sgpr %d
  .amdhsa_accum_offset %d
  .amdhsa_group_segment_fixed_size 0
  .amdhsa_kernarg_size 96
  .amdhsa_user_sgpr_count 2
  .amdhsa_user_sgpr_kernarg_segment_ptr 1
  .amdhsa_system_sgpr_workgroup_id_x 1
  .amdhsa_float_denorm_mode_32 3
  .amdhsa_float_denorm_mode_16_64 3
.end_amdhsa_kernel
""" % (name, vgpr, sgpr, acc)


def partial_stats_finish(a, s1, s2, sc, n, tmp):
    wave_reduce(a, [s1, s2])
    a("s_mov_b32 exec_lo, 0")
    a("s_mov_b32 exec_hi, 0x80000000")
    a("v_mul_f32 v%d, %s, v%d" % (tmp + 2, fx(1.0 / n), s1))
    a("v_add_f32 v%d, s%d, v%d" % (tmp, sc, tmp + 2))
    a("v_fma_f32 v%d, -v%d, v%d, v%d" % (tmp + 1, s1, tmp + 2, s2))
    a("v_max_f32 v%d, 0, v%d" % (tmp + 1, tmp + 1))


def combine128(a, p, t, s_mean, s_rstd, sc, nper):
    ntot = 128 * nper
    a("v_readfirstlane_b32 s%d, v%d" % (sc, p))
    a("s_nop 1")
    a("v_subrev_f32 v%d, s%d, v%d" % (t + 3, sc, p))
    a("v_subrev_f32 v%d, s%d, v%d" % (t + 4, sc, p + 2))
    a("v_add_f32 v%d, v%d, v%d" % (t, t + 3, t + 4))
    a("v_mul_f32 v%d, v%d, v%d" % (t + 1, t + 3, t + 3))
    a("v_fmac_f32 v%d, v%d, v%d" % (t + 1, t + 4, t + 4))
    a("v_add_f32 v%d, v%d, v%d" % (t + 2, p + 1, p + 3))
    wave_reduce(a, [t, t + 1, t + 2])
    a("v_mul_f32 v%d, %s, v%d" % (t + 3, fx(1.0 / 128), t))
    a("v_fma_f32 v%d, -v%d, v%d, v%d" % (t + 4, t, t + 3, t + 1))
    a("v_max_f32 v%d, 0, v%d" % (t + 4, t + 4))
    a("v_mul_f32 v%d, %s, v%d" % (t + 4, fx(float(nper)), t + 4))
    a("v_add_f32 v%d, v%d, v%d" % (t + 4, t + 4, t + 2))
    a("v_mov_b32 v%d, %s" % (t + 5, fx(1e-5)))
    a("v_fmac_f32 v%d, %s, v%d" % (t + 5, fx(1.0 / ntot), t + 4))
    a("v_add_f32 v%d, s%d, v%d" % (t + 3, sc, t + 3))
    a("v_rsq_f32 v%d, v%d" % (t + 5, t + 5))
    a("s_nop 1")
    a("v_readlane_b32 s%d, v%d, 63" % (s_mean, t + 3))
    a("v_readlane_b32 s%d, v%d, 63" % (s_rstd, t + 5))
    a("s_nop 1")


def gamma_beta_to_scale(a, g, bt, sc_out, sh_out, s_mean, s_rstd):
    for j in range(8):
        src = g + j // 2
        if j % 2 == 0:
            a("v_lshlrev_b32 v%d, 16, v%d" % (sc_out + j, src))
        else:
            a("v_and_b32 v%d, 0xffff0000, v%d" % (sc_out + j, src))
        src = bt + j // 2
        if j % 2 == 0:
            a("v_lshlrev_b32 v%d, 16, v%d" % (sh_out + j, src))
        else:
            a("v_and_b32 v%d, 0xffff0000, v%d" % (sh_out + j, src))
    for j in range(8):
        a("v_mul_f32 v%d, s%d, v%d" % (sc_out + j, s_rstd, sc_out + j))
    for j in range(8):
        a("v_fma_f32 v%d, -v%d, s%d, v%d" % (sh_out + j, sc_out + j, s_mean, sh_out + j))


def silu_group(a, vals, tmps, s_nlog2e):
    for v, t in zip(vals, tmps):
        a("v_mul_f32 v%d, s%d, v%d" % (t, s_nlog2e, v))
    for v, t in zip(vals, tmps):
        a("v_exp_f32 v%d, v%d" % (t, t))
    if len(vals) < 2:
        a("s_nop 0")
    for v, t in zip(vals, tmps):
        a("v_add_f32 v%d, 1.0, v%d" % (t, t))
    for v, t in zip(vals, tmps):
        a("v_rcp_f32 v%d, v%d" % (t, t))
    if len(vals) < 2:
        a("s_nop 0")
    for v, t in zip(vals, tmps):
        a("v_mul_f32 v%d, v%d, v%d" % (v, v, t))


def gen_prep(a):
    name = "prep_kernel"
    kernel_begin(a, name)
    a("s_load_dwordx2 s[6:7], s[0:1], %d" % K_WS)
    a("s_cmp_lt_u32 s2, 256")
    a("s_cbranch_scc1 L_prep_stats")
    a("s_cmp_lt_u32 s2, 512")
    a("s_cbranch_scc1 L_prep_wts")
    a("s_cmp_lt_u32 s2, 544")
    a("s_cbranch_scc1 L_prep_emb")
    a("s_endpgm")

    a.label("L_prep_stats")
    a("s_load_dwordx2 s[4:5], s[0:1], %d" % K_X)
    a("v_and_b32 v1, 63, v0")
    a("v_lshrrev_b32 v2, 6, v0")
    a("v_lshlrev_b32 v1, 4, v1")
    a("v_lshl_add_u32 v1, v2, 13, v1")
    a("v_add_u32 v3, 4096, v1")
    a("s_lshl_b32 s3, s2, 15")
    a("s_waitcnt lgkmcnt(0)")
    srd(a, 8, 4, 0, IMG_BYTES)
    for k in range(8):
        a("buffer_load_dwordx4 v[%d:%d], v%d, s[8:11], s3 offen offset:%d" %
          (8 + 4 * k, 11 + 4 * k, 1 if k < 4 else 3, (k % 4) * 1024))
    srd(a, 16, 6, WS_ST1, 8192)
    srd(a, 20, 6, WS_ST2, 8192)
    a("v_mov_b32 v48, -1")
    a("v_mov_b32 v49, -1")
    a("v_mov_b32 v50, -1")
    a("v_mov_b32 v51, -1")
    a("v_lshlrev_b32 v52, 4, v0")
    a("s_lshl_b32 s24, s2, 12")
    a("buffer_store_dwordx4 v[48:51], v52, s[20:23], s24 offen")
    a("s_lshl_b32 s24, s2, 5")
    a("v_lshlrev_b32 v53, 3, v2")
    for r in range(40, 48):
        a("v_mov_b32 v%d, 0" % r)
    a("s_waitcnt vmcnt(8)")
    a("v_lshlrev_b32 v4, 16, v8")
    a("s_nop 0")
    a("v_readfirstlane_b32 s12, v4")
    a("s_mov_b32 s13, s12")
    for k in range(8):
        a("s_waitcnt vmcnt(%d)" % (8 - k))
        for d in range(4):
            src = 8 + 4 * k + d
            t = 4 if d % 2 == 0 else 6
            acc = 40 if d % 2 == 0 else 44
            a("v_lshlrev_b32 v%d, 16, v%d" % (t, src))
            a("v_and_b32 v%d, 0xffff0000, v%d" % (t + 1, src))
            a("v_pk_add_f32 v[%d:%d], v[%d:%d], s[12:13] neg_lo:[0,1] neg_hi:[0,1]" % (t, t + 1, t, t + 1))
            a("v_pk_add_f32 v[%d:%d], v[%d:%d], v[%d:%d]" % (acc, acc + 1, acc, acc + 1, t, t + 1))
            a("v_pk_fma_f32 v[%d:%d], v[%d:%d], v[%d:%d], v[%d:%d]" %
              (acc + 2, acc + 3, t, t + 1, t, t + 1, acc + 2, acc + 3))
    a("v_pk_add_f32 v[40:41], v[40:41], v[44:45]")
    a("v_pk_add_f32 v[42:43], v[42:43], v[46:47]")
    a("v_add_f32 v40, v40, v41")
    a("v_add_f32 v42, v42, v43")
    partial_stats_finish(a, 40, 42, 12, 4096, 44)
    a("buffer_store_dwordx2 v[44:45], v53, s[16:19], s24 offen")
    a("s_endpgm")

    a.label("L_prep_wts")
    a("s_load_dwordx2 s[4:5], s[0:1], %d" % K_W1)
    a("s_load_dwordx2 s[12:13], s[0:1], %d" % K_W2)
    a("s_sub_u32 s3, s2, 256")
    a("s_lshr_b32 s14, s3, 7")
    a("s_bfe_u32 s15, s3, 0x50002")
    a("s_and_b32 s16, s3, 3")
    a("v_and_b32 v1, 15, v0")
    a("v_bfe_u32 v2, v0, 4, 2")
    a("v_lshrrev_b32 v3, 6, v0")
    a("s_and_b32 s17, s15, 1")
    a("v_lshrrev_b32 v4, 2, v1")
    a("v_lshlrev_b32 v4, 3, v4")
    a("v_and_b32 v5, 3, v1")
    a("v_add_u32 v4, v4, v5")
    a("s_lshl_b32 s18, s17, 2")
    a("v_add_u32 v4, s18, v4")
    a("s_lshl_b32 s18, s17, 4")
    a("v_add_u32 v5, s18, v1")
    a("s_cmp_eq_u32 s14, 0")
    a("s_cselect_b64 vcc, -1, 0")
    a("v_cndmask_b32 v4, v5, v4, vcc")
    a("s_lshr_b32 s18, s15, 1")
    a("s_lshl_b32 s18, s18, 5")
    a("v_add_u32 v4, s18, v4")
    a("s_lshl_b32 s18, s16, 2")
    a("v_add_u32 v6, s18, v3")
    a("s_movk_i32 s19, 9216")
    a("v_mul_lo_u32 v7, v4, s19")
    a("v_mul_u32_u24 v8, 576, v6")
    a("v_add_u32 v7, v7, v8")
    a("v_mul_u32_u24 v8, 144, v2")
    a("v_add_u32 v7, v7, v8")
    a("s_waitcnt lgkmcnt(0)")
    a("s_cmp_eq_u32 s14, 0")
    a("s_cselect_b32 s8, s4, s12")
    a("s_cselect_b32 s9, s5, s13")
    a("s_mov_b32 s10, 0x%x" % WP_BYTES)
    a("s_mov_b32 s11, 0x20000")
    for i in range(9):
        a("buffer_load_dwordx4 v[%d:%d], v7, s[8:11], 0 offen offset:%d" % (12 + 4 * i, 15 + 4 * i, 16 * i))
    a("s_lshl_b32 s20, s14, 23")
    a("s_add_u32 s20, s20, 0x%x" % WS_W1)
    a("s_add_u32 s20, s6, s20")
    a("s_addc_u32 s21, s7, 0")
    a("s_mov_b32 s22, 0x%x" % WP_BYTES)
    a("s_mov_b32 s23, 0x20000")
    a("s_lshr_b32 s18, s15, 2")
    a("s_lshl_b32 s18, s18, 4")
    a("v_add_u32 v8, s18, v6")
    a("s_mov_b32 s19, 36864")
    a("v_mul_lo_u32 v8, v8, s19")
    a("s_and_b32 s18, s15, 3")
    a("s_lshl_b32 s18, s18, 10")
    a("v_add_u32 v8, s18, v8")
    a("v_and_b32 v9, 63, v0")
    a("v_lshl_add_u32 v8, v9, 4, v8")
    a("s_mov_b32 s24, 0x07060100")
    a("s_mov_b32 s25, 0x05040302")
    a("s_waitcnt vmcnt(0)")
    for t in range(9):
        dy, dx = t // 3, t % 3
        o = 48 + 4 * (t % 4)
        for k in range(4):
            e0 = 2 * k * 9 + t
            e1 = e0 + 9
            sel = 24 if e0 % 2 == 0 else 25
            a("v_perm_b32 v%d, v%d, v%d, s%d" % (o + k, 12 + e1 // 2, 12 + e0 // 2, sel))
        a("s_mov_b32 s26, %d" % ((dx * 3 + dy) * 4096))
        a("buffer_store_dwordx4 v[%d:%d], v8, s[20:23], s26 offen" % (o, o + 3))
    a("s_endpgm")

    a.label("L_prep_emb")
    a("s_load_dwordx2 s[4:5], s[0:1], %d" % K_TEMB)
    a("s_load_dwordx2 s[12:13], s[0:1], %d" % K_WEMB)
    a("s_sub_u32 s3, s2, 512")
    a("s_and_b32 s14, s3, 7")
    a("s_lshr_b32 s15, s3, 3")
    a("v_and_b32 v1, 7, v0")
    a("v_lshrrev_b32 v2, 3, v0")
    a("s_mul_i32 s16, s15, 192")
    a("v_mul_u32_u24 v3, 6, v2")
    a("v_add_u32 v3, s16, v3")
    a("v_lshlrev_b32 v4, 1, v3")
    a("v_lshlrev_b32 v5, 10, v3")
    a("v_lshl_add_u32 v5, v1, 4, v5")
    a("s_lshl_b32 s17, s14, 7")
    a("v_add_u32 v5, s17, v5")
    a("v_add_u32 v6, 4096, v5")
    a("s_waitcnt lgkmcnt(0)")
    srd(a, 8, 4, 0, 2 * 768 * 2)
    srd(a, 20, 12, 0, 768 * 512 * 2)
    a("buffer_load_dwordx3 v[8:10], v4, s[8:11], 0 offen")
    a("buffer_load_dwordx3 v[12:14], v4, s[8:11], 0 offen offset:1536")
    for i in range(6):
        a("buffer_load_dwordx4 v[%d:%d], v%d, s[20:23], 0 offen offset:%d" %
          (16 + 4 * i, 19 + 4 * i, 5 if i < 4 else 6, (i % 4) * 1024))
    a("s_mov_b32 s18, %s" % fx(-LOG2E))
    a("s_waitcnt vmcnt(6)")
    for b in range(2):
        for i in range(6):
            src = (8 if b == 0 else 12) + i // 2
            d = 40 + 6 * b + i
            if i % 2 == 0:
                a("v_lshlrev_b32 v%d, 16, v%d" % (d, src))
            else:
                a("v_and_b32 v%d, 0xffff0000, v%d" % (d, src))
    silu_group(a, list(range(40, 52)), list(range(52, 64)), 18)
    for r in range(64, 80):
        a("v_mov_b32 v%d, 0" % r)
    for i in range(6):
        a("s_waitcnt vmcnt(%d)" % (5 - i))
        for j in range(8):
            src = 16 + 4 * i + j // 2
            if j % 2 == 0:
                a("v_lshlrev_b32 v52, 16, v%d" % src)
            else:
                a("v_and_b32 v52, 0xffff0000, v%d" % src)
            a("v_fmac_f32 v%d, v52, v%d" % (64 + j, 40 + i))
            a("v_fmac_f32 v%d, v52, v%d" % (72 + j, 46 + i))
    a("v_lshlrev_b32 v7, 9, v2")
    a("v_lshl_add_u32 v7, v1, 5, v7")
    a("ds_write_b128 v7, v[64:67]")
    a("ds_write_b128 v7, v[68:71] offset:16")
    a("ds_write_b128 v7, v[72:75] offset:256")
    a("ds_write_b128 v7, v[76:79] offset:272")
    a("s_waitcnt lgkmcnt(0)")
    a("s_barrier")
    a("v_cmp_gt_u32 vcc, 128, v0")
    a("s_and_saveexec_b64 s[24:25], vcc")
    a("s_cbranch_execz L_prep_emb_end")
    a("v_lshlrev_b32 v7, 2, v0")
    for g in range(2):
        for i in range(16):
            a("ds_read_b32 v%d, v7 offset:%d" % (16 + i + 16 * g, (g * 16 + i) * 512))
    a("s_waitcnt lgkmcnt(0)")
    for i in range(1, 32):
        a("v_add_f32 v16, v16, v%d" % (16 + i))
    srd(a, 8, 6, WS_EMB, 4 * 2 * 512 * 4)
    a("v_lshrrev_b32 v8, 6, v0")
    a("v_lshlrev_b32 v8, 11, v8")
    a("v_and_b32 v9, 63, v0")
    a("v_lshl_add_u32 v8, v9, 2, v8")
    a("s_lshl_b32 s16, s15, 12")
    a("s_lshl_b32 s17, s14, 8")
    a("s_add_u32 s16, s16, s17")
    a("buffer_store_dword v16, v8, s[8:11], s16 offen")
    a.label("L_prep_emb_end")
    a("s_endpgm")
    return name, 80, (544, 256, 16384)


def gen_gn1(a):
    name = "gn1_kernel"
    kernel_begin(a, name)
    a("s_cmp_ge_u32 s2, 256")
    a("s_cbranch_scc1 L_gn1_end")
    a("s_load_dwordx2 s[4:5], s[0:1], %d" % K_X)
    a("s_load_dwordx4 s[12:15], s[0:1], %d" % K_G1)
    a("s_load_dwordx2 s[6:7], s[0:1], %d" % K_WS)
    a("s_lshr_b32 s3, s2, 3")
    a("s_and_b32 s28, s2, 7")
    a("v_and_b32 v1, 3, v0")
    a("v_lshrrev_b32 v2, 2, v0")
    a("v_lshlrev_b32 v3, 16, v1")
    a("v_lshl_add_u32 v3, v2, 4, v3")
    a("s_lshl_b32 s29, s3, 18")
    a("s_lshl_b32 s30, s28, 10")
    a("s_add_u32 s29, s29, s30")
    a("v_and_b32 v4, 63, v0")
    a("v_lshlrev_b32 v4, 4, v4")
    a("s_lshr_b32 s31, s2, 5")
    a("s_lshl_b32 s31, s31, 10")
    a("s_and_b32 s32, s3, 15")
    a("s_lshl_b32 s32, s32, 6")
    a("v_lshlrev_b32 v5, 4, v1")
    a("s_waitcnt lgkmcnt(0)")
    srd(a, 16, 6, WS_ST1, 8192)
    a("buffer_load_dwordx4 v[8:11], v4, s[16:19], s31 offen")
    srd(a, 20, 12, 0, 1024)
    srd(a, 24, 14, 0, 1024)
    a("buffer_load_dwordx4 v[12:15], v5, s[20:23], s32 offen")
    a("buffer_load_dwordx4 v[16:19], v5, s[24:27], s32 offen")
    srd(a, 8, 4, 0, IMG_BYTES)
    for j in range(8):
        a("buffer_load_dwordx4 v[%d:%d], v3, s[8:11], s29 offen" % (32 + 4 * j, 35 + 4 * j))
        if j < 7:
            a("s_add_u32 s29, s29, 8192")
    srd(a, 36, 6, WS_A1, IMG_BYTES)
    a("v_lshlrev_b32 v6, 9, v2")
    a("v_add_u32 v6, v6, v5")
    a("v_xor_b32 v7, 32, v6")
    a("s_lshl_b32 s33, s3, 18")
    a("s_lshl_b32 s34, s28, 15")
    a("s_add_u32 s33, s33, s34")
    a("s_mov_b32 s35, %s" % fx(-LOG2E))
    a("s_waitcnt vmcnt(10)")
    combine128(a, 8, 20, 40, 41, 42, 4096)
    a("s_waitcnt vmcnt(8)")
    gamma_beta_to_scale(a, 12, 16, 64, 72, 40, 41)
    a("s_waitcnt vmcnt(0)")
    for d in range(4):
        for h in range(2):
            i = 2 * d + h
            base = 80 + 16 * h
            vals = list(range(base, base + 8))
            tm = list(range(base + 8, base + 16))
            for j in range(8):
                src = 32 + 4 * j + d
                if h == 0:
                    a("v_lshlrev_b32 v%d, 16, v%d" % (vals[j], src))
                else:
                    a("v_and_b32 v%d, 0xffff0000, v%d" % (vals[j], src))
            for j in range(8):
                a("v_fma_f32 v%d, v%d, v%d, v%d" % (vals[j], vals[j], 64 + j, 72 + j))
            silu_group(a, vals, tm, 35)
            o = 112 + 4 * (i % 4)
            for k in range(4):
                a("v_cvt_pk_bf16_f32 v%d, v%d, v%d" % (o + k, vals[2 * k], vals[2 * k + 1]))
            sw = ((i + 1) >> 2) & 1
            a("buffer_store_dwordx4 v[%d:%d], v%d, s[36:39], s33 offen offset:%d" %
              (o, o + 3, 7 if sw else 6, i * 64))
    a.label("L_gn1_end")
    a("s_endpgm")
    return name, 128, (256, 256, 0)


def gen_conv(a, which, cfg):
    name = "conv%d_kernel" % which
    L = "L_c%d_" % which
    kernel_begin(a, name)
    a("s_cmp_ge_u32 s2, 256")
    a("s_cbranch_scc1 %send" % L)
    a("s_load_dwordx2 s[6:7], s[0:1], %d" % K_WS)
    if which == 1:
        a("s_load_dwordx4 s[12:15], s[0:1], %d" % K_G2)
    else:
        a("s_load_dwordx2 s[12:13], s[0:1], %d" % K_X)
        a("s_load_dwordx2 s[14:15], s[0:1], %d" % K_OUT)
    S_OCT, S_B, S_RT, S_WV = 40, 41, 42, 43
    a("s_and_b32 s3, s2, 1")
    a("s_lshl_b32 s3, s3, 2")
    a("s_bfe_u32 s4, s2, 0x20003")
    a("s_add_u32 s%d, s3, s4" % S_OCT)
    a("s_bfe_u32 s3, s2, 0x20001")
    a("s_lshl_b32 s3, s3, 3")
    a("s_lshr_b32 s4, s2, 5")
    a("s_add_u32 s3, s3, s4")
    a("s_lshr_b32 s%d, s3, 4" % S_B)
    a("s_and_b32 s%d, s3, 15" % S_RT)
    a("v_lshrrev_b32 v1, 6, v0")
    a("v_and_b32 v2, 63, v0")
    a("v_readfirstlane_b32 s%d, v1" % S_WV)
    a("s_nop 3")
    a("s_cmp_ge_u32 s%d, 4" % S_WV)
    a("s_cbranch_scc1 %sprod" % L)

    VX = [3, 4, 5]
    VW = [6, 7]
    SETW = [16, 88]
    SETX = [40, 112]
    ACC = 160
    EXT = 224

    def wreg(st, dy, blk):
        return SETW[st] + 4 * (dy * 2 + blk)

    def xreg(st, row, f):
        return SETX[st] + 4 * (row * 2 + f)

    def areg(blk, row, f):
        return ACC + 4 * ((blk * 4 + row) * 2 + f)

    S_OH, S_PH = 44, 45
    a("s_and_b32 s%d, s%d, 1" % (S_OH, S_WV))
    a("s_lshr_b32 s%d, s%d, 1" % (S_PH, S_WV))
    a("v_and_b32 v8, 15, v2")
    a("v_lshrrev_b32 v9, 4, v2")
    a("s_lshl_b32 s3, s%d, 5" % S_PH)
    a("v_add_u32 v10, s3, v8")
    for dx in range(3):
        a("v_add_u32 v11, %d, v10" % dx)
        a("v_bfe_u32 v12, v11, 2, 1")
        a("v_lshlrev_b32 v12, 1, v12")
        a("v_xor_b32 v12, v12, v9")
        a("v_lshlrev_b32 v12, 4, v12")
        a("v_lshl_add_u32 v%d, v11, 6, v12" % VX[dx])
    a("s_lshl_b32 s3, s%d, 11" % S_OH)
    a("s_add_u32 s3, s3, %d" % LDS_W)
    a("v_lshl_add_u32 v%d, v2, 4, s3" % VW[0])
    a("v_add_u32 v%d, %d, v%d" % (VW[1], WBUF, VW[0]))
    a("v_lshrrev_b32 v11, 3, v0")
    a("v_mul_u32_u24 v11, %d, v11" % XPITCH)
    a("v_bfe_u32 v12, v0, 2, 1")
    a("v_mul_u32_u24 v12, %d, v12" % (65 * 64))
    a("v_add_u32 v11, v11, v12")
    a("v_and_b32 v12, 3, v0")
    a("v_lshl_add_u32 v11, v12, 4, v11")
    for r in range(16, 20):
        a("v_mov_b32 v%d, 0" % r)
    a("v_cmp_gt_u32 vcc, 96, v0")
    a("s_and_saveexec_b64 s[46:47], vcc")
    a("ds_write_b128 v11, v[16:19]")
    a("s_mov_b64 exec, s[46:47]")
    a("s_waitcnt lgkmcnt(0)")
    if which == 1:
        srd(a, 16, 6, WS_EMB, 16384)
        a("s_lshl_b32 s3, s%d, 11" % S_B)
        a("s_lshl_b32 s4, s%d, 8" % S_OCT)
        a("s_add_u32 s3, s3, s4")
        a("s_lshl_b32 s4, s%d, 7" % S_OH)
        a("s_add_u32 s3, s3, s4")
        a("v_lshlrev_b32 v13, 5, v9")
        for eq in range(4):
            a("buffer_load_dwordx4 v[%d:%d], v13, s[16:19], s3 offen" % (16 + 8 * eq, 19 + 8 * eq))
            a("buffer_load_dwordx4 v[%d:%d], v13, s[16:19], s3 offen offset:16" % (20 + 8 * eq, 23 + 8 * eq))
            if eq < 3:
                a("s_add_u32 s3, s3, 4096")
        srd(a, 20, 12, 0, 1024)
        srd(a, 24, 14, 0, 1024)
        a("s_lshl_b32 s3, s%d, 7" % S_OCT)
        a("s_lshl_b32 s4, s%d, 6" % S_OH)
        a("s_add_u32 s3, s3, s4")
        a("v_lshlrev_b32 v13, 4, v9")
        a("buffer_load_dwordx4 v[%d:%d], v13, s[20:23], s3 offen" % (EXT, EXT + 3))
        a("buffer_load_dwordx4 v[%d:%d], v13, s[24:27], s3 offen" % (EXT + 4, EXT + 7))
        a("s_waitcnt vmcnt(2)")
        for j in range(8):
            a("v_add_f32 v%d, v%d, v%d" % (16 + j, 16 + j, 24 + j))
            a("v_add_f32 v%d, v%d, v%d" % (32 + j, 32 + j, 40 + j))
        for j in range(8):
            a("v_add_f32 v%d, v%d, v%d" % (16 + j, 16 + j, 32 + j))
        for blk in range(2):
            for row in range(4):
                for f in range(2):
                    for j in range(4):
                        a("v_mov_b32 v%d, v%d" % (areg(blk, row, f) + j, 16 + blk * 4 + j))
    else:
        srd(a, 16, 12, 0, IMG_BYTES)
        srd(a, 20, 14, 0, IMG_BYTES)
        a("s_lshl_b32 s3, s%d, 22" % S_B)
        a("s_lshl_b32 s4, s%d, 19" % S_OCT)
        a("s_add_u32 s3, s3, s4")
        a("s_lshl_b32 s4, s%d, 18" % S_OH)
        a("s_add_u32 s3, s3, s4")
        a("s_lshl_b32 s4, s%d, 9" % S_RT)
        a("s_add_u32 s3, s3, s4")
        a("s_lshl_b32 s4, s%d, 6" % S_PH)
        a("s_add_u32 s48, s3, s4")
        a("s_add_u32 s49, s48, 0x20000")
        a("v_lshlrev_b32 v13, 13, v8")
        a("v_and_b32 v14, 1, v9")
        a("v_lshl_add_u32 v13, v14, 5, v13")
        a("v_lshrrev_b32 v14, 1, v9")
        a("v_lshl_add_u32 v13, v14, 4, v13")
        for blk in range(2):
            for row in range(4):
                r = EXT + 4 * (blk * 4 + row)
                a("buffer_load_dwordx4 v[%d:%d], v13, s[16:19], s%d offen offset:%d" %
                  (r, r + 3, 48 + blk, row * 128))
        for r in range(ACC, ACC + 64):
            a("v_mov_b32 v%d, 0" % r)

    def reads(st, buf, dx):
        out = []
        for dy in range(3):
            for blk in range(2):
                r = wreg(st, dy, blk)
                out.append("ds_read_b128 v[%d:%d], v%d offset:%d" %
                           (r, r + 3, VW[buf], (dx * 3 + dy) * 4096 + blk * 1024))
        xs = []
        for row in range(6):
            for f in range(2):
                r = xreg(st, row, f)
                xs.append("ds_read_b128 v[%d:%d], v%d offset:%d" %
                          (r, r + 3, VX[dx], buf * XBUF + row * XPITCH + f * 1024))
        return out[0:2] + xs[0:8] + out[2:4] + xs[8:10] + out[4:6] + xs[10:12]

    def mfmas(st):
        out = []
        for dy in range(3):
            for blk in range(2):
                for row in range(4):
                    for f in range(2):
                        d = areg(blk, row, f)
                        w = wreg(st, dy, blk)
                        x = xreg(st, row + dy, f)
                        p, q = (w, x) if which == 1 else (x, w)
                        out.append("v_mfma_f32_16x16x32_bf16 v[%d:%d], v[%d:%d], v[%d:%d], v[%d:%d]" %
                                   (d, d + 3, p, p + 3, q, q + 3, d, d + 3))
        return out

    if cfg.get("prio", 0):
        a("s_setprio %d" % cfg["prio"])
    a("s_barrier")
    for r in reads(0, 0, 0):
        a(r)
    a("s_mov_b32 s50, 0")
    a.raw(".p2align 6")
    a.label(L + "loop")
    rnum, rden = cfg.get("rd_rate", (2, 3))
    for s in range(6):
        st = s & 1
        ns = (s + 1) % 6
        rd = reads(st ^ 1, ns // 3, ns % 3)
        mf = mfmas(st)
        a("s_waitcnt lgkmcnt(0)")
        ri = 0
        start = 0
        if s % 3 == 2:
            nb = cfg.get("bar_after", 1)
            for i in range(nb):
                a(mf[i])
            a("s_barrier")
            start = nb
        cnt = 0
        for i in range(start, 48):
            a(mf[i])
            cnt += 1
            want = min(18, (cnt * rnum + rden - 1) // rden)
            while ri < want:
                a(rd[ri])
                ri += 1
        assert ri == 18
    a("s_add_u32 s50, s50, 1")
    a("s_cmp_lt_u32 s50, 8")
    a("s_cbranch_scc1 %sloop" % L)
    a("s_waitcnt lgkmcnt(0)")
    if cfg.get("prio", 0):
        a("s_setprio 0")
    a("s_nop 7")

    if which == 1:
        a("v_readfirstlane_b32 s52, v%d" % ACC)
        a("s_mov_b32 s53, s52")
        for r in range(16, 24):
            a("v_mov_b32 v%d, 0" % r)
        for i in range(32):
            src = ACC + 2 * i
            t = 24 + 2 * (i % 2)
            acc = 16 + 4 * (i % 2)
            a("v_pk_add_f32 v[%d:%d], v[%d:%d], s[52:53] neg_lo:[0,1] neg_hi:[0,1]" % (t, t + 1, src, src + 1))
            a("v_pk_add_f32 v[%d:%d], v[%d:%d], v[%d:%d]" % (acc, acc + 1, acc, acc + 1, t, t + 1))
            a("v_pk_fma_f32 v[%d:%d], v[%d:%d], v[%d:%d], v[%d:%d]" %
              (acc + 2, acc + 3, t, t + 1, t, t + 1, acc + 2, acc + 3))
        a("v_pk_add_f32 v[16:17], v[16:17], v[20:21]")
        a("v_pk_add_f32 v[18:19], v[18:19], v[22:23]")
        a("v_add_f32 v16, v16, v17")
        a("v_add_f32 v18, v18, v19")
        srd(a, 28, 6, WS_ST2, 8192)
        a("s_lshl_b32 s54, s%d, 2" % S_B)
        a("s_lshr_b32 s55, s%d, 1" % S_OCT)
        a("s_add_u32 s54, s54, s55")
        a("s_lshl_b32 s54, s54, 10")
        a("s_and_b32 s55, s%d, 1" % S_OCT)
        a("s_lshl_b32 s55, s55, 4")
        a("s_add_u32 s55, s55, s%d" % S_RT)
        a("s_lshl_b32 s55, s55, 2")
        a("s_add_u32 s55, s55, s%d" % S_WV)
        a("s_lshl_b32 s55, s55, 3")
        a("s_add_u32 s55, s55, s54")
        a("v_mov_b32 v28, 0")
        a("v_lshlrev_b32 v29, 4, v2")
        partial_stats_finish(a, 16, 18, 52, 4096, 20)
        a("buffer_store_dwordx2 v[20:21], v28, s[28:31], s55 offen sc1")
        a("s_mov_b64 exec, -1")
        srd(a, 32, 6, WS_A2, IMG_BYTES)
        a("s_lshl_b32 s56, s%d, 4" % S_B)
        a("s_lshl_b32 s57, s%d, 1" % S_OCT)
        a("s_add_u32 s56, s56, s57")
        a("s_add_u32 s56, s56, s%d" % S_OH)
        a("s_lshl_b32 s56, s56, 18")
        a("s_lshl_b32 s57, s%d, 14" % S_RT)
        a("s_add_u32 s56, s56, s57")
        a("v_subrev_u32 v30, 64, v%d" % VX[1])
        a("s_mov_b32 s58, %s" % fx(-LOG2E))
        a("s_mov_b32 s59, 0")
        a.label(L + "poll")
        a("buffer_load_dwordx4 v[32:35], v29, s[28:31], s54 offen sc1")
        a("s_waitcnt vmcnt(0)")
        a("v_cmp_eq_u32 vcc, -1, v33")
        a("v_cmp_eq_u32 s[60:61], -1, v35")
        a("s_or_b64 vcc, vcc, s[60:61]")
        a("s_cbranch_scc0 %spolldone" % L)
        a("s_add_u32 s59, s59, 1")
        a("s_cmp_lt_u32 s59, 0x40000")
        a("s_cbranch_scc0 %spolldone" % L)
        a("s_sleep 1")
        a("s_branch %spoll" % L)
        a.label(L + "polldone")
        combine128(a, 32, 36, 62, 63, 64, 4096)
        gamma_beta_to_scale(a, EXT, EXT + 4, 44, 52, 62, 63)
        gi = 0
        for row in range(4):
            for f in range(2):
                vals = [areg(0, row, f) + j for j in range(4)] + [areg(1, row, f) + j for j in range(4)]
                tm = list(range(60 + 8 * (gi % 2), 68 + 8 * (gi % 2)))
                for j in range(8):
                    a("v_fma_f32 v%d, v%d, v%d, v%d" % (vals[j], vals[j], 44 + j, 52 + j))
                silu_group(a, vals, tm, 58)
                o = 76 + 4 * (gi % 4)
                for k in range(4):
                    a("v_cvt_pk_bf16_f32 v%d, v%d, v%d" % (o + k, vals[2 * k], vals[2 * k + 1]))
                a("buffer_store_dwordx4 v[%d:%d], v30, s[32:35], s56 offen offset:%d" % (o, o + 3, f * 1024))
                gi += 1
            if row < 3:
                a("s_add_u32 s56, s56, 4096")
    else:
        a("s_waitcnt vmcnt(0)")
        gi = 0
        for blk in range(2):
            for row in range(4):
                r0, r1 = areg(blk, row, 0), areg(blk, row, 1)
                for j in range(4):
                    a("v_permlane16_swap_b32 v%d, v%d" % (r0 + j, r1 + j))
                xr = EXT + 4 * (blk * 4 + row)
                t = 16 + 8 * (gi % 2)
                vals = [r0 + j for j in range(4)] + [r1 + j for j in range(4)]
                for j in range(8):
                    if j % 2 == 0:
                        a("v_lshlrev_b32 v%d, 16, v%d" % (t + j, xr + j // 2))
                    else:
                        a("v_and_b32 v%d, 0xffff0000, v%d" % (t + j, xr + j // 2))
                for j in range(8):
                    a("v_add_f32 v%d, v%d, v%d" % (t + j, t + j, vals[j]))
                o = 32 + 4 * (gi % 4)
                for k in range(4):
                    a("v_cvt_pk_bf16_f32 v%d, v%d, v%d" % (o + k, t + 2 * k, t + 2 * k + 1))
                a("buffer_store_dwordx4 v[%d:%d], v13, s[20:23], s%d offen offset:%d" %
                  (o, o + 3, 48 + blk, row * 128))
                gi += 1
    a("s_endpgm")

    a.label(L + "prod")
    S_PW = 44
    a("s_sub_u32 s%d, s%d, 4" % (S_PW, S_WV))
    a("s_lshl_b32 s45, s%d, 10" % S_PW)
    a("v_lshl_add_u32 v3, v2, 4, s45")
    a("s_add_u32 s45, s45, 64")
    a("s_mul_i32 s46, s%d, 9216" % S_PW)
    a("s_mul_i32 s47, s%d, %d" % (S_OCT, 16 * WBUF))
    a("s_add_u32 s47, s47, s46")
    a("v_lshl_add_u32 v4, v2, 4, s47")
    a("s_add_u32 s46, s46, %d" % LDS_W)
    a("s_lshl_b32 s3, s%d, 10" % S_B)
    a("s_lshl_b32 s4, s%d, 2" % S_RT)
    a("s_add_u32 s3, s3, s4")
    a("s_lshl_b32 s3, s3, 12")
    for r in range(6):
        a("s_add_u32 s%d, s3, 0x%x" % (48 + r, ((r - 1) * 4096) & 0xFFFFFFFF))
    a("s_cmp_eq_u32 s%d, 0" % S_RT)
    a("s_cselect_b32 s48, 0x40000000, s48")
    a("s_cmp_eq_u32 s%d, 15" % S_RT)
    a("s_cselect_b32 s53, 0x40000000, s53")
    a("s_mov_b32 s54, 0")
    a("s_mov_b32 s55, 4096")
    a("s_mov_b32 s56, 8192")
    a("s_waitcnt lgkmcnt(0)")
    srd(a, 16, 6, WS_A1 if which == 1 else WS_A2, IMG_BYTES)
    srd(a, 20, 6, WS_W1 if which == 1 else WS_W2, WP_BYTES)

    def issue(buf):
        for g in range(3):
            a("s_add_u32 m0, s46, %d" % (buf * WBUF + g * 4096))
            a("s_nop 0")
            for i in range(4 if g < 2 else 1):
                a("buffer_load_dwordx4 v4, s[20:23], s%d offen offset:%d lds" % (54 + g, i * 1024))
        for r in range(6):
            a("s_add_u32 m0, s45, %d" % (buf * XBUF + r * XPITCH))
            a("s_nop 0")
            a("buffer_load_dwordx4 v3, s[16:19], s%d offen lds" % (48 + r))
        a("v_add_u32 v3, 0x40000, v3")
        a("v_add_u32 v4, %d, v4" % WBUF)

    issue(0)
    issue(1)
    a("s_waitcnt vmcnt(15)")
    a("s_barrier")
    a("s_waitcnt vmcnt(0)")
    a("s_barrier")
    a("s_mov_b32 s57, 0")
    a.label(L + "ploop")
    issue(0)
    a("s_waitcnt vmcnt(0)")
    a("s_barrier")
    issue(1)
    a("s_waitcnt vmcnt(0)")
    a("s_barrier")
    a("s_add_u32 s57, s57, 1")
    a("s_cmp_lt_u32 s57, 7")
    a("s_cbranch_scc1 %sploop" % L)
    a("s_barrier")
    a.label(L + "end")
    a("s_endpgm")
    return name, 256, (256, 512, CONV_LDS)


def build(cfg):
    ref = open(cfg.get("ref", "standalone__adm_resblock__diffusion.s.ref")).read()
    head = []
    for l in ref.splitlines():
        if l.startswith("; Override") or "@launch" in l:
            break
        head.append(l)
    a = Asm()
    ks = [gen_prep(a), gen_gn1(a), gen_conv(a, 1, cfg), gen_conv(a, 2, cfg)]
    out = list(head)
    for name, vg, (g, b, lds) in ks:
        out.append("; @launch kernel=%s grid=(%d,1,1) block=(%d,1,1) lds=%d" % (name, g, b, lds))
    out.append('.amdgcn_target "amdgcn-amd-amdhsa--gfx950"')
    out.append(".text")
    s = "\n".join(out) + "\n" + a.text()
    s += '.section .rodata,"a"\n'
    for name, vg, _ in ks:
        s += kernel_desc(name, vg)
    return s


if __name__ == "__main__":
    cfg = {}
    outp = "standalone__adm_resblock__diffusion.s"
    for arg in sys.argv[1:]:
        k, v = arg.split("=", 1)
        if k == "out":
            outp = v
        else:
            cfg[k] = eval(v)
    open(outp, "w").write(build(cfg))
    print("wrote", outp)
```

```python
import struct
import sys

WS_A1 = 0x0000000
WS_A2 = 0x0800000
WS_W1 = 0x1000000
WS_W2 = 0x1800000
WS_SYNC = 0x2000000
WS_EMB = 0x2020000
WS_DBG = 0x3000000
IMG_BYTES = 8 << 20
W_BYTES = 512 * 4608 * 2
UP_BYTES = 32 * 48 * 4096
SY_GA, SY_FB, SY_GC, SY_FD = 0, 0x8000, 0x10000, 0x18000

XPITCH = 4224
VB = 2 * XPITCH
RS = 4 * VB
FS = 1040
L_STAT = 4 * RS
L_BC = L_STAT + 256
L_EMB = L_BC + 64
LDS_BYTES = L_EMB + 256

LOG2E = 1.4426950408889634

P_X, P_TEMB, P_G1, P_BE1, P_W1, P_WEMB, P_G2, P_BE2, P_W2, P_OUT, P_DBG, P_WS = [64 + 2 * i for i in range(12)]
S_OCT, S_B, S_RT, S_WV, S_PT = 40, 41, 42, 43, 44
S_TAG, S_PHASE, S_ISA, S_HISA, S_ISA2, S_NL2E, S_ISAO = 88, 89, 90, 91, 92, 93, 94
S_ST = 96
SRD_SY = 20


def f2u(f):
    return struct.unpack("<I", struct.pack("<f", f))[0]


def fx(f):
    return "0x%08x" % f2u(f)


class Asm:
    def __init__(self):
        self.lines = []
        self.uid = 0

    def __call__(self, s):
        for l in s.strip("\n").split("\n"):
            self.lines.append("    " + l.strip())

    def label(self, l):
        self.lines.append(l + ":")

    def raw(self, s):
        self.lines.append(s)

    def nl(self, base):
        self.uid += 1
        return "L_%s_%d" % (base, self.uid)

    def text(self):
        return "\n".join(self.lines) + "\n"


def srd(a, d, ptr, off, nbytes):
    if off:
        a("s_add_u32 s%d, s%d, 0x%x" % (d, ptr, off))
        a("s_addc_u32 s%d, s%d, 0" % (d + 1, ptr + 1))
    else:
        a("s_mov_b32 s%d, s%d" % (d, ptr))
        a("s_mov_b32 s%d, s%d" % (d + 1, ptr + 1))
    a("s_mov_b32 s%d, 0x%x" % (d + 2, nbytes))
    a("s_mov_b32 s%d, 0x20000" % (d + 3))


DPP_STEPS = [
    "quad_perm:[1,0,3,2] row_mask:0xf bank_mask:0xf",
    "quad_perm:[2,3,0,1] row_mask:0xf bank_mask:0xf",
    "row_half_mirror row_mask:0xf bank_mask:0xf",
    "row_mirror row_mask:0xf bank_mask:0xf",
    "row_bcast:15 row_mask:0xa bank_mask:0xf",
    "row_bcast:31 row_mask:0xc bank_mask:0xf",
]


def dpp_reduce(a, regs, nsteps, op="v_add_f32_dpp"):
    n = len(regs)
    a("s_nop 1")
    for st in DPP_STEPS[:nsteps]:
        for r in regs:
            a("%s v%d, v%d, v%d %s" % (op, r, r, r, st))
        if n == 1:
            a("s_nop 1")
        elif n == 2:
            a("s_nop 0")


def unpack(a, dst_lo, dst_hi, src):
    a("v_lshlrev_b32 v%d, 16, v%d" % (dst_lo, src))
    a("v_and_b32 v%d, 0xffff0000, v%d" % (dst_hi, src))


def silu_group(a, vals, tmps, s_isa=None):
    for v, t in zip(vals, tmps):
        a("v_mul_f32 v%d, s%d, v%d" % (t, S_NL2E, v))
    for v, t in zip(vals, tmps):
        a("v_exp_f32 v%d, v%d" % (t, t))
    for v, t in zip(vals, tmps):
        if s_isa is None:
            a("v_add_f32 v%d, 1.0, v%d" % (t, t))
        else:
            a("v_fma_f32 v%d, v%d, s%d, s%d" % (t, t, s_isa, s_isa))
    for v, t in zip(vals, tmps):
        a("v_rcp_f32 v%d, v%d" % (t, t))
    for v, t in zip(vals, tmps):
        a("v_mul_f32 v%d, v%d, v%d" % (v, v, t))


class Gen:
    def __init__(self, cfg):
        self.cfg = cfg
        self.a = Asm()

    def stamp(self, real=True):
        if not self.cfg.get("stamp"):
            return
        a = self.a
        a("%s s[96:97]" % ("s_memrealtime" if real else "s_memtime"))
        a("s_waitcnt lgkmcnt(0)")
        a("s_mov_b32 m0, s98")
        a("s_nop 0")
        a("v_writelane_b32 v15, s96, m0")
        a("s_add_u32 s98, s98, 1")

    def stamp_flush(self):
        if not self.cfg.get("stamp"):
            return
        a = self.a
        a("s_mov_b64 exec, -1")
        srd(a, 8, P_WS, WS_DBG, 0x100000)
        a("s_lshl_b32 s3, s2, 11")
        a("s_lshl_b32 s4, s%d, 8" % S_WV)
        a("s_add_u32 s3, s3, s4")
        a("v_lshlrev_b32 v1, 2, v2")
        a("buffer_store_dword v15, v1, s[8:11], s3 offen")

    def local_stats(self, vals, cpair):
        a = self.a
        for r in range(24, 32):
            a("v_mov_b32 v%d, 0" % r)
        for i, src in enumerate(vals):
            t = 32 + 2 * (i % 2)
            acc = 24 + 4 * (i % 2)
            a("v_pk_add_f32 v[%d:%d], v[%d:%d], %s neg_lo:[0,1] neg_hi:[0,1]" % (t, t + 1, src, src + 1, cpair))
            a("v_pk_add_f32 v[%d:%d], v[%d:%d], v[%d:%d]" % (acc, acc + 1, acc, acc + 1, t, t + 1))
            a("v_pk_fma_f32 v[%d:%d], v[%d:%d], v[%d:%d], v[%d:%d]" %
              (acc + 2, acc + 3, t, t + 1, t, t + 1, acc + 2, acc + 3))
        a("v_pk_add_f32 v[24:25], v[24:25], v[28:29]")
        a("v_pk_add_f32 v[26:27], v[26:27], v[30:31]")
        a("v_add_f32 v24, v24, v25")
        a("v_add_f32 v25, v26, v27")
        dpp_reduce(a, [24, 25], 4)
        a("s_lshl_b32 s3, s%d, 5" % S_WV)
        a("s_add_u32 s3, s3, %d" % L_STAT)
        a("v_lshl_add_u32 v12, v9, 3, s3")
        a("ds_write_b64 v12, v[24:25]")
        a("s_waitcnt lgkmcnt(0)")

    def group_sync(self, csrc, s_own, s_grp):
        a = self.a
        a("v_lshlrev_b32 v12, 4, v8")
        a("v_add_u32 v12, %d, v12" % L_STAT)
        a("ds_read_b128 v[24:27], v12")
        a("v_and_b32 v13, 31, v2")
        a("v_lshlrev_b32 v13, 7, v13")
        a("v_mov_b32 v29, s%d" % S_TAG)
        a("v_mov_b32 v31, s%d" % S_TAG)
        a("v_mov_b32 v14, 0")
        a("s_waitcnt lgkmcnt(0)")
        a("v_add_f32 v24, v24, v26")
        a("v_add_f32 v25, v25, v27")
        dpp_reduce(a, [24, 25], 4)
        a("v_mul_f32 v26, %s, v24" % fx(1.0 / 16384))
        a("v_add_f32 v28, %s, v26" % csrc)
        a("v_fma_f32 v30, -v24, v26, v25")
        a("v_max_f32 v30, 0, v30")
        a("s_mov_b64 exec, 1")
        a("buffer_store_dwordx4 v[28:31], v14, s[%d:%d], s%d offen sc1" % (SRD_SY, SRD_SY + 3, s_own))
        a("s_mov_b64 exec, -1")
        self.stamp()
        if self.cfg.get("presleep", 8):
            a("s_sleep %d" % self.cfg.get("presleep", 8))
        a("s_mov_b32 s5, 0")
        lp, ld = a.nl("poll"), a.nl("polld")
        a.label(lp)
        a("buffer_load_dwordx4 v[32:35], v13, s[%d:%d], s%d offen sc1" % (SRD_SY, SRD_SY + 3, s_grp))
        a("s_waitcnt vmcnt(0)")
        a("v_cmp_ne_u32 vcc, s%d, v33" % S_TAG)
        a("v_cmp_ne_u32 s[6:7], s%d, v35" % S_TAG)
        a("s_or_b64 vcc, vcc, s[6:7]")
        a("s_cbranch_scc0 %s" % ld)
        a("s_add_u32 s5, s5, 1")
        a("s_cmp_lt_u32 s5, 0x10000")
        a("s_cbranch_scc0 %s" % ld)
        a("s_sleep 1")
        a("s_branch %s" % lp)
        a.label(ld)
        self.stamp()
        a("v_readfirstlane_b32 s6, v32")
        a("s_nop 1")
        a("v_subrev_f32 v36, s6, v32")
        a("v_mul_f32 v37, v36, v36")
        dpp_reduce(a, [36, 37, 34], 5)
        a("v_mul_f32 v41, %s, v36" % fx(1.0 / 32))
        a("v_fma_f32 v42, -v36, v41, v37")
        a("v_max_f32 v42, 0, v42")
        a("v_fmac_f32 v34, %s, v42" % fx(16384.0))
        a("v_mov_b32 v43, %s" % fx(1e-5))
        a("v_fmac_f32 v43, %s, v34" % fx(1.0 / 524288))
        a("v_add_f32 v42, s6, v41")
        a("v_rsq_f32 v43, v43")
        a("v_mov_b32 v12, %d" % L_BC)
        a("s_mov_b32 exec_lo, 0x80000000")
        a("s_mov_b32 exec_hi, 0")
        a("ds_write_b64 v12, v[42:43]")
        a("s_mov_b64 exec, -1")
        a("s_waitcnt lgkmcnt(0)")

    def flag_and_poll(self, s_own, v_list):
        a = self.a
        a("v_mov_b32 v24, s%d" % S_TAG)
        a("v_mov_b32 v14, 0")
        a("s_mov_b64 exec, 1")
        a("buffer_store_dword v24, v14, s[%d:%d], s%d offen sc1" % (SRD_SY, SRD_SY + 3, s_own))
        a("s_mov_b64 exec, -1")
        self.stamp()
        if self.cfg.get("presleep", 8):
            a("s_sleep %d" % self.cfg.get("presleep", 8))
        a("s_mov_b32 s5, 0")
        lp, ld = a.nl("poll"), a.nl("polld")
        a.label(lp)
        a("buffer_load_dword v25, v%d, s[%d:%d], 0 offen sc1" % (v_list, SRD_SY, SRD_SY + 3))
        a("s_waitcnt vmcnt(0)")
        a("v_cmp_ne_u32 vcc, s%d, v25" % S_TAG)
        a("s_cmp_eq_u64 vcc, 0")
        a("s_cbranch_scc1 %s" % ld)
        a("s_add_u32 s5, s5, 1")
        a("s_cmp_lt_u32 s5, 0x10000")
        a("s_cbranch_scc0 %s" % ld)
        a("s_sleep 1")
        a("s_branch %s" % lp)
        a.label(ld)
        self.stamp()

    def w_loads(self, ptr, s_ob, s_cc, R):
        a = self.a
        srd(a, 12, ptr, 0, W_BYTES)
        a("v_lshrrev_b32 v10, 2, v8")
        a("v_lshlrev_b32 v10, 3, v10")
        a("v_and_b32 v11, 3, v8")
        a("v_add_u32 v10, v10, v11")
        a("v_mul_u32_u24 v10, 9216, v10")
        a("v_mul_u32_u24 v11, 144, v9")
        a("v_add_u32 v10, v10, v11")
        a("s_lshr_b32 s3, s%d, 1" % s_ob)
        a("s_lshl_b32 s3, s3, 5")
        a("s_and_b32 s4, s%d, 1" % s_ob)
        a("s_lshl_b32 s4, s4, 2")
        a("s_add_u32 s3, s3, s4")
        a("s_mul_i32 s3, s3, 9216")
        a("s_mul_i32 s4, s%d, 576" % s_cc)
        a("s_add_u32 s3, s3, s4")
        for i in range(9):
            a("buffer_load_dwordx4 v[%d:%d], v10, s[12:15], s3 offen offset:%d" % (R + 4 * i, R + 4 * i + 3, 16 * i))

    def w_pack(self, ws_off, s_ob, s_cc, R, T):
        a = self.a
        srd(a, 12, P_WS, ws_off, UP_BYTES)
        a("s_lshr_b32 s3, s%d, 2" % s_ob)
        a("s_mul_i32 s3, s3, %d" % (4 * 48 * 4096))
        a("s_and_b32 s4, s%d, 3" % s_ob)
        a("s_lshl_b32 s4, s4, 10")
        a("s_add_u32 s3, s3, s4")
        a("s_mul_i32 s4, s%d, %d" % (s_cc, 3 * 4096))
        a("s_add_u32 s3, s3, s4")
        a("s_mov_b32 s6, 0x07060100")
        a("s_mov_b32 s7, 0x05040302")
        a("s_waitcnt vmcnt(0)")
        O = T + 10
        for dx in range(3):
            for xi, t in ((0, dx), (3, 6 + dx)):
                o = O + 4 * xi
                for k in range(4):
                    e0 = 2 * k * 9 + t
                    e1 = e0 + 9
                    sel = 6 if e0 % 2 == 0 else 7
                    a("v_perm_b32 v%d, v%d, v%d, s%d" % (o + k, R + e1 // 2, R + e0 // 2, sel))
                a("s_add_u32 s4, s3, %d" % ((xi * 48 + dx) * 4096))
                a("buffer_store_dwordx4 v[%d:%d], v6, s[12:15], s4 offen sc1" % (o, o + 3))
            for k in range(4):
                for h in range(2):
                    j = 2 * k + h
                    for dy in range(3):
                        e = j * 9 + dy * 3 + dx
                        d = T + h * 3 + dy
                        if e % 2 == 0:
                            a("v_lshlrev_b32 v%d, 16, v%d" % (d, R + e // 2))
                        else:
                            a("v_and_b32 v%d, 0xffff0000, v%d" % (d, R + e // 2))
                for h in range(2):
                    a("v_add_f32 v%d, v%d, v%d" % (T + h * 3, T + h * 3, T + 2 + h * 3))
                for h in range(2):
                    a("v_add_f32 v%d, v%d, v%d" % (T + 6 + h, T + h * 3, T + 1 + h * 3))
                    a("v_sub_f32 v%d, v%d, v%d" % (T + 8 + h, T + h * 3, T + 1 + h * 3))
                a("v_cvt_pk_bf16_f32 v%d, v%d, v%d" % (O + 4 + k, T + 6, T + 7))
                a("v_cvt_pk_bf16_f32 v%d, v%d, v%d" % (O + 8 + k, T + 8, T + 9))
            for xi in (1, 2):
                a("s_add_u32 s4, s3, %d" % ((xi * 48 + dx) * 4096))
                a("buffer_store_dwordx4 v[%d:%d], v6, s[12:15], s4 offen sc1" % (O + 4 * xi, O + 4 * xi + 3))
            a("s_nop 1")

    def norm_coeffs(self, G, BT, SC, SH):
        a = self.a
        for j in range(4):
            unpack(a, SC + 2 * j, SC + 2 * j + 1, G + j)
            unpack(a, SH + 2 * j, SH + 2 * j + 1, BT + j)
        for j in range(8):
            a("v_mul_f32 v%d, v17, v%d" % (SC + j, SC + j))
        for j in range(8):
            a("v_fma_f32 v%d, -v%d, v16, v%d" % (SH + j, SC + j, SH + j))

    def build(self):
        a, cfg = self.a, self.cfg
        name = "standalone__adm_resblock__diffusion_kernel"
        a.raw(".globl %s" % name)
        a.raw(".p2align 8")
        a.raw(".type %s,@function" % name)
        a.label(name)
        a("s_cmp_ge_u32 s2, 256")
        a("s_cbranch_scc1 L_end")
        a("s_load_dwordx16 s[64:79], s[0:1], 0")
        a("s_load_dwordx8 s[80:87], s[0:1], 64")
        a("v_lshrrev_b32 v1, 6, v0")
        a("v_and_b32 v2, 63, v0")
        a("v_readfirstlane_b32 s%d, v1" % S_WV)
        a("v_lshlrev_b32 v6, 4, v2")
        a("v_and_b32 v8, 15, v2")
        a("v_lshrrev_b32 v9, 4, v2")
        a("v_mov_b32 v14, 0")
        a("v_and_b32 v3, 3, v0")
        a("v_lshrrev_b32 v4, 2, v0")
        a("v_lshlrev_b32 v5, 16, v3")
        a("v_lshl_add_u32 v5, v4, 3, v5")
        a("s_lshr_b32 s45, s2, 3")
        a("s_and_b32 s46, s2, 7")
        a("s_lshl_b32 s47, s45, 18")
        a("s_lshl_b32 s3, s46, 10")
        a("s_add_u32 s47, s47, s3")
        if cfg.get("stamp"):
            a("s_mov_b32 s98, 0")
            a("v_mov_b32 v15, 0")
        self.stamp()
        a("s_waitcnt lgkmcnt(0)")
        srd(a, 8, P_X, 0, IMG_BYTES)
        a("s_mov_b32 s3, s47")
        XR = 48
        for j in range(8):
            a("buffer_load_dwordx2 v[%d:%d], v5, s[8:11], s3 offen" % (XR + 2 * j, XR + 2 * j + 1))
            if j < 7:
                a("s_add_u32 s3, s3, 8192")
        a("s_add_u32 s4, s%d, s47" % P_X)
        a("s_addc_u32 s5, s%d, 0" % (P_X + 1))
        a("s_load_dword s48, s[4:5], 0")
        srd(a, 24, P_G1, 0, 1024)
        srd(a, 28, P_BE1, 0, 1024)
        a("s_and_b32 s3, s45, 15")
        a("s_lshl_b32 s3, s3, 6")
        a("v_lshlrev_b32 v10, 4, v3")
        a("buffer_load_dwordx4 v[64:67], v10, s[24:27], s3 offen")
        a("buffer_load_dwordx4 v[68:71], v10, s[28:31], s3 offen")
        srd(a, SRD_SY, P_WS, WS_SYNC, 0x20000)
        srd(a, 32, P_DBG, 0, 256)
        a("s_and_b32 s3, s2, 1")
        a("s_lshl_b32 s3, s3, 2")
        a("s_bfe_u32 s4, s2, 0x20003")
        a("s_add_u32 s%d, s3, s4" % S_OCT)
        a("s_bfe_u32 s3, s2, 0x20001")
        a("s_lshl_b32 s3, s3, 3")
        a("s_lshr_b32 s4, s2, 5")
        a("s_add_u32 s%d, s3, s4" % S_PT)
        a("s_lshr_b32 s%d, s%d, 4" % (S_B, S_PT))
        a("s_and_b32 s%d, s%d, 15" % (S_RT, S_PT))
        a("s_mov_b32 s%d, %s" % (S_NL2E, fx(-LOG2E)))
        a("s_mov_b32 s%d, 0" % S_PHASE)
        a("s_mov_b32 s%d, 0" % S_TAG)
        RR = 112
        a("s_cmp_eq_u32 s%d, 0" % S_WV)
        a("s_cbranch_scc1 L_r0")
        a("s_cmp_eq_u32 s%d, 1" % S_WV)
        a("s_cbranch_scc1 L_r1")
        a("s_cmp_lt_u32 s%d, 4" % S_WV)
        a("s_cbranch_scc1 L_rnone")
        a("s_cmp_lt_u32 s%d, 6" % S_WV)
        a("s_cbranch_scc1 L_rw")
        a("s_and_b32 s3, s2, 31")
        a("s_cmp_lt_u32 s3, 8")
        a("s_cbranch_scc0 L_rnone")
        a("s_lshl_b32 s49, s3, 1")
        a("s_add_u32 s49, s49, s%d" % S_WV)
        a("s_sub_u32 s49, s49, 6")
        a("s_mul_i32 s3, s49, 48")
        a("v_lshrrev_b32 v10, 3, v2")
        a("v_mul_u32_u24 v10, 6, v10")
        a("v_add_u32 v10, s3, v10")
        a("v_lshlrev_b32 v11, 1, v10")
        a("v_lshlrev_b32 v10, 10, v10")
        a("v_and_b32 v12, 7, v2")
        a("v_lshl_add_u32 v10, v12, 4, v10")
        a("v_add_u32 v12, 4096, v10")
        a("s_lshr_b32 s3, s2, 5")
        a("s_lshl_b32 s3, s3, 7")
        srd(a, 12, P_TEMB, 0, 2 * 768 * 2)
        srd(a, 16, P_WEMB, 0, 768 * 512 * 2)
        a("buffer_load_dwordx3 v[%d:%d], v11, s[12:15], 0 offen" % (RR, RR + 2))
        a("buffer_load_dwordx3 v[%d:%d], v11, s[12:15], 0 offen offset:1536" % (RR + 4, RR + 6))
        for i in range(6):
            a("buffer_load_dwordx4 v[%d:%d], v%d, s[16:19], s3 offen offset:%d" %
              (RR + 8 + 4 * i, RR + 11 + 4 * i, 10 if i < 4 else 12, (i % 4) * 1024))
        a("s_waitcnt vmcnt(8)")
        a("s_branch L_rdone")
        a.label("L_rw")
        a("s_lshl_b32 s50, s46, 1")
        a("s_add_u32 s50, s50, s%d" % S_WV)
        a("s_sub_u32 s50, s50, 4")
        self.w_loads(P_W1, 45, 50, RR)
        a("s_waitcnt vmcnt(9)")
        a("s_branch L_rdone")
        a.label("L_r1")
        srd(a, 12, P_G2, 0, 1024)
        srd(a, 16, P_BE2, 0, 1024)
        a("buffer_load_dwordx4 v[%d:%d], v6, s[24:27], 0 offen" % (RR, RR + 3))
        a("buffer_load_dwordx4 v[%d:%d], v6, s[28:31], 0 offen" % (RR + 4, RR + 7))
        a("buffer_load_dwordx4 v[%d:%d], v6, s[12:15], 0 offen" % (RR + 8, RR + 11))
        a("buffer_load_dwordx4 v[%d:%d], v6, s[16:19], 0 offen" % (RR + 12, RR + 15))
        a("s_waitcnt vmcnt(4)")
        a("s_branch L_rdone")
        a.label("L_r0")
        a("v_mov_b32 v14, 0")
        a("s_cmp_lg_u32 s2, 0")
        a("s_cbranch_scc1 L_r0b")
        a("s_memrealtime s[4:5]")
        a("s_waitcnt lgkmcnt(0)")
        a("s_or_b32 s4, s4, 1")
        a("v_mov_b32 v13, s4")
        a("s_mov_b64 exec, 1")
        a("buffer_store_dword v13, v14, s[32:35], 0 offen sc1")
        a("s_mov_b64 exec, -1")
        a.label("L_r0b")
        a("s_waitcnt vmcnt(0)")
        a("buffer_load_dword v%d, v14, s[32:35], 0 offen sc1" % RR)
        a("s_branch L_rdone")
        a.label("L_rnone")
        a("s_waitcnt vmcnt(0)")
        a.label("L_rdone")
        self.stamp()
        XF = 72
        for j in range(8):
            for d in range(2):
                unpack(a, XF + 4 * j + 2 * d, XF + 4 * j + 2 * d + 1, XR + 2 * j + d)
        a("s_waitcnt lgkmcnt(0)")
        a("s_lshl_b32 s48, s48, 16")
        a("s_mov_b32 s49, s48") if False else None
        a("v_mov_b32 v20, s48")
        a("v_mov_b32 v21, s48")
        self.local_stats([XF + 2 * i for i in range(16)], "v[20:21]")
        a("s_barrier")
        a("s_cmp_eq_u32 s%d, 0" % S_WV)
        a("s_cbranch_scc1 L_s0")
        a("s_cmp_eq_u32 s%d, 1" % S_WV)
        a("s_cbranch_scc1 L_s1")
        a("s_cmp_lt_u32 s%d, 4" % S_WV)
        a("s_cbranch_scc1 L_sdone")
        a("s_cmp_lt_u32 s%d, 6" % S_WV)
        a("s_cbranch_scc1 L_sw")
        a("s_and_b32 s3, s2, 31")
        a("s_cmp_lt_u32 s3, 8")
        a("s_cbranch_scc0 L_sdone")
        E = 148
        a("s_waitcnt vmcnt(6)")
        for b in range(2):
            for d in range(3):
                unpack(a, E + 6 * b + 2 * d, E + 6 * b + 2 * d + 1, RR + 4 * b + d)
        silu_group(a, list(range(E, E + 12)), list(range(E + 12, E + 24)))
        EA = E + 24
        a("s_waitcnt vmcnt(0)")
        for i in range(6):
            for k in range(4):
                unpack(a, E + 12, E + 13, RR + 8 + 4 * i + k)
                for h in range(2):
                    j = 2 * k + h
                    for b in range(2):
                        if i == 0:
                            a("v_mul_f32 v%d, v%d, v%d" % (EA + 8 * b + j, E + 12 + h, E + 6 * b + i))
                        else:
                            a("v_fmac_f32 v%d, v%d, v%d" % (EA + 8 * b + j, E + 12 + h, E + 6 * b + i))
        a("s_nop 1")
        for j in range(8):
            a("v_permlane32_swap_b32 v%d, v%d" % (EA + j, EA + 8 + j))
        for j in range(8):
            a("v_add_f32 v%d, v%d, v%d" % (EA + j, EA + j, EA + 8 + j))
        a("s_nop 1")
        for j in range(4):
            a("v_permlane16_swap_b32 v%d, v%d" % (EA + j, EA + 4 + j))
        for j in range(4):
            a("v_add_f32 v%d, v%d, v%d" % (EA + j, EA + j, EA + 4 + j))
        a("s_nop 1")
        for j in range(4):
            a("v_add_f32_dpp v%d, v%d, v%d row_ror:8 row_mask:0xf bank_mask:0xf" % (EA + j, EA + j, EA + j))
        srd(a, 12, P_WS, WS_EMB, 65536)
        a("v_lshrrev_b32 v10, 5, v2")
        a("v_lshlrev_b32 v10, 11, v10")
        a("v_and_b32 v11, 7, v2")
        a("v_lshl_add_u32 v10, v11, 5, v10")
        a("v_and_b32 v11, 16, v2")
        a("v_add_u32 v10, v10, v11")
        a("s_lshl_b32 s3, s49, 12")
        a("s_lshr_b32 s4, s2, 5")
        a("s_lshl_b32 s4, s4, 8")
        a("s_add_u32 s3, s3, s4")
        a("buffer_store_dwordx4 v[%d:%d], v10, s[12:15], s3 offen sc1" % (EA, EA + 3))
        a("s_branch L_sdone")
        a.label("L_sw")
        self.w_pack(WS_W1, 45, 50, RR, 148)
        a("s_branch L_sdone")
        a.label("L_s1")
        a("s_waitcnt vmcnt(0)")
        a("s_mov_b32 s3, 0x7fff7fff")
        for arr in range(4):
            r = RR + 4 * arr
            for k in range(4):
                a("v_and_b32 v%d, s3, v%d" % (r + k, r + k))
            a("v_pk_max_u16 v%d, v%d, v%d" % (r, r, r + 1))
            a("v_pk_max_u16 v%d, v%d, v%d" % (r + 2, r + 2, r + 3))
            a("v_pk_max_u16 v%d, v%d, v%d" % (r, r, r + 2))
            a("v_lshrrev_b32 v%d, 16, v%d" % (r + 1, r))
            a("v_and_b32 v%d, 0xffff, v%d" % (r, r))
            a("v_max_u32 v%d, v%d, v%d" % (r, r, r + 1))
        dpp_reduce(a, [RR, RR + 4, RR + 8, RR + 12], 6, "v_max_u32_dpp")
        for k in range(2):
            g, bt = RR + 8 * k, RR + 8 * k + 4
            a("v_lshrrev_b32 v%d, 7, v%d" % (g, g))
            a("v_lshrrev_b32 v%d, 7, v%d" % (bt, bt))
            a("v_add_u32 v%d, 10, v%d" % (g, g))
            a("v_max_u32 v%d, v%d, v%d" % (g, g, bt))
            a("v_max_u32 v%d, 14, v%d" % (g, g))
            a("v_min_u32 v%d, 0x10a, v%d" % (g, g))
            a("v_subrev_u32 v%d, 13, v%d" % (g, g))
            a("v_lshlrev_b32 v%d, 23, v%d" % (RR + 16 + k, g))
        a("v_mov_b32 v12, %d" % (L_BC + 8))
        a("s_mov_b32 exec_lo, 0")
        a("s_mov_b32 exec_hi, 0x80000000")
        a("ds_write_b64 v12, v[%d:%d]" % (RR + 16, RR + 17))
        a("s_mov_b64 exec, -1")
        a("s_waitcnt lgkmcnt(0)")
        a("s_branch L_sdone")
        a.label("L_s0")
        a("s_mov_b32 s5, 0")
        a.label("L_nonce")
        a("s_waitcnt vmcnt(0)")
        a("v_readfirstlane_b32 s%d, v%d" % (S_TAG, RR))
        a("s_nop 3")
        a("s_cmp_lg_u32 s%d, 0" % S_TAG)
        a("s_cbranch_scc1 L_nonced")
        a("s_add_u32 s5, s5, 1")
        a("s_cmp_lt_u32 s5, 0x10000")
        a("s_cbranch_scc0 L_nonced")
        a("buffer_load_dword v%d, v14, s[32:35], 0 offen sc1" % RR)
        a("s_branch L_nonce")
        a.label("L_nonced")
        a("v_mov_b32 v12, %d" % (L_BC + 16))
        a("v_mov_b32 v13, s%d" % S_TAG)
        a("ds_write_b32 v12, v13")
        a("s_lshl_b32 s50, s2, 7")
        a("s_and_b32 s51, s50, 0x7000")
        self.group_sync("v20", 50, 51)
        a.label("L_sdone")
        a("s_barrier")
        a("v_mov_b32 v12, %d" % L_BC)
        a("ds_read_b128 v[16:19], v12")
        a("ds_read_b32 v22, v12 offset:16")
        srd(a, 8, P_WS, WS_A1, IMG_BYTES)
        a("v_and_b32 v10, 1, v4")
        a("v_lshlrev_b32 v10, 1, v10")
        a("v_xor_b32 v10, v10, v3")
        a("v_lshlrev_b32 v10, 4, v10")
        a("v_lshl_add_u32 v10, v4, 8, v10")
        a("v_xor_b32 v11, 32, v10")
        a("s_lshl_b32 s47, s45, 18")
        a("s_lshl_b32 s3, s46, 15")
        a("s_add_u32 s47, s47, s3")
        a("s_waitcnt lgkmcnt(0)")
        a("v_readfirstlane_b32 s%d, v18" % S_ISA)
        a("v_readfirstlane_b32 s%d, v19" % S_ISA2)
        a("v_readfirstlane_b32 s%d, v22" % S_TAG)
        self.norm_coeffs(64, 68, 24, 32)
        for i in range(4):
            vals = [XF + 4 * j + i for j in range(8)]
            tm = list(range(40 + 8 * (i % 2), 48 + 8 * (i % 2)))
            for j in range(8):
                a("v_fma_f32 v%d, v%d, v%d, v%d" % (vals[j], vals[j], 24 + j, 32 + j))
            silu_group(a, vals, tm, S_ISA)
            o = 56 + 4 * i
            for k in range(4):
                a("v_cvt_pk_f16_f32 v%d, v%d, v%d" % (o + k, vals[2 * k], vals[2 * k + 1]))
            a("buffer_store_dwordx4 v[%d:%d], v%d, s[8:11], s47 offen offset:%d sc1" % (o, o + 3, 11 if i == 3 else 10, i * 64))
        a("s_lshl_b32 s3, s%d, 2" % S_RT)
        a("s_add_u32 s4, s3, 4")
        a("s_min_u32 s4, s4, 63")
        a("s_lshr_b32 s4, s4, 3")
        a("s_max_u32 s3, s3, 1")
        a("s_sub_u32 s3, s3, 1")
        a("s_lshr_b32 s3, s3, 3")
        a("v_mov_b32 v12, s3")
        a("v_mov_b32 v13, s4")
        a("v_cmp_gt_u32 vcc, 16, v2")
        a("s_lshl_b32 s3, s%d, 7" % S_B)
        a("s_lshl_b32 s4, s%d, 5" % S_OCT)
        a("v_cndmask_b32 v12, v13, v12, vcc")
        a("v_lshl_add_u32 v12, v8, 3, v12")
        a("v_add_u32 v12, s3, v12")
        a("s_sub_u32 s4, s4, 32")
        a("v_add_u32 v13, s4, v2")
        a("v_cmp_gt_u32 vcc, 32, v2")
        a("s_lshl_b32 s50, s2, 7")
        a("s_add_u32 s50, s50, %d" % SY_FB)
        a("v_cndmask_b32 v12, v13, v12, vcc")
        a("v_lshlrev_b32 v12, 7, v12")
        a("v_add_u32 v23, %d, v12" % SY_FB)

        a.label("L_conv")
        VV = [3, 4, 5]
        VFR, USET, ACC, EXT = 16, 48, 112, 240
        a("s_waitcnt vmcnt(0)")
        self.stamp()
        a("s_barrier")
        a("v_mul_f32 v10, 0.5, s%d" % S_ISA) if False else None
        a("s_sub_u32 s%d, s%d, 0x800000" % (S_HISA, S_ISA))
        a("s_lshl_b32 s3, s%d, 23" % S_PHASE)
        a("s_cmp_ge_u32 s%d, 4" % S_WV)
        a("s_cbranch_scc1 L_prod")

        def ureg(st, blk):
            return USET + 16 * st + 4 * blk

        def vreg_(i):
            return VFR + 4 * i

        def areg(blk, i):
            return ACC + 4 * (blk * 8 + i)

        a("s_add_u32 s3, s3, 0x%x" % WS_W1)
        a("s_add_u32 s16, s%d, s3" % P_WS)
        a("s_addc_u32 s17, s%d, 0" % (P_WS + 1))
        a("s_mov_b32 s18, 0x%x" % UP_BYTES)
        a("s_mov_b32 s19, 0x20000")
        a("s_lshl_b32 s3, s%d, 2" % S_OCT)
        a("s_add_u32 s3, s3, s%d" % S_WV)
        a("s_mul_i32 s52, s3, %d" % (48 * 4096))
        a("s_mul_i32 s3, s%d, %d" % (S_WV, RS))
        for dx in range(3):
            a("v_add_u32 v11, %d, v8" % dx)
            a("v_bfe_u32 v12, v11, 2, 1")
            a("v_lshlrev_b32 v12, 1, v12")
            a("v_xor_b32 v12, v12, v9")
            a("v_lshlrev_b32 v12, 4, v12")
            a("v_lshl_add_u32 v12, v11, 6, v12")
            a("v_add_u32 v%d, s3, v12" % VV[dx])
        a("v_lshrrev_b32 v11, 3, v2")
        a("v_mul_u32_u24 v11, %d, v11" % XPITCH)
        a("v_bfe_u32 v12, v2, 2, 1")
        a("v_mul_u32_u24 v12, %d, v12" % (65 * 64))
        a("v_add_u32 v11, v11, v12")
        a("v_and_b32 v12, 3, v2")
        a("v_lshl_add_u32 v11, v12, 4, v11")
        a("v_add_u32 v11, s3, v11")
        for r in range(ACC, ACC + 128):
            a("v_mov_b32 v%d, 0" % r)
        a("ds_write_b128 v11, v[%d:%d]" % (ACC, ACC + 3))
        a("v_add_u32 v7, s3, v6")
        a("s_waitcnt lgkmcnt(0)")
        a("s_barrier")

        def uload(st, blk):
            r = ureg(st, blk)
            return "buffer_load_dwordx4 v[%d:%d], v6, s[16:19], s52 offen offset:%d sc1" % (r, r + 3, blk * 1024)

        def vread(i, buf, dx):
            r = vreg_(i)
            return "ds_read_b128 v[%d:%d], v%d offset:%d" % (r, r + 3, VV[dx], buf * VB + (i // 4) * XPITCH + (i % 4) * 1024)

        def mfma(st, blk, i):
            d, u, x = areg(blk, i), ureg(st, blk), vreg_(i)
            return "v_mfma_f32_16x16x32_bf16 v[%d:%d], v[%d:%d], v[%d:%d], v[%d:%d]" % (d, d + 3, u, u + 3, x, x + 3, d, d + 3)

        for st in range(3):
            for blk in range(4):
                a(uload(st, blk))
            a("s_add_u32 s52, s52, 4096")
        a("s_barrier")
        self.stamp()
        for i in range(7):
            a(vread(i, 0, 0))
        a("s_mov_b32 s53, 0")
        a.raw(".p2align 6")
        a.label("L_loop")
        upos = cfg.get("upos", (0, 2, 4, 6))
        for s in range(12):
            st = s % 4
            ns = (s + 1) % 12
            for i in range(8):
                a("s_waitcnt vmcnt(8) lgkmcnt(6)" if i == 0 else "s_waitcnt lgkmcnt(6)")
                for blk in range(4):
                    a(mfma(st, blk, i))
                    if blk == 0:
                        a(vread(7, s // 3, s % 3) if i == 0 else vread(i - 1, ns // 3, ns % 3))
                    if blk == 2 and i == 0 and s % 3 == 2:
                        a("s_barrier")
                    if blk == 1 and i in upos:
                        a(uload((s + 3) % 4, upos.index(i)))
                    if blk == 2 and i == 7:
                        a("s_add_u32 s52, s52, 4096")
        a("s_add_u32 s53, s53, 1")
        a("s_cmp_lt_u32 s53, 4")
        a("s_cbranch_scc1 L_loop")
        self.stamp()
        a("s_waitcnt lgkmcnt(0)")
        a("s_nop 3")
        for i in range(8):
            for blk in range(4):
                r = areg(blk, i)
                a("ds_write_b128 v7, v[%d:%d] offset:%d" % (r, r + 3, (blk * 8 + i) * FS))
        a("s_waitcnt vmcnt(0)")
        self.epi_loads()
        a("s_waitcnt lgkmcnt(0)")
        a("s_branch L_epi")

        a.label("L_prod")
        D = 2
        RAW, TMP, OUT = 24, 72, 88
        a("s_add_u32 s16, s%d, s3" % P_WS)
        a("s_addc_u32 s17, s%d, 0" % (P_WS + 1))
        a("s_mov_b32 s18, 0x%x" % IMG_BYTES)
        a("s_mov_b32 s19, 0x20000")
        a("s_sub_u32 s4, s%d, 4" % S_WV)
        a("s_lshl_b32 s4, s4, 10")
        a("v_add_u32 v3, s4, v6")
        a("v_add_u32 v4, 64, v3")
        a("v_add_u32 v5, %d, v4" % (2 * RS))
        a("s_lshl_b32 s3, s%d, 10" % S_B)
        a("s_lshl_b32 s4, s%d, 2" % S_RT)
        a("s_add_u32 s3, s3, s4")
        a("s_lshl_b32 s3, s3, 12")
        for r in range(6):
            a("s_add_u32 s%d, s3, 0x%x" % (52 + r, ((r - 1) * 4096) & 0xFFFFFFFF))
        a("s_cmp_eq_u32 s%d, 0" % S_RT)
        a("s_cselect_b32 s52, 0x40000000, s52")
        a("s_cmp_eq_u32 s%d, 15" % S_RT)
        a("s_cselect_b32 s57, 0x40000000, s57")
        a("s_cmp_lg_u32 s%d, 4" % S_WV)
        a("s_cbranch_scc1 L_nopoll")
        self.flag_and_poll(50, 23)
        a.label("L_nopoll")
        a("s_barrier")

        def rawload(st):
            for r in range(6):
                d = RAW + 24 * st + 4 * r
                a("buffer_load_dwordx4 v[%d:%d], v3, s[16:19], s%d offen sc1" % (d, d + 3, 52 + r))
            a("v_add_u32 v3, 0x40000, v3")

        COMB = [(0, 2, -1), (1, 2, 1), (2, 1, -1), (1, 3, -1)]

        def produce(st, buf):
            a("s_waitcnt vmcnt(%d)" % (6 * (D - 1)))
            for rp in range(2):
                for xi in range(4):
                    ra, rb, sg = COMB[xi]
                    ra, rb = RAW + 24 * st + 4 * (ra + 2 * rp), RAW + 24 * st + 4 * (rb + 2 * rp)
                    o = OUT + 4 * (rp * 4 + xi)
                    t = TMP + 8 * (xi % 2)
                    for d in range(4):
                        for h in range(2):
                            a("v_fma_mix_f32 v%d, v%d, 1.0, %sv%d op_sel:[%d,0,%d] op_sel_hi:[1,0,1]" %
                              (t + 2 * d + h, ra + d, "-" if sg < 0 else "", rb + d, h, h))
                    for d in range(4):
                        a("v_cvt_pk_bf16_f32 v%d, v%d, v%d" % (o + d, t + 2 * d, t + 2 * d + 1))
                    a("ds_write_b128 v%d, v[%d:%d] offset:%d" %
                      (4 if xi < 2 else 5, o, o + 3, (xi & 1) * RS + buf * VB + rp * XPITCH))
            rawload(st)
            a("s_waitcnt lgkmcnt(0)")

        for st in range(D):
            rawload(st)
        a("s_mov_b32 s58, 0")
        a.label("L_ploop")
        for j in range(4):
            produce(j % D, j)
            a("s_barrier")
        a("s_add_u32 s58, s58, 1")
        a("s_cmp_lt_u32 s58, 4")
        a("s_cbranch_scc1 L_ploop")
        a("s_waitcnt vmcnt(0)")
        a("s_cmp_lg_u32 s%d, 0" % S_PHASE)
        a("s_cbranch_scc1 L_pextra_done")
        a("s_cmp_eq_u32 s%d, 4" % S_WV)
        a("s_cbranch_scc1 L_pextra_done")
        a("s_cmp_lg_u32 s%d, 7" % S_WV)
        a("s_cbranch_scc1 L_pw2")
        srd(a, 12, P_WS, WS_EMB, 65536)
        a("s_lshl_b32 s3, s%d, 11" % S_B)
        a("s_lshl_b32 s4, s%d, 8" % S_OCT)
        a("s_add_u32 s3, s3, s4")
        a("v_lshlrev_b32 v10, 2, v2")
        for er in range(16):
            a("buffer_load_dword v%d, v10, s[12:15], s3 offen sc1" % (24 + er))
            if er < 15:
                a("s_add_u32 s3, s3, 4096")
        a("s_waitcnt vmcnt(0)")
        for k in range(8):
            a("v_add_f32 v%d, v%d, v%d" % (24 + k, 24 + k, 32 + k))
        for k in range(4):
            a("v_add_f32 v%d, v%d, v%d" % (24 + k, 24 + k, 28 + k))
        a("v_add_f32 v24, v24, v26")
        a("v_add_f32 v25, v25, v27")
        a("v_add_f32 v24, v24, v25")
        a("v_add_u32 v10, %d, v10" % L_EMB)
        a("ds_write_b32 v10, v24")
        a("s_waitcnt lgkmcnt(0)")
        a("s_branch L_pextra_done")
        a.label("L_pw2")
        a("s_lshl_b32 s45, s%d, 2" % S_OCT)
        a("s_lshr_b32 s3, s%d, 3" % S_PT)
        a("s_add_u32 s45, s45, s3")
        a("s_and_b32 s46, s%d, 7" % S_PT)
        a("s_lshl_b32 s46, s46, 1")
        a("s_add_u32 s46, s46, s%d" % S_WV)
        a("s_sub_u32 s46, s46, 5")
        self.w_loads(P_W2, 45, 46, 208)
        a.label("L_pextra_done")
        self.epi_loads()
        a("s_barrier")

        a.label("L_epi")
        a("s_barrier")
        self.stamp()
        M, Y = 112, 176
        a("s_cmp_lg_u32 s%d, 0" % S_PHASE)
        a("s_cbranch_scc1 L_epi2")
        a("s_and_b32 s59, s%d, 1" % S_WV)
        a("s_lshr_b32 s3, s%d, 1" % S_WV)
        a("s_lshl_b32 s4, s59, 4")
        a("s_lshl_b32 s3, s3, 1")
        a("s_add_u32 s4, s4, s3")
        a("s_mul_i32 s4, s4, %d" % FS)
        a("v_add_u32 v10, s4, v6")
        a("v_add_u32 v11, %d, v10" % (2 * RS))
        a("v_mov_b32 v12, 0")
        a("ds_read_b32 v16, v12")
        a("ds_read_b32 v17, v12 offset:%d" % RS)
        a("v_mov_b32 v12, %d" % (2 * RS))
        a("ds_read_b32 v18, v12")
        a("s_lshl_b32 s3, s59, 7")
        a("s_add_u32 s3, s3, %d" % L_EMB)
        a("v_lshl_add_u32 v12, v9, 5, s3")
        a("ds_read_b128 v[48:51], v12")
        a("ds_read_b128 v[52:55], v12 offset:16")
        for u in range(2):
            for xi in range(4):
                for h in range(2):
                    r = M + 4 * ((u * 4 + xi) * 2 + h)
                    a("ds_read_b128 v[%d:%d], v%d offset:%d" %
                      (r, r + 3, 10 if xi < 2 else 11, (xi & 1) * RS + (h * 8 + u) * FS))
        a("s_waitcnt lgkmcnt(8)")
        a("v_add_f32 v17, v17, v18")
        a("v_fma_f32 v20, v17, 0.5, v16")
        a("v_mul_f32 v20, s%d, v20" % S_ISA)
        a("v_mov_b32 v21, v20")
        for u in range(2):
            if u == 1:
                a("s_waitcnt lgkmcnt(0)")
            for j in range(8):
                m = [M + 4 * ((u * 4 + xi) * 2 + j // 4) + j % 4 for xi in range(4)]
                ye, yo = Y + u * 16 + j, Y + u * 16 + 8 + j
                a("v_add_f32 v%d, v%d, v%d" % (ye, m[1], m[2]))
                a("v_sub_f32 v%d, v%d, v%d" % (yo, m[1], m[2]))
                a("v_fma_f32 v%d, v%d, s%d, v%d" % (m[0], m[0], S_ISA, 48 + j))
                a("v_fma_f32 v%d, -v%d, s%d, v%d" % (m[3], m[3], S_ISA, 48 + j))
                a("v_fma_f32 v%d, v%d, s%d, v%d" % (ye, ye, S_HISA, m[0]))
                a("v_fma_f32 v%d, v%d, s%d, v%d" % (yo, yo, S_HISA, m[3]))
        self.local_stats([Y + 2 * i for i in range(16)], "v[20:21]")
        a("s_waitcnt vmcnt(0)")
        a("s_barrier")
        a("s_cmp_eq_u32 s%d, 0" % S_WV)
        a("s_cbranch_scc1 L_e0")
        a("s_cmp_lt_u32 s%d, 5" % S_WV)
        a("s_cbranch_scc1 L_edone")
        a("s_cmp_eq_u32 s%d, 7" % S_WV)
        a("s_cbranch_scc1 L_edone")
        self.w_pack(WS_W2, 45, 46, 208, 112)
        a("s_branch L_edone")
        a.label("L_e0")
        a("s_lshl_b32 s51, s%d, 2" % S_B)
        a("s_lshr_b32 s3, s%d, 1" % S_OCT)
        a("s_add_u32 s51, s51, s3")
        a("s_lshl_b32 s51, s51, 12")
        a("s_add_u32 s51, s51, %d" % SY_GC)
        a("s_and_b32 s50, s%d, 1" % S_OCT)
        a("s_lshl_b32 s50, s50, 4")
        a("s_add_u32 s50, s50, s%d" % S_RT)
        a("s_lshl_b32 s50, s50, 7")
        a("s_add_u32 s50, s50, s51")
        self.group_sync("v20", 50, 51)
        a.label("L_edone")
        srd(a, 8, P_WS, WS_A2, IMG_BYTES)
        a("s_lshl_b32 s56, s%d, 4" % S_B)
        a("s_lshl_b32 s57, s%d, 1" % S_OCT)
        a("s_add_u32 s56, s56, s57")
        a("s_add_u32 s56, s56, s59")
        a("s_lshl_b32 s56, s56, 18")
        a("s_lshl_b32 s57, s%d, 14" % S_RT)
        a("s_add_u32 s56, s56, s57")
        a("s_lshr_b32 s57, s%d, 2" % S_WV)
        a("s_lshl_b32 s57, s57, 13")
        a("s_add_u32 s56, s56, s57")
        a("s_bfe_u32 s57, s%d, 0x10001" % S_WV)
        a("s_lshl_b32 s57, s57, 11")
        a("s_add_u32 s56, s56, s57")
        a("s_add_u32 s57, s56, 4096")
        a("v_add_u32 v11, 1, v8")
        a("v_bfe_u32 v11, v11, 2, 1")
        a("v_lshlrev_b32 v11, 1, v11")
        a("v_xor_b32 v11, v11, v9")
        a("v_lshlrev_b32 v11, 4, v11")
        a("v_lshl_add_u32 v11, v8, 6, v11")
        a("v_lshrrev_b32 v12, 3, v2")
        a("v_min_u32 v12, 2, v12")
        a("v_add_u32 v12, s%d, v12" % S_RT)
        a("v_max_u32 v12, 1, v12")
        a("v_min_u32 v12, 16, v12")
        a("s_lshl_b32 s3, s%d, 4" % S_B)
        a("s_sub_u32 s3, s3, 1")
        a("v_add_u32 v12, s3, v12")
        a("v_and_b32 v13, 7, v2")
        a("v_lshl_add_u32 v12, v12, 3, v13")
        a("v_subrev_u32 v13, 32, v2")
        a("v_lshlrev_b32 v13, 3, v13")
        a("v_add_u32 v13, s%d, v13" % S_OCT)
        a("v_cmp_gt_u32 vcc, 32, v2")
        a("s_lshl_b32 s50, s%d, 3" % S_PT)
        a("s_add_u32 s50, s50, s%d" % S_OCT)
        a("v_cndmask_b32 v12, v13, v12, vcc")
        a("v_lshlrev_b32 v12, 7, v12")
        a("v_add_u32 v23, %d, v12" % SY_FD)
        a("s_lshl_b32 s50, s50, 7")
        a("s_add_u32 s50, s50, %d" % SY_FD)
        a("v_mov_b32 v12, %d" % L_BC)
        a("s_barrier")
        a("ds_read_b64 v[16:17], v12")
        a("s_mov_b32 s%d, s%d" % (S_ISA, S_ISA2))
        a("s_mov_b32 s%d, 1" % S_PHASE)
        a("s_waitcnt lgkmcnt(0)")
        self.norm_coeffs(EXT + 8, EXT + 12, 24, 32)
        gi = 0
        for u in range(2):
            for e in range(2):
                vals = [Y + u * 16 + e * 8 + j for j in range(8)]
                tm = list(range(40 + 8 * (gi % 2), 48 + 8 * (gi % 2)))
                for j in range(8):
                    a("v_fma_f32 v%d, v%d, v%d, v%d" % (vals[j], vals[j], 24 + j, 32 + j))
                silu_group(a, vals, tm, S_ISA)
                o = 56 + 4 * gi
                for k in range(4):
                    a("v_cvt_pk_f16_f32 v%d, v%d, v%d" % (o + k, vals[2 * k], vals[2 * k + 1]))
                a("buffer_store_dwordx4 v[%d:%d], v11, s[8:11], s%d offen offset:%d sc1" % (o, o + 3, 56 + e, u * 1024))
                gi += 1
        a("s_branch L_conv")

        a.label("L_epi2")
        a("s_lshl_b32 s3, s%d, 2" % S_WV)
        a("s_mul_i32 s3, s3, %d" % FS)
        a("v_lshrrev_b32 v10, 2, v8")
        a("v_mul_u32_u24 v10, %d, v10" % FS)
        a("v_and_b32 v11, 3, v8")
        a("v_lshl_add_u32 v10, v11, 6, v10")
        a("v_lshl_add_u32 v10, v9, 8, v10")
        a("v_add_u32 v10, s3, v10")
        a("v_add_u32 v11, %d, v10" % (2 * RS))
        for k in range(4):
            for xi in range(4):
                r = M + 4 * (k * 4 + xi)
                a("ds_read_b128 v[%d:%d], v%d offset:%d" % (r, r + 3, 10 if xi < 2 else 11, (xi & 1) * RS + k * 16))
        a("s_waitcnt vmcnt(0)")
        for je in range(8):
            for d in range(2):
                unpack(a, 48 + je * 4 + 2 * d, 49 + je * 4 + 2 * d, EXT + je * 2 + d)
        for k in range(4):
            a("s_waitcnt lgkmcnt(%d)" % (12 - 4 * k))
            for j in range(4):
                m = [M + 4 * (k * 4 + xi) + j for xi in range(4)]
                ye, yo = Y + (j * 2) * 4 + k, Y + (j * 2 + 1) * 4 + k
                xe, xo = 48 + (j * 2) * 4 + k, 48 + (j * 2 + 1) * 4 + k
                a("v_add_f32 v%d, v%d, v%d" % (ye, m[1], m[2]))
                a("v_sub_f32 v%d, v%d, v%d" % (yo, m[1], m[2]))
                a("v_fma_f32 v%d, v%d, s%d, v%d" % (m[0], m[0], S_ISA, xe))
                a("v_fma_f32 v%d, -v%d, s%d, v%d" % (m[3], m[3], S_ISA, xo))
                a("v_fma_f32 v%d, v%d, s%d, v%d" % (ye, ye, S_HISA, m[0]))
                a("v_fma_f32 v%d, v%d, s%d, v%d" % (yo, yo, S_HISA, m[3]))
        srd(a, 8, P_OUT, 0, IMG_BYTES)
        for j in range(4):
            for e in range(2):
                je = j * 2 + e
                o = 16 + 2 * je
                a("v_cvt_pk_bf16_f32 v%d, v%d, v%d" % (o, Y + je * 4, Y + je * 4 + 1))
                a("v_cvt_pk_bf16_f32 v%d, v%d, v%d" % (o + 1, Y + je * 4 + 2, Y + je * 4 + 3))
                a("buffer_store_dwordx2 v[%d:%d], v13, s[8:11], s%d offen offset:%d" % (o, o + 1, 60 + j, e * 128))
        if cfg.get("stamp"):
            a("s_waitcnt vmcnt(0)")
        self.stamp()
        self.stamp_flush()
        a.label("L_end")
        a("s_endpgm")
        return name

    def epi_loads(self):
        a = self.a
        EXT = 240
        l1, l2 = a.nl("el"), a.nl("eld")
        a("s_cmp_lg_u32 s%d, 0" % S_PHASE)
        a("s_cbranch_scc1 %s" % l1)
        srd(a, 24, P_G2, 0, 1024)
        srd(a, 28, P_BE2, 0, 1024)
        a("s_and_b32 s4, s%d, 1" % S_WV)
        a("s_lshl_b32 s4, s4, 6")
        a("s_lshl_b32 s3, s%d, 7" % S_OCT)
        a("s_add_u32 s3, s3, s4")
        a("v_lshlrev_b32 v13, 4, v9")
        a("buffer_load_dwordx4 v[%d:%d], v13, s[24:27], s3 offen" % (EXT + 8, EXT + 11))
        a("buffer_load_dwordx4 v[%d:%d], v13, s[28:31], s3 offen" % (EXT + 12, EXT + 15))
        a("s_branch %s" % l2)
        a.label(l1)
        srd(a, 24, P_X, 0, IMG_BYTES)
        a("s_lshl_b32 s3, s%d, 22" % S_B)
        a("s_lshl_b32 s4, s%d, 19" % S_OCT)
        a("s_add_u32 s3, s3, s4")
        a("s_lshr_b32 s4, s%d, 2" % S_WV)
        a("s_lshl_b32 s4, s4, 18")
        a("s_add_u32 s3, s3, s4")
        a("s_bfe_u32 s4, s%d, 0x10001" % S_WV)
        a("s_lshl_b32 s4, s4, 15")
        a("s_add_u32 s3, s3, s4")
        a("s_lshl_b32 s4, s%d, 9" % S_RT)
        a("s_add_u32 s3, s3, s4")
        a("s_and_b32 s4, s%d, 1" % S_WV)
        a("s_lshl_b32 s4, s4, 8")
        a("s_add_u32 s60, s3, s4")
        a("s_add_u32 s61, s60, 8192")
        a("s_add_u32 s62, s60, 16384")
        a("s_add_u32 s63, s60, 24576")
        a("v_lshlrev_b32 v13, 16, v9")
        a("v_lshl_add_u32 v13, v8, 3, v13")
        for j in range(4):
            for e in range(2):
                r = EXT + (j * 2 + e) * 2
                a("buffer_load_dwordx2 v[%d:%d], v13, s[24:27], s%d offen offset:%d" % (r, r + 1, 60 + j, e * 128))
        a.label(l2)


def build(cfg):
    ref = open("standalone__adm_resblock__diffusion.s.ref").read()
    head = []
    for l in ref.splitlines():
        if "@launch" in l:
            break
        head.append(l)
    g = Gen(cfg)
    name = g.build()
    out = list(head)
    if cfg.get("aslist"):
        out.append("; @launch kernel=%s grid=(256,1,1) block=(512,1,1) lds=%d" % (name, LDS_BYTES))
    else:
        out.append("; @launch grid=(256,1,1) block=(512,1,1) lds=%d" % LDS_BYTES)
    out.append('.amdgcn_target "amdgcn-amd-amdhsa--gfx950"')
    out.append(".text")
    s = "\n".join(out) + "\n" + g.a.text()
    s += """.section .rodata,"a"
.p2align 6
.amdhsa_kernel %s
  .amdhsa_next_free_vgpr 256
  .amdhsa_next_free_sgpr 102
  .amdhsa_accum_offset 256
  .amdhsa_group_segment_fixed_size 0
  .amdhsa_kernarg_size 96
  .amdhsa_user_sgpr_count 2
  .amdhsa_user_sgpr_kernarg_segment_ptr 1
  .amdhsa_system_sgpr_workgroup_id_x 1
  .amdhsa_float_denorm_mode_32 3
  .amdhsa_float_denorm_mode_16_64 3
.end_amdhsa_kernel
""" % name
    return s


if __name__ == "__main__":
    cfg = {}
    outp = "standalone__adm_resblock__diffusion.s"
    for arg in sys.argv[1:]:
        k, v = arg.split("=", 1)
        if k == "out":
            outp = v
        else:
            cfg[k] = eval(v)
    open(outp, "w").write(build(cfg))
    print("wrote", outp)
```

```python
import struct
import sys

WS_A1 = 0x0000000
WS_A2 = 0x0800000
WS_W1 = 0x1000000
WS_W2 = 0x1800000
WS_SYNC = 0x2000000
WS_EMB = 0x2020000
WS_DBG = 0x3000000
IMG_BYTES = 8 << 20
W_BYTES = 512 * 4608 * 2
UP_BYTES = 32 * 48 * 4096
SY_GA, SY_FB, SY_GC, SY_FD = 0, 0x8000, 0x10000, 0x18000

XPITCH = 4224
VB = 2 * XPITCH
RS = 4 * VB
FS = 1040
L_STAT = 4 * RS
L_BC = L_STAT + 256
L_EMB = L_BC + 64
L_W1 = 0
L_W2 = L_EMB + 256
LDS_BYTES = L_W2 + 2 * 9216

LOG2E = 1.4426950408889634

P_X, P_TEMB, P_G1, P_BE1, P_W1, P_WEMB, P_G2, P_BE2, P_W2, P_OUT, P_DBG, P_WS = [64 + 2 * i for i in range(12)]
S_OCT, S_B, S_RT, S_WV, S_PT = 40, 41, 42, 43, 44
S_TAG, S_PHASE, S_ISA, S_HISA, S_ISA2, S_NL2E, S_ISAO = 88, 89, 90, 91, 92, 93, 94
S_ST = 96
SRD_SY = 20


def f2u(f):
    return struct.unpack("<I", struct.pack("<f", f))[0]


def fx(f):
    return "0x%08x" % f2u(f)


class Asm:
    def __init__(self):
        self.lines = []
        self.uid = 0

    def __call__(self, s):
        for l in s.strip("\n").split("\n"):
            self.lines.append("    " + l.strip())

    def label(self, l):
        self.lines.append(l + ":")

    def raw(self, s):
        self.lines.append(s)

    def nl(self, base):
        self.uid += 1
        return "L_%s_%d" % (base, self.uid)

    def text(self):
        return "\n".join(self.lines) + "\n"


def srd(a, d, ptr, off, nbytes):
    if off:
        a("s_add_u32 s%d, s%d, 0x%x" % (d, ptr, off))
        a("s_addc_u32 s%d, s%d, 0" % (d + 1, ptr + 1))
    else:
        a("s_mov_b32 s%d, s%d" % (d, ptr))
        a("s_mov_b32 s%d, s%d" % (d + 1, ptr + 1))
    a("s_mov_b32 s%d, 0x%x" % (d + 2, nbytes))
    a("s_mov_b32 s%d, 0x20000" % (d + 3))


DPP_STEPS = [
    "quad_perm:[1,0,3,2] row_mask:0xf bank_mask:0xf",
    "quad_perm:[2,3,0,1] row_mask:0xf bank_mask:0xf",
    "row_half_mirror row_mask:0xf bank_mask:0xf",
    "row_mirror row_mask:0xf bank_mask:0xf",
    "row_bcast:15 row_mask:0xa bank_mask:0xf",
    "row_bcast:31 row_mask:0xc bank_mask:0xf",
]


def dpp_reduce(a, regs, nsteps, op="v_add_f32_dpp"):
    n = len(regs)
    a("s_nop 1")
    for st in DPP_STEPS[:nsteps]:
        for r in regs:
            a("%s v%d, v%d, v%d %s" % (op, r, r, r, st))
        if n == 1:
            a("s_nop 1")
        elif n == 2:
            a("s_nop 0")


def unpack(a, dst_lo, dst_hi, src):
    a("v_lshlrev_b32 v%d, 16, v%d" % (dst_lo, src))
    a("v_and_b32 v%d, 0xffff0000, v%d" % (dst_hi, src))


def silu_group(a, vals, tmps, s_isa=None):
    for v, t in zip(vals, tmps):
        a("v_mul_f32 v%d, s%d, v%d" % (t, S_NL2E, v))
    for v, t in zip(vals, tmps):
        a("v_exp_f32 v%d, v%d" % (t, t))
    for v, t in zip(vals, tmps):
        if s_isa is None:
            a("v_add_f32 v%d, 1.0, v%d" % (t, t))
        else:
            a("v_fma_f32 v%d, v%d, s%d, s%d" % (t, t, s_isa, s_isa))
    for v, t in zip(vals, tmps):
        a("v_rcp_f32 v%d, v%d" % (t, t))
    for v, t in zip(vals, tmps):
        a("v_mul_f32 v%d, v%d, v%d" % (v, v, t))


class Gen:
    def __init__(self, cfg):
        self.cfg = cfg
        self.a = Asm()

    def stamp(self, real=True):
        if not self.cfg.get("stamp"):
            return
        a = self.a
        a("%s s[96:97]" % ("s_memrealtime" if real else "s_memtime"))
        a("s_waitcnt lgkmcnt(0)")
        a("s_mov_b32 m0, s98")
        a("s_nop 0")
        a("v_writelane_b32 v15, s96, m0")
        a("s_add_u32 s98, s98, 1")

    def stamp_flush(self):
        if not self.cfg.get("stamp"):
            return
        a = self.a
        a("s_mov_b64 exec, -1")
        srd(a, 8, P_WS, WS_DBG, 0x100000)
        a("s_lshl_b32 s3, s2, 11")
        a("s_lshl_b32 s4, s%d, 8" % S_WV)
        a("s_add_u32 s3, s3, s4")
        a("v_lshlrev_b32 v1, 2, v2")
        a("buffer_store_dword v15, v1, s[8:11], s3 offen")
        if self.cfg.get("stamp") == 2:
            l = a.nl("sd")
            a("s_cmp_lg_u32 s2, 5")
            a("s_cbranch_scc1 %s" % l)
            a("s_cmp_lg_u32 s%d, 0" % S_WV)
            a("s_cbranch_scc1 %s" % l)
            srd(a, 8, P_DBG, 0, 64)
            a("v_readlane_b32 s3, v15, 0")
            a("s_nop 3")
            a("v_subrev_u32 v15, s3, v15")
            a("buffer_store_dword v15, v1, s[8:11], 0 offen offset:4")
            a.label(l)

    def local_stats(self, vals, cpair):
        a = self.a
        for r in range(24, 32):
            a("v_mov_b32 v%d, 0" % r)
        for i, src in enumerate(vals):
            t = 32 + 2 * (i % 2)
            acc = 24 + 4 * (i % 2)
            a("v_pk_add_f32 v[%d:%d], v[%d:%d], %s neg_lo:[0,1] neg_hi:[0,1]" % (t, t + 1, src, src + 1, cpair))
            a("v_pk_add_f32 v[%d:%d], v[%d:%d], v[%d:%d]" % (acc, acc + 1, acc, acc + 1, t, t + 1))
            a("v_pk_fma_f32 v[%d:%d], v[%d:%d], v[%d:%d], v[%d:%d]" %
              (acc + 2, acc + 3, t, t + 1, t, t + 1, acc + 2, acc + 3))
        a("v_pk_add_f32 v[24:25], v[24:25], v[28:29]")
        a("v_pk_add_f32 v[26:27], v[26:27], v[30:31]")
        a("v_add_f32 v24, v24, v25")
        a("v_add_f32 v25, v26, v27")
        dpp_reduce(a, [24, 25], 4)
        a("s_lshl_b32 s3, s%d, 5" % S_WV)
        a("s_add_u32 s3, s3, %d" % L_STAT)
        a("v_lshl_add_u32 v12, v9, 3, s3")
        a("ds_write_b64 v12, v[24:25]")
        a("s_waitcnt lgkmcnt(0)")

    def group_sync(self, csrc, s_own, s_grp):
        a = self.a
        a("v_lshlrev_b32 v12, 4, v8")
        a("v_add_u32 v12, %d, v12" % L_STAT)
        a("ds_read_b128 v[24:27], v12")
        a("v_and_b32 v13, 31, v2")
        a("v_lshlrev_b32 v13, 7, v13")
        a("v_mov_b32 v29, s%d" % S_TAG)
        a("v_mov_b32 v31, s%d" % S_TAG)
        a("v_mov_b32 v14, 0")
        a("s_waitcnt lgkmcnt(0)")
        a("v_add_f32 v24, v24, v26")
        a("v_add_f32 v25, v25, v27")
        dpp_reduce(a, [24, 25], 4)
        a("v_mul_f32 v26, %s, v24" % fx(1.0 / 16384))
        a("v_add_f32 v28, %s, v26" % csrc)
        a("v_fma_f32 v30, -v24, v26, v25")
        a("v_max_f32 v30, 0, v30")
        a("s_mov_b64 exec, 1")
        a("buffer_store_dwordx4 v[28:31], v14, s[%d:%d], s%d offen sc1" % (SRD_SY, SRD_SY + 3, s_own))
        a("s_mov_b64 exec, -1")
        self.stamp()
        if self.cfg.get("presleep", 8):
            a("s_sleep %d" % self.cfg.get("presleep", 8))
        a("s_mov_b32 s5, 0")
        lp, ld = a.nl("poll"), a.nl("polld")
        a.label(lp)
        a("buffer_load_dwordx4 v[32:35], v13, s[%d:%d], s%d offen sc1" % (SRD_SY, SRD_SY + 3, s_grp))
        a("s_waitcnt vmcnt(0)")
        a("v_cmp_ne_u32 vcc, s%d, v33" % S_TAG)
        a("v_cmp_ne_u32 s[6:7], s%d, v35" % S_TAG)
        a("s_or_b64 vcc, vcc, s[6:7]")
        a("s_cbranch_scc0 %s" % ld)
        a("s_add_u32 s5, s5, 1")
        a("s_cmp_lt_u32 s5, 0x10000")
        a("s_cbranch_scc0 %s" % ld)
        a("s_sleep 1")
        a("s_branch %s" % lp)
        a.label(ld)
        self.stamp()
        a("v_readfirstlane_b32 s6, v32")
        a("s_nop 1")
        a("v_subrev_f32 v36, s6, v32")
        a("v_mul_f32 v37, v36, v36")
        dpp_reduce(a, [36, 37, 34], 5)
        a("v_mul_f32 v41, %s, v36" % fx(1.0 / 32))
        a("v_fma_f32 v42, -v36, v41, v37")
        a("v_max_f32 v42, 0, v42")
        a("v_fmac_f32 v34, %s, v42" % fx(16384.0))
        a("v_mov_b32 v43, %s" % fx(1e-5))
        a("v_fmac_f32 v43, %s, v34" % fx(1.0 / 524288))
        a("v_add_f32 v42, s6, v41")
        a("v_rsq_f32 v43, v43")
        a("v_mov_b32 v12, %d" % L_BC)
        a("s_mov_b32 exec_lo, 0x80000000")
        a("s_mov_b32 exec_hi, 0")
        a("ds_write_b64 v12, v[42:43]")
        a("s_mov_b64 exec, -1")
        a("s_waitcnt lgkmcnt(0)")

    def flag_and_poll(self, s_own, v_list):
        a = self.a
        a("v_mov_b32 v24, s%d" % S_TAG)
        a("v_mov_b32 v14, 0")
        a("s_mov_b64 exec, 1")
        a("buffer_store_dword v24, v14, s[%d:%d], s%d offen sc1" % (SRD_SY, SRD_SY + 3, s_own))
        a("s_mov_b64 exec, -1")
        self.stamp()
        if self.cfg.get("presleep", 8):
            a("s_sleep %d" % self.cfg.get("presleep", 8))
        a("s_mov_b32 s5, 0")
        lp, ld = a.nl("poll"), a.nl("polld")
        a.label(lp)
        a("buffer_load_dword v25, v%d, s[%d:%d], 0 offen sc1" % (v_list, SRD_SY, SRD_SY + 3))
        a("s_waitcnt vmcnt(0)")
        a("v_cmp_ne_u32 vcc, s%d, v25" % S_TAG)
        a("s_cmp_eq_u64 vcc, 0")
        a("s_cbranch_scc1 %s" % ld)
        a("s_add_u32 s5, s5, 1")
        a("s_cmp_lt_u32 s5, 0x10000")
        a("s_cbranch_scc0 %s" % ld)
        a("s_sleep 1")
        a("s_branch %s" % lp)
        a.label(ld)
        self.stamp()

    def w_dma(self, ptr, s_ob, s_cc, s_lds):
        a = self.a
        srd(a, 12, ptr, 0, W_BYTES)
        a("v_lshlrev_b32 v10, 3, v9")
        a("v_bfe_u32 v11, v2, 2, 2")
        a("v_add_u32 v10, v10, v11")
        a("v_mul_u32_u24 v10, 9216, v10")
        a("v_and_b32 v11, 3, v2")
        a("v_lshl_add_u32 v10, v11, 4, v10")
        a("s_lshr_b32 s3, s%d, 1" % s_ob)
        a("s_lshl_b32 s3, s3, 5")
        a("s_and_b32 s4, s%d, 1" % s_ob)
        a("s_lshl_b32 s4, s4, 2")
        a("s_add_u32 s3, s3, s4")
        a("s_mul_i32 s3, s3, 9216")
        a("s_mul_i32 s4, s%d, 576" % s_cc)
        a("s_add_u32 s3, s3, s4")
        for i in range(9):
            a("s_add_u32 m0, s%d, %d" % (s_lds, i * 960))
            a("s_nop 0")
            a("buffer_load_dwordx4 v10, s[12:15], s3 offen offset:%d lds" % (i * 64))

    def w_pack_part(self, ws_off, s_ob, s_cp, lds_base, R, s_u=None):
        a = self.a
        T = R + 36
        O = T + 10
        if s_u is None:
            a("s_lshr_b32 s5, s%d, 2" % S_WV)
        else:
            a("s_mov_b32 s5, s%d" % s_u)
        a("s_mul_i32 s3, s5, 9216")
        a("s_add_u32 s3, s3, %d" % lds_base)
        a("v_mul_u32_u24 v%d, 9, v9" % T)
        a("v_lshl_add_u32 v%d, v8, 6, s3" % (T + 1))
        for i in range(4):
            a("v_add_u32 v%d, %d, v%d" % (T + 2, i, T))
            a("v_lshrrev_b32 v%d, 2, v%d" % (T + 3, T + 2))
            a("v_and_b32 v%d, 3, v%d" % (T + 2, T + 2))
            a("v_lshl_add_u32 v%d, v%d, 10, v%d" % (T + 3, T + 3, T + 1))
            a("v_lshl_add_u32 v%d, v%d, 4, v%d" % (10 + i, T + 2, T + 3))
        for i in range(9):
            a("ds_read_b128 v[%d:%d], v%d offset:%d" % (R + 4 * i, R + 4 * i + 3, 10 + i % 4, (i // 4) * 1024))
        srd(a, 12, P_WS, ws_off, UP_BYTES)
        a("s_lshr_b32 s3, s%d, 2" % s_ob)
        a("s_mul_i32 s3, s3, %d" % (4 * 48 * 4096))
        a("s_and_b32 s4, s%d, 3" % s_ob)
        a("s_lshl_b32 s4, s4, 10")
        a("s_add_u32 s3, s3, s4")
        a("s_lshl_b32 s4, s%d, 1" % s_cp)
        a("s_add_u32 s4, s4, s5")
        a("s_mul_i32 s4, s4, %d" % (3 * 4096))
        a("s_add_u32 s3, s3, s4")
        a("s_mov_b32 s6, 0x07060100")
        a("s_mov_b32 s7, 0x05040302")
        a("s_and_b32 s5, s%d, 3" % S_WV)
        ls = [a.nl("wp") for _ in range(4)]
        a("s_waitcnt lgkmcnt(0)")
        a("s_cmp_eq_u32 s5, 2")
        a("s_cbranch_scc1 %s" % ls[1])
        a("s_cmp_eq_u32 s5, 3")
        a("s_cbranch_scc1 %s" % ls[2])
        for dx in range(3):
            a.label(ls[dx])
            for xi, t in ((0, dx), (3, 6 + dx)):
                o = O + 4 * xi
                for k in range(4):
                    e0 = 2 * k * 9 + t
                    e1 = e0 + 9
                    sel = 6 if e0 % 2 == 0 else 7
                    a("v_perm_b32 v%d, v%d, v%d, s%d" % (o + k, R + e1 // 2, R + e0 // 2, sel))
                a("s_add_u32 s4, s3, %d" % ((xi * 48 + dx) * 4096))
                a("buffer_store_dwordx4 v[%d:%d], v6, s[12:15], s4 offen sc1" % (o, o + 3))
            for k in range(4):
                for h in range(2):
                    j = 2 * k + h
                    for dy in range(3):
                        e = j * 9 + dy * 3 + dx
                        d = T + h * 3 + dy
                        if e % 2 == 0:
                            a("v_lshlrev_b32 v%d, 16, v%d" % (d, R + e // 2))
                        else:
                            a("v_and_b32 v%d, 0xffff0000, v%d" % (d, R + e // 2))
                for h in range(2):
                    a("v_add_f32 v%d, v%d, v%d" % (T + h * 3, T + h * 3, T + 2 + h * 3))
                for h in range(2):
                    a("v_add_f32 v%d, v%d, v%d" % (T + 6 + h, T + h * 3, T + 1 + h * 3))
                    a("v_sub_f32 v%d, v%d, v%d" % (T + 8 + h, T + h * 3, T + 1 + h * 3))
                a("v_cvt_pk_bf16_f32 v%d, v%d, v%d" % (O + 4 + k, T + 6, T + 7))
                a("v_cvt_pk_bf16_f32 v%d, v%d, v%d" % (O + 8 + k, T + 8, T + 9))
            for xi in (1, 2):
                a("s_add_u32 s4, s3, %d" % ((xi * 48 + dx) * 4096))
                a("buffer_store_dwordx4 v[%d:%d], v6, s[12:15], s4 offen sc1" % (O + 4 * xi, O + 4 * xi + 3))
            if dx < 2:
                a("s_branch %s" % ls[3])
        a.label(ls[3])
        a("s_nop 1")

    def norm_coeffs(self, G, BT, SC, SH):
        a = self.a
        for j in range(4):
            unpack(a, SC + 2 * j, SC + 2 * j + 1, G + j)
            unpack(a, SH + 2 * j, SH + 2 * j + 1, BT + j)
        for j in range(8):
            a("v_mul_f32 v%d, v17, v%d" % (SC + j, SC + j))
        for j in range(8):
            a("v_fma_f32 v%d, -v%d, v16, v%d" % (SH + j, SC + j, SH + j))

    def build(self):
        a, cfg = self.a, self.cfg
        name = "standalone__adm_resblock__diffusion_kernel"
        a.raw(".globl %s" % name)
        a.raw(".p2align 8")
        a.raw(".type %s,@function" % name)
        a.label(name)
        a("s_cmp_ge_u32 s2, 256")
        a("s_cbranch_scc1 L_end")
        a("s_load_dwordx16 s[64:79], s[0:1], 0")
        a("s_load_dwordx8 s[80:87], s[0:1], 64")
        a("v_lshrrev_b32 v1, 6, v0")
        a("v_and_b32 v2, 63, v0")
        a("v_readfirstlane_b32 s%d, v1" % S_WV)
        a("v_lshlrev_b32 v6, 4, v2")
        a("v_and_b32 v8, 15, v2")
        a("v_lshrrev_b32 v9, 4, v2")
        a("v_mov_b32 v14, 0")
        a("v_and_b32 v3, 3, v0")
        a("v_lshrrev_b32 v4, 2, v0")
        a("v_lshlrev_b32 v5, 16, v3")
        a("v_lshl_add_u32 v5, v4, 3, v5")
        a("s_lshr_b32 s45, s2, 3")
        a("s_and_b32 s46, s2, 7")
        a("s_lshl_b32 s47, s45, 18")
        a("s_lshl_b32 s3, s46, 10")
        a("s_add_u32 s47, s47, s3")
        if cfg.get("stamp"):
            a("s_mov_b32 s98, 0")
            a("v_mov_b32 v15, 0")
        self.stamp()
        a("s_memrealtime s[4:5]")
        a("s_waitcnt lgkmcnt(0)")
        a("s_lshl_b32 s3, s2, 3")
        a("s_add_u32 s3, s3, s%d" % S_WV)
        a("s_cmp_lg_u32 s3, 7")
        a("s_cbranch_scc1 L_nononce")
        srd(a, 32, P_DBG, 0, 256)
        a("s_or_b32 s4, s4, 1")
        a("v_mov_b32 v13, s4")
        a("s_mov_b64 exec, 1")
        a("buffer_store_dword v13, v14, s[32:35], 0 offen sc1")
        a("s_mov_b64 exec, -1")
        a.label("L_nononce")
        srd(a, 8, P_X, 0, IMG_BYTES)
        a("s_mov_b32 s3, s47")
        XR = 48
        for j in range(8):
            a("buffer_load_dwordx2 v[%d:%d], v5, s[8:11], s3 offen" % (XR + 2 * j, XR + 2 * j + 1))
            if j < 7:
                a("s_add_u32 s3, s3, 8192")
        a("s_add_u32 s6, s%d, s47" % P_X)
        a("s_addc_u32 s7, s%d, 0" % (P_X + 1))
        a("s_load_dword s48, s[6:7], 0")
        srd(a, 24, P_G1, 0, 1024)
        srd(a, 28, P_BE1, 0, 1024)
        a("s_and_b32 s3, s45, 15")
        a("s_lshl_b32 s3, s3, 6")
        a("v_lshlrev_b32 v10, 4, v3")
        a("buffer_load_dwordx4 v[64:67], v10, s[24:27], s3 offen")
        a("buffer_load_dwordx4 v[68:71], v10, s[28:31], s3 offen")
        srd(a, SRD_SY, P_WS, WS_SYNC, 0x20000)
        a("s_and_b32 s3, s2, 1")
        a("s_lshl_b32 s3, s3, 2")
        a("s_bfe_u32 s4, s2, 0x20003")
        a("s_add_u32 s%d, s3, s4" % S_OCT)
        a("s_bfe_u32 s3, s2, 0x20001")
        a("s_lshl_b32 s3, s3, 3")
        a("s_lshr_b32 s4, s2, 5")
        a("s_add_u32 s%d, s3, s4" % S_PT)
        a("s_lshr_b32 s%d, s%d, 4" % (S_B, S_PT))
        a("s_and_b32 s%d, s%d, 15" % (S_RT, S_PT))
        a("s_mov_b32 s%d, %s" % (S_NL2E, fx(-LOG2E)))
        a("s_mov_b32 s%d, 0" % S_PHASE)
        a("s_mov_b32 s%d, 0" % S_TAG)
        RR = 112
        if cfg.get("xbar", 1):
            a("s_barrier")
        a("s_lshl_b32 s36, s%d, 2" % S_OCT)
        a("s_lshr_b32 s3, s%d, 3" % S_PT)
        a("s_add_u32 s36, s36, s3")
        a("s_and_b32 s37, s%d, 7" % S_PT)
        a("s_cmp_eq_u32 s%d, 0" % S_WV)
        a("s_cbranch_scc1 L_r0")
        a("s_cmp_eq_u32 s%d, 1" % S_WV)
        a("s_cbranch_scc1 L_r1")
        a("s_cmp_lt_u32 s%d, 4" % S_WV)
        a("s_cbranch_scc1 L_rw")
        a("s_cmp_lt_u32 s%d, 6" % S_WV)
        a("s_cbranch_scc1 L_rnone")
        a("s_and_b32 s3, s2, 31")
        a("s_cmp_lt_u32 s3, 8")
        a("s_cbranch_scc0 L_rnone")
        a("s_lshl_b32 s49, s3, 1")
        a("s_add_u32 s49, s49, s%d" % S_WV)
        a("s_sub_u32 s49, s49, 6")
        a("s_mul_i32 s3, s49, 48")
        a("v_lshrrev_b32 v10, 3, v2")
        a("v_mul_u32_u24 v10, 6, v10")
        a("v_add_u32 v10, s3, v10")
        a("v_lshlrev_b32 v11, 1, v10")
        a("v_lshlrev_b32 v10, 10, v10")
        a("v_and_b32 v12, 7, v2")
        a("v_lshl_add_u32 v10, v12, 4, v10")
        a("v_add_u32 v12, 4096, v10")
        a("s_lshr_b32 s3, s2, 5")
        a("s_lshl_b32 s3, s3, 7")
        srd(a, 12, P_TEMB, 0, 2 * 768 * 2)
        srd(a, 16, P_WEMB, 0, 768 * 512 * 2)
        a("buffer_load_dwordx3 v[%d:%d], v11, s[12:15], 0 offen" % (RR, RR + 2))
        a("buffer_load_dwordx3 v[%d:%d], v11, s[12:15], 0 offen offset:1536" % (RR + 4, RR + 6))
        for i in range(6):
            a("buffer_load_dwordx4 v[%d:%d], v%d, s[16:19], s3 offen offset:%d" %
              (RR + 8 + 4 * i, RR + 11 + 4 * i, 10 if i < 4 else 12, (i % 4) * 1024))
        a("s_waitcnt vmcnt(8)")
        a("s_branch L_rdone")
        a.label("L_rw")
        a("s_sub_u32 s51, s%d, 2" % S_WV)
        a("s_lshl_b32 s50, s46, 1")
        a("s_add_u32 s50, s50, s51")
        a("s_mul_i32 s51, s51, 9216")
        a("s_add_u32 s51, s51, %d" % L_W1)
        if cfg.get("w1late"):
            a("s_waitcnt vmcnt(0)")
        self.w_dma(P_W1, 45, 50, 51)
        a("s_waitcnt vmcnt(9)")
        a("s_branch L_rdone")
        a.label("L_r1")
        srd(a, 12, P_G2, 0, 1024)
        srd(a, 16, P_BE2, 0, 1024)
        a("buffer_load_dwordx4 v[%d:%d], v6, s[24:27], 0 offen" % (RR, RR + 3))
        a("buffer_load_dwordx4 v[%d:%d], v6, s[28:31], 0 offen" % (RR + 4, RR + 7))
        a("buffer_load_dwordx4 v[%d:%d], v6, s[12:15], 0 offen" % (RR + 8, RR + 11))
        a("buffer_load_dwordx4 v[%d:%d], v6, s[16:19], 0 offen" % (RR + 12, RR + 15))
        a("s_waitcnt vmcnt(4)")
        a("s_branch L_rdone")
        a.label("L_r0")
        srd(a, 32, P_DBG, 0, 256)
        a("s_waitcnt vmcnt(%d)" % cfg.get("nwait", 8))
        a("buffer_load_dword v%d, v14, s[32:35], 0 offen sc1" % RR)
        a("s_waitcnt vmcnt(1)")
        a("s_branch L_rdone")
        a.label("L_rnone")
        a("s_waitcnt vmcnt(0)")
        a.label("L_rdone")
        self.stamp()
        XF = 72
        for j in range(8):
            for d in range(2):
                unpack(a, XF + 4 * j + 2 * d, XF + 4 * j + 2 * d + 1, XR + 2 * j + d)
        a("s_waitcnt lgkmcnt(0)")
        a("s_lshl_b32 s48, s48, 16")
        a("s_mov_b32 s49, s48") if False else None
        a("v_mov_b32 v20, s48")
        a("v_mov_b32 v21, s48")
        self.local_stats([XF + 2 * i for i in range(16)], "v[20:21]")
        a("s_barrier")
        a("s_cmp_eq_u32 s%d, 0" % S_WV)
        a("s_cbranch_scc1 L_s0")
        a("s_cmp_eq_u32 s%d, 1" % S_WV)
        a("s_cbranch_scc1 L_s1")
        a("s_cmp_lt_u32 s%d, 4" % S_WV)
        a("s_cbranch_scc1 L_sw1")
        a("s_cmp_lt_u32 s%d, 6" % S_WV)
        a("s_cbranch_scc1 L_sdone")
        a("s_and_b32 s3, s2, 31")
        a("s_cmp_lt_u32 s3, 8")
        a("s_cbranch_scc0 L_sdone")
        E = 148
        a("s_waitcnt vmcnt(6)")
        for b in range(2):
            for d in range(3):
                unpack(a, E + 6 * b + 2 * d, E + 6 * b + 2 * d + 1, RR + 4 * b + d)
        silu_group(a, list(range(E, E + 12)), list(range(E + 12, E + 24)))
        EA = E + 24
        a("s_waitcnt vmcnt(0)")
        for i in range(6):
            for k in range(4):
                unpack(a, E + 12, E + 13, RR + 8 + 4 * i + k)
                for h in range(2):
                    j = 2 * k + h
                    for b in range(2):
                        if i == 0:
                            a("v_mul_f32 v%d, v%d, v%d" % (EA + 8 * b + j, E + 12 + h, E + 6 * b + i))
                        else:
                            a("v_fmac_f32 v%d, v%d, v%d" % (EA + 8 * b + j, E + 12 + h, E + 6 * b + i))
        a("s_nop 1")
        for j in range(8):
            a("v_permlane32_swap_b32 v%d, v%d" % (EA + j, EA + 8 + j))
        for j in range(8):
            a("v_add_f32 v%d, v%d, v%d" % (EA + j, EA + j, EA + 8 + j))
        a("s_nop 1")
        for j in range(4):
            a("v_permlane16_swap_b32 v%d, v%d" % (EA + j, EA + 4 + j))
        for j in range(4):
            a("v_add_f32 v%d, v%d, v%d" % (EA + j, EA + j, EA + 4 + j))
        a("s_nop 1")
        for j in range(4):
            a("v_add_f32_dpp v%d, v%d, v%d row_ror:8 row_mask:0xf bank_mask:0xf" % (EA + j, EA + j, EA + j))
        srd(a, 12, P_WS, WS_EMB, 65536)
        a("v_lshrrev_b32 v10, 5, v2")
        a("v_lshlrev_b32 v10, 11, v10")
        a("v_and_b32 v11, 7, v2")
        a("v_lshl_add_u32 v10, v11, 5, v10")
        a("v_and_b32 v11, 16, v2")
        a("v_add_u32 v10, v10, v11")
        a("s_lshl_b32 s3, s49, 12")
        a("s_lshr_b32 s4, s2, 5")
        a("s_lshl_b32 s4, s4, 8")
        a("s_add_u32 s3, s3, s4")
        a("buffer_store_dwordx4 v[%d:%d], v10, s[12:15], s3 offen sc1" % (EA, EA + 3))
        a("s_branch L_sdone")
        a.label("L_sw1")
        a("s_waitcnt vmcnt(0)")
        if cfg.get("u1early"):
            a("s_sub_u32 s38, s%d, 2" % S_WV)
            a("s_mov_b32 s39, s%d" % S_WV)
            a("s_mov_b32 s%d, 1" % S_WV)
            a.label("L_u1e")
            self.w_pack_part(WS_W1, 45, 46, L_W1, 112, 38)
            a("s_add_u32 s%d, s%d, 1" % (S_WV, S_WV))
            a("s_cmp_lt_u32 s%d, 4" % S_WV)
            a("s_cbranch_scc1 L_u1e")
            a("s_mov_b32 s%d, s39" % S_WV)
        a("s_branch L_sdone")
        a.label("L_s1")
        a("s_waitcnt vmcnt(0)")
        a("s_mov_b32 s3, 0x7fff7fff")
        for arr in range(4):
            r = RR + 4 * arr
            for k in range(4):
                a("v_and_b32 v%d, s3, v%d" % (r + k, r + k))
            a("v_pk_max_u16 v%d, v%d, v%d" % (r, r, r + 1))
            a("v_pk_max_u16 v%d, v%d, v%d" % (r + 2, r + 2, r + 3))
            a("v_pk_max_u16 v%d, v%d, v%d" % (r, r, r + 2))
            a("v_lshrrev_b32 v%d, 16, v%d" % (r + 1, r))
            a("v_and_b32 v%d, 0xffff, v%d" % (r, r))
            a("v_max_u32 v%d, v%d, v%d" % (r, r, r + 1))
        dpp_reduce(a, [RR, RR + 4, RR + 8, RR + 12], 6, "v_max_u32_dpp")
        for k in range(2):
            g, bt = RR + 8 * k, RR + 8 * k + 4
            a("v_lshrrev_b32 v%d, 7, v%d" % (g, g))
            a("v_lshrrev_b32 v%d, 7, v%d" % (bt, bt))
            a("v_add_u32 v%d, 10, v%d" % (g, g))
            a("v_max_u32 v%d, v%d, v%d" % (g, g, bt))
            a("v_max_u32 v%d, 14, v%d" % (g, g))
            a("v_min_u32 v%d, 0x10a, v%d" % (g, g))
            a("v_subrev_u32 v%d, 13, v%d" % (g, g))
            a("v_lshlrev_b32 v%d, 23, v%d" % (RR + 16 + k, g))
        a("v_mov_b32 v12, %d" % (L_BC + 8))
        a("s_mov_b32 exec_lo, 0")
        a("s_mov_b32 exec_hi, 0x80000000")
        a("ds_write_b64 v12, v[%d:%d]" % (RR + 16, RR + 17))
        a("s_mov_b64 exec, -1")
        a("s_waitcnt lgkmcnt(0)")
        a("s_branch L_sdone")
        a.label("L_s0")
        a("s_mov_b32 s5, 0")
        a.label("L_nonce")
        a("s_waitcnt vmcnt(0)")
        a("v_readfirstlane_b32 s%d, v%d" % (S_TAG, RR))
        a("s_nop 3")
        a("s_cmp_lg_u32 s%d, 0" % S_TAG)
        a("s_cbranch_scc1 L_nonced")
        a("s_add_u32 s5, s5, 1")
        a("s_cmp_lt_u32 s5, 0x10000")
        a("s_cbranch_scc0 L_nonced")
        a("s_sleep 4")
        srd(a, 32, P_DBG, 0, 256)
        a("buffer_load_dword v%d, v14, s[32:35], 0 offen sc1" % RR)
        a("s_branch L_nonce")
        a.label("L_nonced")
        a("v_mov_b32 v12, %d" % (L_BC + 16))
        a("v_mov_b32 v13, s%d" % S_TAG)
        a("ds_write_b32 v12, v13")
        a("s_lshl_b32 s50, s2, 7")
        a("s_and_b32 s51, s50, 0x7000")
        self.group_sync("v20", 50, 51)
        a.label("L_sdone")
        a("s_barrier")
        a("v_mov_b32 v12, %d" % L_BC)
        a("ds_read_b128 v[16:19], v12")
        a("ds_read_b32 v22, v12 offset:16")
        srd(a, 8, P_WS, WS_A1, IMG_BYTES)
        a("v_and_b32 v10, 1, v4")
        a("v_lshlrev_b32 v10, 1, v10")
        a("v_xor_b32 v10, v10, v3")
        a("v_lshlrev_b32 v10, 4, v10")
        a("v_lshl_add_u32 v10, v4, 8, v10")
        a("v_xor_b32 v11, 32, v10")
        a("s_lshl_b32 s47, s45, 18")
        a("s_lshl_b32 s3, s46, 15")
        a("s_add_u32 s47, s47, s3")
        a("s_waitcnt lgkmcnt(0)")
        a("v_readfirstlane_b32 s%d, v18" % S_ISA)
        a("v_readfirstlane_b32 s%d, v19" % S_ISA2)
        a("v_readfirstlane_b32 s%d, v22" % S_TAG)
        self.norm_coeffs(64, 68, 24, 32)
        for i in range(4):
            vals = [XF + 4 * j + i for j in range(8)]
            tm = list(range(40 + 8 * (i % 2), 48 + 8 * (i % 2)))
            for j in range(8):
                a("v_fma_f32 v%d, v%d, v%d, v%d" % (vals[j], vals[j], 24 + j, 32 + j))
            silu_group(a, vals, tm, S_ISA)
            o = 56 + 4 * i
            for k in range(4):
                a("v_cvt_pk_f16_f32 v%d, v%d, v%d" % (o + k, vals[2 * k], vals[2 * k + 1]))
            a("buffer_store_dwordx4 v[%d:%d], v%d, s[8:11], s47 offen offset:%d sc1" % (o, o + 3, 11 if i == 3 else 10, i * 64))
        if not cfg.get("u1early"):
            a("s_and_b32 s3, s%d, 3" % S_WV)
            a("s_cmp_eq_u32 s3, 0")
            a("s_cbranch_scc1 L_nop1")
            self.w_pack_part(WS_W1, 45, 46, L_W1, 112)
            a.label("L_nop1")
        a("s_lshl_b32 s3, s%d, 2" % S_RT)
        a("s_add_u32 s4, s3, 4")
        a("s_min_u32 s4, s4, 63")
        a("s_lshr_b32 s4, s4, 3")
        a("s_max_u32 s3, s3, 1")
        a("s_sub_u32 s3, s3, 1")
        a("s_lshr_b32 s3, s3, 3")
        a("v_mov_b32 v12, s3")
        a("v_mov_b32 v13, s4")
        a("v_cmp_gt_u32 vcc, 16, v2")
        a("s_lshl_b32 s3, s%d, 7" % S_B)
        a("s_lshl_b32 s4, s%d, 5" % S_OCT)
        a("v_cndmask_b32 v12, v13, v12, vcc")
        a("v_lshl_add_u32 v12, v8, 3, v12")
        a("v_add_u32 v12, s3, v12")
        a("s_sub_u32 s4, s4, 32")
        a("v_add_u32 v13, s4, v2")
        a("v_cmp_gt_u32 vcc, 32, v2")
        a("s_lshl_b32 s50, s2, 7")
        a("s_add_u32 s50, s50, %d" % SY_FB)
        a("v_cndmask_b32 v12, v13, v12, vcc")
        a("v_lshlrev_b32 v12, 7, v12")
        a("v_add_u32 v23, %d, v12" % SY_FB)

        a.label("L_conv")
        VV = [3, 4, 5]
        VFR, USET, ACC, EXT = 16, 48, 112, 240
        a("s_waitcnt vmcnt(0)")
        self.stamp()
        a("s_barrier")
        a("s_sub_u32 s%d, s%d, 0x800000" % (S_HISA, S_ISA))
        a("s_lshl_b32 s3, s%d, 23" % S_PHASE)
        a("s_cmp_ge_u32 s%d, 4" % S_WV)
        a("s_cbranch_scc1 L_prod")

        def ureg(st, blk):
            return USET + 16 * st + 4 * blk

        def vreg_(i):
            return VFR + 4 * i

        def areg(blk, i):
            return ACC + 4 * (blk * 8 + i)

        a("s_add_u32 s3, s3, 0x%x" % WS_W1)
        a("s_add_u32 s16, s%d, s3" % P_WS)
        a("s_addc_u32 s17, s%d, 0" % (P_WS + 1))
        a("s_mov_b32 s18, 0x%x" % UP_BYTES)
        a("s_mov_b32 s19, 0x20000")
        a("s_lshl_b32 s3, s%d, 2" % S_OCT)
        a("s_add_u32 s3, s3, s%d" % S_WV)
        a("s_mul_i32 s52, s3, %d" % (48 * 4096))
        a("s_mul_i32 s3, s%d, %d" % (S_WV, RS))
        for dx in range(3):
            a("v_add_u32 v11, %d, v8" % dx)
            a("v_bfe_u32 v12, v11, 2, 1")
            a("v_lshlrev_b32 v12, 1, v12")
            a("v_xor_b32 v12, v12, v9")
            a("v_lshlrev_b32 v12, 4, v12")
            a("v_lshl_add_u32 v12, v11, 6, v12")
            a("v_add_u32 v%d, s3, v12" % VV[dx])
        a("v_lshrrev_b32 v11, 3, v2")
        a("v_mul_u32_u24 v11, %d, v11" % XPITCH)
        a("v_bfe_u32 v12, v2, 2, 1")
        a("v_mul_u32_u24 v12, %d, v12" % (65 * 64))
        a("v_add_u32 v11, v11, v12")
        a("v_and_b32 v12, 3, v2")
        a("v_lshl_add_u32 v11, v12, 4, v11")
        a("v_add_u32 v11, s3, v11")
        for r in range(ACC, ACC + 128):
            a("v_mov_b32 v%d, 0" % r)
        a("ds_write_b128 v11, v[%d:%d]" % (ACC, ACC + 3))
        a("v_add_u32 v7, s3, v6")
        a("s_waitcnt lgkmcnt(0)")
        a("s_barrier")

        def uload(st, blk):
            r = ureg(st, blk)
            return "buffer_load_dwordx4 v[%d:%d], v6, s[16:19], s52 offen offset:%d sc1" % (r, r + 3, blk * 1024)

        def vread(i, buf, dx):
            r = vreg_(i)
            return "ds_read_b128 v[%d:%d], v%d offset:%d" % (r, r + 3, VV[dx], buf * VB + (i // 4) * XPITCH + (i % 4) * 1024)

        def mfma(st, blk, i):
            d, u, x = areg(blk, i), ureg(st, blk), vreg_(i)
            return "v_mfma_f32_16x16x32_bf16 v[%d:%d], v[%d:%d], v[%d:%d], v[%d:%d]" % (d, d + 3, u, u + 3, x, x + 3, d, d + 3)

        for st in range(3):
            for blk in range(4):
                a(uload(st, blk))
            a("s_add_u32 s52, s52, 4096")
        a("s_barrier")
        self.stamp()
        for i in range(7):
            a(vread(i, 0, 0))
        a("s_mov_b32 s53, 0")
        a.raw(".p2align 6")
        a.label("L_loop")
        upos = cfg.get("upos", (0, 2, 4, 6))
        for s in range(12):
            st = s % 4
            ns = (s + 1) % 12
            for i in range(8):
                a("s_waitcnt vmcnt(8) lgkmcnt(6)" if i == 0 else "s_waitcnt lgkmcnt(6)")
                for blk in range(4):
                    a(mfma(st, blk, i))
                    if blk == 0:
                        a(vread(7, s // 3, s % 3) if i == 0 else vread(i - 1, ns // 3, ns % 3))
                    if blk == 2 and i == 0 and s % 3 == 2:
                        if s == 11:
                            a("s_cbranch_scc1 L_nobar")
                        a("s_barrier")
                        if s == 11:
                            a.label("L_nobar")
                    if blk == 1 and i in upos:
                        a(uload((s + 3) % 4, upos.index(i)))
                    if blk == 2 and i == 7:
                        a("s_add_u32 s52, s52, 4096")
                    if blk == 2 and i == 7 and s == 10:
                        a("s_cmp_eq_u32 s53, 3")
        a("s_add_u32 s53, s53, 1")
        a("s_cmp_lt_u32 s53, 4")
        a("s_cbranch_scc1 L_loop")
        self.stamp()
        a("s_waitcnt lgkmcnt(0)")
        a("s_nop 3")
        for i in range(8):
            for blk in range(4):
                r = areg(blk, i)
                a("ds_write_b128 v7, v[%d:%d] offset:%d" % (r, r + 3, (blk * 8 + i) * FS))
        a("s_waitcnt vmcnt(0)")
        self.epi_loads()
        a("s_waitcnt lgkmcnt(0)")
        a("s_branch L_epi")

        a.label("L_prod")
        D = 2
        RAW, TMP, OUT = 24, 72, 88
        a("s_add_u32 s16, s%d, s3" % P_WS)
        a("s_addc_u32 s17, s%d, 0" % (P_WS + 1))
        a("s_mov_b32 s18, 0x%x" % IMG_BYTES)
        a("s_mov_b32 s19, 0x20000")
        a("s_sub_u32 s4, s%d, 4" % S_WV)
        a("s_lshl_b32 s4, s4, 10")
        a("v_add_u32 v3, s4, v6")
        a("v_add_u32 v4, 64, v3")
        a("v_add_u32 v5, %d, v4" % (2 * RS))
        a("s_lshl_b32 s3, s%d, 10" % S_B)
        a("s_lshl_b32 s4, s%d, 2" % S_RT)
        a("s_add_u32 s3, s3, s4")
        a("s_lshl_b32 s3, s3, 12")
        for r in range(6):
            a("s_add_u32 s%d, s3, 0x%x" % (52 + r, ((r - 1) * 4096) & 0xFFFFFFFF))
        a("s_cmp_eq_u32 s%d, 0" % S_RT)
        a("s_cselect_b32 s52, 0x40000000, s52")
        a("s_cmp_eq_u32 s%d, 15" % S_RT)
        a("s_cselect_b32 s57, 0x40000000, s57")
        a("s_cmp_lg_u32 s%d, 4" % S_WV)
        a("s_cbranch_scc1 L_nopoll")
        self.flag_and_poll(50, 23)
        a.label("L_nopoll")
        a("s_barrier")

        def rawload(st):
            for r in range(6):
                d = RAW + 24 * st + 4 * r
                a("buffer_load_dwordx4 v[%d:%d], v3, s[16:19], s%d offen sc1" % (d, d + 3, 52 + r))
            a("v_add_u32 v3, 0x40000, v3")

        COMB = [(0, 2, -1), (1, 2, 1), (2, 1, -1), (1, 3, -1)]

        def produce(st, buf):
            if buf in (1, 2):
                l1, l2 = a.nl("pw"), a.nl("pw")
                a("s_cmp_lg_u32 s38, 0")
                a("s_cbranch_scc1 %s" % l1)
                a("s_waitcnt vmcnt(6)")
                a.label(l1)
                a("s_waitcnt vmcnt(15)")
            else:
                a("s_waitcnt vmcnt(6)")
            for rp in range(2):
                for xi in range(4):
                    ra, rb, sg = COMB[xi]
                    ra, rb = RAW + 24 * st + 4 * (ra + 2 * rp), RAW + 24 * st + 4 * (rb + 2 * rp)
                    o = OUT + 4 * (rp * 4 + xi)
                    t = TMP + 8 * (xi % 2)
                    for d in range(4):
                        for h in range(2):
                            a("v_fma_mix_f32 v%d, v%d, 1.0, %sv%d op_sel:[%d,0,%d] op_sel_hi:[1,0,1]" %
                              (t + 2 * d + h, ra + d, "-" if sg < 0 else "", rb + d, h, h))
                    for d in range(4):
                        a("v_cvt_pk_bf16_f32 v%d, v%d, v%d" % (o + d, t + 2 * d, t + 2 * d + 1))
                    a("ds_write_b128 v%d, v[%d:%d] offset:%d" %
                      (4 if xi < 2 else 5, o, o + 3, (xi & 1) * RS + buf * VB + rp * XPITCH))
            rawload(st)
            if buf == 0:
                l1 = a.nl("pd")
                a("s_mov_b32 s38, 0")
                a("s_cmp_lg_u32 s58, s39")
                a("s_cbranch_scc1 %s" % l1)
                a("s_mov_b32 s38, 1")
                a("s_sub_u32 s51, s%d, 4" % S_WV)
                a("s_lshl_b32 s50, s37, 1")
                a("s_add_u32 s50, s50, s51")
                a("s_mul_i32 s51, s51, 9216")
                a("s_add_u32 s51, s51, %d" % L_W2)
                self.w_dma(P_W2, 36, 50, 51)
                a.label(l1)
            a("s_waitcnt lgkmcnt(0)")

        for st in range(D):
            rawload(st)
        a("s_mov_b32 s58, 0")
        a("s_mov_b32 s39, 99")
        a("s_lshl_b32 s3, s%d, 3" % S_PHASE)
        a("s_add_u32 s3, s3, s%d" % S_WV)
        a("s_cmp_lt_u32 s3, 6")
        a("s_cselect_b32 s39, 1, s39")
        a.label("L_ploop")
        for j in range(4):
            produce(j % D, j)
            a("s_barrier")
        a("s_add_u32 s58, s58, 1")
        a("s_cmp_lt_u32 s58, 4")
        a("s_cbranch_scc1 L_ploop")
        a("s_waitcnt vmcnt(0)")
        a("s_cmp_lg_u32 s%d, 0" % S_PHASE)
        a("s_cbranch_scc1 L_pextra_done")
        a("s_cmp_eq_u32 s%d, 4" % S_WV)
        a("s_cbranch_scc1 L_pemb")
        a("s_mov_b32 s38, 0")
        a.label("L_pu2")
        self.w_pack_part(WS_W2, 36, 37, L_W2, 24, 38)
        a("s_add_u32 s38, s38, 1")
        a("s_cmp_lt_u32 s38, 2")
        a("s_cbranch_scc1 L_pu2")
        a("s_branch L_pextra_done")
        a.label("L_pemb")
        srd(a, 12, P_WS, WS_EMB, 65536)
        a("s_lshl_b32 s3, s%d, 11" % S_B)
        a("s_lshl_b32 s4, s%d, 8" % S_OCT)
        a("s_add_u32 s3, s3, s4")
        a("v_lshlrev_b32 v10, 2, v2")
        for er in range(16):
            a("buffer_load_dword v%d, v10, s[12:15], s3 offen sc1" % (24 + er))
            if er < 15:
                a("s_add_u32 s3, s3, 4096")
        a("s_waitcnt vmcnt(0)")
        for k in range(8):
            a("v_add_f32 v%d, v%d, v%d" % (24 + k, 24 + k, 32 + k))
        for k in range(4):
            a("v_add_f32 v%d, v%d, v%d" % (24 + k, 24 + k, 28 + k))
        a("v_add_f32 v24, v24, v26")
        a("v_add_f32 v25, v25, v27")
        a("v_add_f32 v24, v24, v25")
        a("v_add_u32 v10, %d, v10" % L_EMB)
        a("ds_write_b32 v10, v24")
        a("s_waitcnt lgkmcnt(0)")
        a.label("L_pextra_done")
        self.epi_loads()

        a.label("L_epi")
        a("s_barrier")
        self.stamp()
        M, Y = 112, 176
        a("s_cmp_lg_u32 s%d, 0" % S_PHASE)
        a("s_cbranch_scc1 L_epi2")
        a("s_and_b32 s59, s%d, 1" % S_WV)
        a("s_lshr_b32 s3, s%d, 1" % S_WV)
        a("s_lshl_b32 s4, s59, 4")
        a("s_lshl_b32 s3, s3, 1")
        a("s_add_u32 s4, s4, s3")
        a("s_mul_i32 s4, s4, %d" % FS)
        a("v_add_u32 v10, s4, v6")
        a("v_add_u32 v11, %d, v10" % (2 * RS))
        a("v_mov_b32 v12, 0")
        a("ds_read_b32 v16, v12")
        a("ds_read_b32 v17, v12 offset:%d" % RS)
        a("v_mov_b32 v12, %d" % (2 * RS))
        a("ds_read_b32 v18, v12")
        a("s_lshl_b32 s3, s59, 7")
        a("s_add_u32 s3, s3, %d" % L_EMB)
        a("v_lshl_add_u32 v12, v9, 5, s3")
        a("ds_read_b128 v[48:51], v12")
        a("ds_read_b128 v[52:55], v12 offset:16")
        for u in range(2):
            for xi in range(4):
                for h in range(2):
                    r = M + 4 * ((u * 4 + xi) * 2 + h)
                    a("ds_read_b128 v[%d:%d], v%d offset:%d" %
                      (r, r + 3, 10 if xi < 2 else 11, (xi & 1) * RS + (h * 8 + u) * FS))
        a("s_waitcnt lgkmcnt(8)")
        a("v_add_f32 v17, v17, v18")
        a("v_fma_f32 v20, v17, 0.5, v16")
        a("v_mul_f32 v20, s%d, v20" % S_ISA)
        a("v_mov_b32 v21, v20")
        for u in range(2):
            if u == 1:
                a("s_waitcnt lgkmcnt(0)")
            for j in range(8):
                m = [M + 4 * ((u * 4 + xi) * 2 + j // 4) + j % 4 for xi in range(4)]
                ye, yo = Y + u * 16 + j, Y + u * 16 + 8 + j
                a("v_add_f32 v%d, v%d, v%d" % (ye, m[1], m[2]))
                a("v_sub_f32 v%d, v%d, v%d" % (yo, m[1], m[2]))
                a("v_fma_f32 v%d, v%d, s%d, v%d" % (m[0], m[0], S_ISA, 48 + j))
                a("v_fma_f32 v%d, -v%d, s%d, v%d" % (m[3], m[3], S_ISA, 48 + j))
                a("v_fma_f32 v%d, v%d, s%d, v%d" % (ye, ye, S_HISA, m[0]))
                a("v_fma_f32 v%d, v%d, s%d, v%d" % (yo, yo, S_HISA, m[3]))
        self.local_stats([Y + 2 * i for i in range(16)], "v[20:21]")
        a("s_waitcnt vmcnt(0)")
        a("s_barrier")
        a("s_cmp_lg_u32 s%d, 0" % S_WV)
        a("s_cbranch_scc1 L_edone")
        a.label("L_e0")
        a("s_lshl_b32 s51, s%d, 2" % S_B)
        a("s_lshr_b32 s3, s%d, 1" % S_OCT)
        a("s_add_u32 s51, s51, s3")
        a("s_lshl_b32 s51, s51, 12")
        a("s_add_u32 s51, s51, %d" % SY_GC)
        a("s_and_b32 s50, s%d, 1" % S_OCT)
        a("s_lshl_b32 s50, s50, 4")
        a("s_add_u32 s50, s50, s%d" % S_RT)
        a("s_lshl_b32 s50, s50, 7")
        a("s_add_u32 s50, s50, s51")
        self.group_sync("v20", 50, 51)
        a.label("L_edone")
        srd(a, 8, P_WS, WS_A2, IMG_BYTES)
        a("s_lshl_b32 s56, s%d, 4" % S_B)
        a("s_lshl_b32 s57, s%d, 1" % S_OCT)
        a("s_add_u32 s56, s56, s57")
        a("s_add_u32 s56, s56, s59")
        a("s_lshl_b32 s56, s56, 18")
        a("s_lshl_b32 s57, s%d, 14" % S_RT)
        a("s_add_u32 s56, s56, s57")
        a("s_lshr_b32 s57, s%d, 2" % S_WV)
        a("s_lshl_b32 s57, s57, 13")
        a("s_add_u32 s56, s56, s57")
        a("s_bfe_u32 s57, s%d, 0x10001" % S_WV)
        a("s_lshl_b32 s57, s57, 11")
        a("s_add_u32 s56, s56, s57")
        a("s_add_u32 s57, s56, 4096")
        a("v_add_u32 v11, 1, v8")
        a("v_bfe_u32 v11, v11, 2, 1")
        a("v_lshlrev_b32 v11, 1, v11")
        a("v_xor_b32 v11, v11, v9")
        a("v_lshlrev_b32 v11, 4, v11")
        a("v_lshl_add_u32 v11, v8, 6, v11")
        a("v_lshrrev_b32 v12, 3, v2")
        a("v_min_u32 v12, 2, v12")
        a("v_add_u32 v12, s%d, v12" % S_RT)
        a("v_max_u32 v12, 1, v12")
        a("v_min_u32 v12, 16, v12")
        a("s_lshl_b32 s3, s%d, 4" % S_B)
        a("s_sub_u32 s3, s3, 1")
        a("v_add_u32 v12, s3, v12")
        a("v_and_b32 v13, 7, v2")
        a("v_lshl_add_u32 v12, v12, 3, v13")
        a("v_subrev_u32 v13, 32, v2")
        a("v_lshlrev_b32 v13, 3, v13")
        a("v_add_u32 v13, s%d, v13" % S_OCT)
        a("v_cmp_gt_u32 vcc, 32, v2")
        a("s_lshl_b32 s50, s%d, 3" % S_PT)
        a("s_add_u32 s50, s50, s%d" % S_OCT)
        a("v_cndmask_b32 v12, v13, v12, vcc")
        a("v_lshlrev_b32 v12, 7, v12")
        a("v_add_u32 v23, %d, v12" % SY_FD)
        a("s_lshl_b32 s50, s50, 7")
        a("s_add_u32 s50, s50, %d" % SY_FD)
        a("v_mov_b32 v12, %d" % L_BC)
        a("s_barrier")
        a("ds_read_b64 v[16:17], v12")
        a("s_mov_b32 s%d, s%d" % (S_ISA, S_ISA2))
        a("s_mov_b32 s%d, 1" % S_PHASE)
        a("s_waitcnt lgkmcnt(0)")
        self.norm_coeffs(EXT + 8, EXT + 12, 24, 32)
        gi = 0
        for u in range(2):
            for e in range(2):
                vals = [Y + u * 16 + e * 8 + j for j in range(8)]
                tm = list(range(40 + 8 * (gi % 2), 48 + 8 * (gi % 2)))
                for j in range(8):
                    a("v_fma_f32 v%d, v%d, v%d, v%d" % (vals[j], vals[j], 24 + j, 32 + j))
                silu_group(a, vals, tm, S_ISA)
                o = 56 + 4 * gi
                for k in range(4):
                    a("v_cvt_pk_f16_f32 v%d, v%d, v%d" % (o + k, vals[2 * k], vals[2 * k + 1]))
                a("buffer_store_dwordx4 v[%d:%d], v11, s[8:11], s%d offen offset:%d sc1" % (o, o + 3, 56 + e, u * 1024))
                gi += 1
        a("s_branch L_conv")

        a.label("L_epi2")
        a("s_lshl_b32 s3, s%d, 2" % S_WV)
        a("s_mul_i32 s3, s3, %d" % FS)
        a("v_lshrrev_b32 v10, 2, v8")
        a("v_mul_u32_u24 v10, %d, v10" % FS)
        a("v_and_b32 v11, 3, v8")
        a("v_lshl_add_u32 v10, v11, 6, v10")
        a("v_lshl_add_u32 v10, v9, 8, v10")
        a("v_add_u32 v10, s3, v10")
        a("v_add_u32 v11, %d, v10" % (2 * RS))
        for k in range(4):
            for xi in range(4):
                r = M + 4 * (k * 4 + xi)
                a("ds_read_b128 v[%d:%d], v%d offset:%d" % (r, r + 3, 10 if xi < 2 else 11, (xi & 1) * RS + k * 16))
        a("s_waitcnt vmcnt(0)")
        for je in range(8):
            for d in range(2):
                unpack(a, 48 + je * 4 + 2 * d, 49 + je * 4 + 2 * d, EXT + je * 2 + d)
        for k in range(4):
            a("s_waitcnt lgkmcnt(%d)" % (12 - 4 * k))
            for j in range(4):
                m = [M + 4 * (k * 4 + xi) + j for xi in range(4)]
                ye, yo = Y + (j * 2) * 4 + k, Y + (j * 2 + 1) * 4 + k
                xe, xo = 48 + (j * 2) * 4 + k, 48 + (j * 2 + 1) * 4 + k
                a("v_add_f32 v%d, v%d, v%d" % (ye, m[1], m[2]))
                a("v_sub_f32 v%d, v%d, v%d" % (yo, m[1], m[2]))
                a("v_fma_f32 v%d, v%d, s%d, v%d" % (m[0], m[0], S_ISA, xe))
                a("v_fma_f32 v%d, -v%d, s%d, v%d" % (m[3], m[3], S_ISA, xo))
                a("v_fma_f32 v%d, v%d, s%d, v%d" % (ye, ye, S_HISA, m[0]))
                a("v_fma_f32 v%d, v%d, s%d, v%d" % (yo, yo, S_HISA, m[3]))
        srd(a, 8, P_OUT, 0, IMG_BYTES)
        for j in range(4):
            for e in range(2):
                je = j * 2 + e
                o = 16 + 2 * je
                a("v_cvt_pk_bf16_f32 v%d, v%d, v%d" % (o, Y + je * 4, Y + je * 4 + 1))
                a("v_cvt_pk_bf16_f32 v%d, v%d, v%d" % (o + 1, Y + je * 4 + 2, Y + je * 4 + 3))
                a("buffer_store_dwordx2 v[%d:%d], v13, s[8:11], s%d offen offset:%d" % (o, o + 1, 60 + j, e * 128))
        if cfg.get("stamp"):
            a("s_waitcnt vmcnt(0)")
        self.stamp()
        self.stamp_flush()
        a.label("L_end")
        a("s_endpgm")
        return name

    def epi_loads(self):
        a = self.a
        EXT = 240
        l1, l2 = a.nl("el"), a.nl("eld")
        a("s_cmp_lg_u32 s%d, 0" % S_PHASE)
        a("s_cbranch_scc1 %s" % l1)
        srd(a, 24, P_G2, 0, 1024)
        srd(a, 28, P_BE2, 0, 1024)
        a("s_and_b32 s4, s%d, 1" % S_WV)
        a("s_lshl_b32 s4, s4, 6")
        a("s_lshl_b32 s3, s%d, 7" % S_OCT)
        a("s_add_u32 s3, s3, s4")
        a("v_lshlrev_b32 v13, 4, v9")
        a("buffer_load_dwordx4 v[%d:%d], v13, s[24:27], s3 offen" % (EXT + 8, EXT + 11))
        a("buffer_load_dwordx4 v[%d:%d], v13, s[28:31], s3 offen" % (EXT + 12, EXT + 15))
        a("s_branch %s" % l2)
        a.label(l1)
        srd(a, 24, P_X, 0, IMG_BYTES)
        a("s_lshl_b32 s3, s%d, 22" % S_B)
        a("s_lshl_b32 s4, s%d, 19" % S_OCT)
        a("s_add_u32 s3, s3, s4")
        a("s_lshr_b32 s4, s%d, 2" % S_WV)
        a("s_lshl_b32 s4, s4, 18")
        a("s_add_u32 s3, s3, s4")
        a("s_bfe_u32 s4, s%d, 0x10001" % S_WV)
        a("s_lshl_b32 s4, s4, 15")
        a("s_add_u32 s3, s3, s4")
        a("s_lshl_b32 s4, s%d, 9" % S_RT)
        a("s_add_u32 s3, s3, s4")
        a("s_and_b32 s4, s%d, 1" % S_WV)
        a("s_lshl_b32 s4, s4, 8")
        a("s_add_u32 s60, s3, s4")
        a("s_add_u32 s61, s60, 8192")
        a("s_add_u32 s62, s60, 16384")
        a("s_add_u32 s63, s60, 24576")
        a("v_lshlrev_b32 v13, 16, v9")
        a("v_lshl_add_u32 v13, v8, 3, v13")
        for j in range(4):
            for e in range(2):
                r = EXT + (j * 2 + e) * 2
                a("buffer_load_dwordx2 v[%d:%d], v13, s[24:27], s%d offen offset:%d" % (r, r + 1, 60 + j, e * 128))
        a.label(l2)


def build(cfg):
    ref = open("standalone__adm_resblock__diffusion.s.ref").read()
    head = []
    for l in ref.splitlines():
        if "@launch" in l:
            break
        head.append(l)
    g = Gen(cfg)
    name = g.build()
    out = list(head)
    if cfg.get("aslist"):
        out.append("; @launch kernel=%s grid=(256,1,1) block=(512,1,1) lds=%d" % (name, LDS_BYTES))
    else:
        out.append("; @launch grid=(256,1,1) block=(512,1,1) lds=%d" % LDS_BYTES)
    out.append('.amdgcn_target "amdgcn-amd-amdhsa--gfx950"')
    out.append(".text")
    s = "\n".join(out) + "\n" + g.a.text()
    s += """.section .rodata,"a"
.p2align 6
.amdhsa_kernel %s
  .amdhsa_next_free_vgpr 256
  .amdhsa_next_free_sgpr 102
  .amdhsa_accum_offset 256
  .amdhsa_group_segment_fixed_size 0
  .amdhsa_kernarg_size 96
  .amdhsa_user_sgpr_count 2
  .amdhsa_user_sgpr_kernarg_segment_ptr 1
  .amdhsa_system_sgpr_workgroup_id_x 1
  .amdhsa_float_denorm_mode_32 3
  .amdhsa_float_denorm_mode_16_64 3
.end_amdhsa_kernel
""" % name
    return s


if __name__ == "__main__":
    cfg = {}
    outp = "standalone__adm_resblock__diffusion.s"
    for arg in sys.argv[1:]:
        k, v = arg.split("=", 1)
        if k == "out":
            outp = v
        else:
            cfg[k] = eval(v)
    open(outp, "w").write(build(cfg))
    print("wrote", outp)
```

```python
import struct
import sys

WS_A1 = 0x0000000
WS_A2 = 0x0800000
WS_W1 = 0x1000000
WS_W2 = 0x1800000
WS_SYNC = 0x2000000
WS_EMB = 0x2020000
WS_DBG = 0x3000000
IMG_BYTES = 8 << 20
W_BYTES = 512 * 4608 * 2
UP_BYTES = 32 * 48 * 4096
SY_GA, SY_FB, SY_GC, SY_FD = 0, 0x8000, 0x10000, 0x18000

XPITCH = 4224
VB = 2 * XPITCH
RS = 4 * VB
FS = 1040
L_STAT = 4 * RS
L_BC = L_STAT + 256
L_EMB = L_BC + 64
L_W1 = 0
L_W2 = L_EMB + 256
LDS_BYTES = L_W2 + 2 * 9216

LOG2E = 1.4426950408889634

P_X, P_TEMB, P_G1, P_BE1, P_W1, P_WEMB, P_G2, P_BE2, P_W2, P_OUT, P_DBG, P_WS = [64 + 2 * i for i in range(12)]
S_OCT, S_B, S_RT, S_WV, S_PT = 40, 41, 42, 43, 44
S_TAG, S_PHASE, S_ISA, S_HISA, S_ISA2, S_NL2E, S_ISAO = 88, 89, 90, 91, 92, 93, 94
S_ST = 96
SRD_SY = 20


def f2u(f):
    return struct.unpack("<I", struct.pack("<f", f))[0]


def fx(f):
    return "0x%08x" % f2u(f)


class Asm:
    def __init__(self):
        self.lines = []
        self.uid = 0

    def __call__(self, s):
        for l in s.strip("\n").split("\n"):
            self.lines.append("    " + l.strip())

    def label(self, l):
        self.lines.append(l + ":")

    def raw(self, s):
        self.lines.append(s)

    def nl(self, base):
        self.uid += 1
        return "L_%s_%d" % (base, self.uid)

    def text(self):
        return "\n".join(self.lines) + "\n"


def srd(a, d, ptr, off, nbytes):
    if off:
        a("s_add_u32 s%d, s%d, 0x%x" % (d, ptr, off))
        a("s_addc_u32 s%d, s%d, 0" % (d + 1, ptr + 1))
    else:
        a("s_mov_b32 s%d, s%d" % (d, ptr))
        a("s_mov_b32 s%d, s%d" % (d + 1, ptr + 1))
    a("s_mov_b32 s%d, 0x%x" % (d + 2, nbytes))
    a("s_mov_b32 s%d, 0x20000" % (d + 3))


DPP_STEPS = [
    "quad_perm:[1,0,3,2] row_mask:0xf bank_mask:0xf",
    "quad_perm:[2,3,0,1] row_mask:0xf bank_mask:0xf",
    "row_half_mirror row_mask:0xf bank_mask:0xf",
    "row_mirror row_mask:0xf bank_mask:0xf",
    "row_bcast:15 row_mask:0xa bank_mask:0xf",
    "row_bcast:31 row_mask:0xc bank_mask:0xf",
]


def dpp_reduce(a, regs, nsteps, op="v_add_f32_dpp"):
    n = len(regs)
    a("s_nop 1")
    for st in DPP_STEPS[:nsteps]:
        for r in regs:
            a("%s v%d, v%d, v%d %s" % (op, r, r, r, st))
        if n == 1:
            a("s_nop 1")
        elif n == 2:
            a("s_nop 0")


def unpack(a, dst_lo, dst_hi, src):
    a("v_lshlrev_b32 v%d, 16, v%d" % (dst_lo, src))
    a("v_and_b32 v%d, 0xffff0000, v%d" % (dst_hi, src))


def silu_group(a, vals, tmps, s_isa=None):
    for v, t in zip(vals, tmps):
        a("v_mul_f32 v%d, s%d, v%d" % (t, S_NL2E, v))
    for v, t in zip(vals, tmps):
        a("v_exp_f32 v%d, v%d" % (t, t))
    for v, t in zip(vals, tmps):
        if s_isa is None:
            a("v_add_f32 v%d, 1.0, v%d" % (t, t))
        else:
            a("v_fma_f32 v%d, v%d, s%d, s%d" % (t, t, s_isa, s_isa))
    for v, t in zip(vals, tmps):
        a("v_rcp_f32 v%d, v%d" % (t, t))
    for v, t in zip(vals, tmps):
        a("v_mul_f32 v%d, v%d, v%d" % (v, v, t))


class Gen:
    def __init__(self, cfg):
        self.cfg = cfg
        self.a = Asm()

    def stamp(self, real=True):
        if not self.cfg.get("stamp"):
            return
        a = self.a
        a("%s s[96:97]" % ("s_memrealtime" if real else "s_memtime"))
        a("s_waitcnt lgkmcnt(0)")
        a("s_mov_b32 m0, s98")
        a("s_nop 0")
        a("v_writelane_b32 v15, s96, m0")
        a("s_add_u32 s98, s98, 1")

    def stamp_flush(self):
        if not self.cfg.get("stamp"):
            return
        a = self.a
        a("s_mov_b64 exec, -1")
        srd(a, 8, P_WS, WS_DBG, 0x100000)
        a("s_lshl_b32 s3, s2, 11")
        a("s_lshl_b32 s4, s%d, 8" % S_WV)
        a("s_add_u32 s3, s3, s4")
        a("v_lshlrev_b32 v1, 2, v2")
        a("buffer_store_dword v15, v1, s[8:11], s3 offen")
        if self.cfg.get("stamp") == 2:
            l = a.nl("sd")
            a("s_cmp_lg_u32 s2, 5")
            a("s_cbranch_scc1 %s" % l)
            a("s_cmp_lg_u32 s%d, 0" % S_WV)
            a("s_cbranch_scc1 %s" % l)
            srd(a, 8, P_DBG, 0, 64)
            a("v_readlane_b32 s3, v15, 0")
            a("s_nop 3")
            a("v_subrev_u32 v15, s3, v15")
            a("buffer_store_dword v15, v1, s[8:11], 0 offen offset:4")
            a.label(l)

    def local_stats(self, vals, cpair):
        a = self.a
        for r in range(24, 32):
            a("v_mov_b32 v%d, 0" % r)
        for i, src in enumerate(vals):
            t = 32 + 2 * (i % 2)
            acc = 24 + 4 * (i % 2)
            a("v_pk_add_f32 v[%d:%d], v[%d:%d], %s neg_lo:[0,1] neg_hi:[0,1]" % (t, t + 1, src, src + 1, cpair))
            a("v_pk_add_f32 v[%d:%d], v[%d:%d], v[%d:%d]" % (acc, acc + 1, acc, acc + 1, t, t + 1))
            a("v_pk_fma_f32 v[%d:%d], v[%d:%d], v[%d:%d], v[%d:%d]" %
              (acc + 2, acc + 3, t, t + 1, t, t + 1, acc + 2, acc + 3))
        a("v_pk_add_f32 v[24:25], v[24:25], v[28:29]")
        a("v_pk_add_f32 v[26:27], v[26:27], v[30:31]")
        a("v_add_f32 v24, v24, v25")
        a("v_add_f32 v25, v26, v27")
        dpp_reduce(a, [24, 25], 4)
        a("s_lshl_b32 s3, s%d, 5" % S_WV)
        a("s_add_u32 s3, s3, %d" % L_STAT)
        a("v_lshl_add_u32 v12, v9, 3, s3")
        a("ds_write_b64 v12, v[24:25]")
        a("s_waitcnt lgkmcnt(0)")

    def group_sync(self, csrc, s_own, s_grp):
        a = self.a
        a("v_lshlrev_b32 v12, 4, v8")
        a("v_add_u32 v12, %d, v12" % L_STAT)
        a("ds_read_b128 v[24:27], v12")
        a("v_and_b32 v13, 31, v2")
        a("v_lshlrev_b32 v13, 7, v13")
        a("v_mov_b32 v29, s%d" % S_TAG)
        a("v_mov_b32 v31, s%d" % S_TAG)
        a("v_mov_b32 v14, 0")
        a("s_waitcnt lgkmcnt(0)")
        a("v_add_f32 v24, v24, v26")
        a("v_add_f32 v25, v25, v27")
        dpp_reduce(a, [24, 25], 4)
        a("v_mul_f32 v26, %s, v24" % fx(1.0 / 16384))
        a("v_add_f32 v28, %s, v26" % csrc)
        a("v_fma_f32 v30, -v24, v26, v25")
        a("v_max_f32 v30, 0, v30")
        a("s_mov_b64 exec, 1")
        a("buffer_store_dwordx4 v[28:31], v14, s[%d:%d], s%d offen sc1" % (SRD_SY, SRD_SY + 3, s_own))
        a("s_mov_b64 exec, -1")
        self.stamp()
        if self.cfg.get("presleep", 8):
            a("s_sleep %d" % self.cfg.get("presleep", 8))
        a("s_mov_b32 s5, 0")
        lp, ld = a.nl("poll"), a.nl("polld")
        a.label(lp)
        a("buffer_load_dwordx4 v[32:35], v13, s[%d:%d], s%d offen sc1" % (SRD_SY, SRD_SY + 3, s_grp))
        a("s_waitcnt vmcnt(0)")
        a("v_cmp_ne_u32 vcc, s%d, v33" % S_TAG)
        a("v_cmp_ne_u32 s[6:7], s%d, v35" % S_TAG)
        a("s_or_b64 vcc, vcc, s[6:7]")
        a("s_cbranch_scc0 %s" % ld)
        a("s_add_u32 s5, s5, 1")
        a("s_cmp_lt_u32 s5, 0x10000")
        a("s_cbranch_scc0 %s" % ld)
        a("s_sleep 1")
        a("s_branch %s" % lp)
        a.label(ld)
        self.stamp()
        a("v_readfirstlane_b32 s6, v32")
        a("s_nop 1")
        a("v_subrev_f32 v36, s6, v32")
        a("v_mul_f32 v37, v36, v36")
        dpp_reduce(a, [36, 37, 34], 5)
        a("v_mul_f32 v41, %s, v36" % fx(1.0 / 32))
        a("v_fma_f32 v42, -v36, v41, v37")
        a("v_max_f32 v42, 0, v42")
        a("v_fmac_f32 v34, %s, v42" % fx(16384.0))
        a("v_mov_b32 v43, %s" % fx(1e-5))
        a("v_fmac_f32 v43, %s, v34" % fx(1.0 / 524288))
        a("v_add_f32 v42, s6, v41")
        a("v_rsq_f32 v43, v43")
        a("v_mov_b32 v12, %d" % L_BC)
        a("s_mov_b32 exec_lo, 0x80000000")
        a("s_mov_b32 exec_hi, 0")
        a("ds_write_b64 v12, v[42:43]")
        a("s_mov_b64 exec, -1")
        a("s_waitcnt lgkmcnt(0)")

    def flag_and_poll(self, s_own, v_list):
        a = self.a
        a("v_mov_b32 v24, s%d" % S_TAG)
        a("v_mov_b32 v14, 0")
        a("s_mov_b64 exec, 1")
        a("buffer_store_dword v24, v14, s[%d:%d], s%d offen sc1" % (SRD_SY, SRD_SY + 3, s_own))
        a("s_mov_b64 exec, -1")
        self.stamp()
        if self.cfg.get("presleep", 8):
            a("s_sleep %d" % self.cfg.get("presleep", 8))
        a("s_mov_b32 s5, 0")
        lp, ld = a.nl("poll"), a.nl("polld")
        a.label(lp)
        a("buffer_load_dword v25, v%d, s[%d:%d], 0 offen sc1" % (v_list, SRD_SY, SRD_SY + 3))
        a("s_waitcnt vmcnt(0)")
        a("v_cmp_ne_u32 vcc, s%d, v25" % S_TAG)
        a("s_cmp_eq_u64 vcc, 0")
        a("s_cbranch_scc1 %s" % ld)
        a("s_add_u32 s5, s5, 1")
        a("s_cmp_lt_u32 s5, 0x10000")
        a("s_cbranch_scc0 %s" % ld)
        a("s_sleep 1")
        a("s_branch %s" % lp)
        a.label(ld)
        self.stamp()

    def w_dma(self, ptr, s_ob, s_cc, s_lds):
        a = self.a
        srd(a, 12, ptr, 0, W_BYTES)
        a("v_lshlrev_b32 v10, 3, v9")
        a("v_bfe_u32 v11, v2, 2, 2")
        a("v_add_u32 v10, v10, v11")
        a("v_mul_u32_u24 v10, 9216, v10")
        a("v_and_b32 v11, 3, v2")
        a("v_lshl_add_u32 v10, v11, 4, v10")
        a("s_lshr_b32 s3, s%d, 1" % s_ob)
        a("s_lshl_b32 s3, s3, 5")
        a("s_and_b32 s4, s%d, 1" % s_ob)
        a("s_lshl_b32 s4, s4, 2")
        a("s_add_u32 s3, s3, s4")
        a("s_mul_i32 s3, s3, 9216")
        a("s_mul_i32 s4, s%d, 576" % s_cc)
        a("s_add_u32 s3, s3, s4")
        for i in range(9):
            a("s_add_u32 m0, s%d, %d" % (s_lds, i * 960))
            a("s_nop 0")
            a("buffer_load_dwordx4 v10, s[12:15], s3 offen offset:%d lds" % (i * 64))

    def w_pack_part(self, ws_off, s_ob, s_cp, lds_base, R, s_u=None):
        a = self.a
        T = R + 36
        O = T + 10
        if s_u is None:
            a("s_lshr_b32 s5, s%d, 2" % S_WV)
        else:
            a("s_mov_b32 s5, s%d" % s_u)
        a("s_mul_i32 s3, s5, 9216")
        a("s_add_u32 s3, s3, %d" % lds_base)
        a("v_mul_u32_u24 v%d, 9, v9" % T)
        a("v_lshl_add_u32 v%d, v8, 6, s3" % (T + 1))
        for i in range(4):
            a("v_add_u32 v%d, %d, v%d" % (T + 2, i, T))
            a("v_lshrrev_b32 v%d, 2, v%d" % (T + 3, T + 2))
            a("v_and_b32 v%d, 3, v%d" % (T + 2, T + 2))
            a("v_lshl_add_u32 v%d, v%d, 10, v%d" % (T + 3, T + 3, T + 1))
            a("v_lshl_add_u32 v%d, v%d, 4, v%d" % (10 + i, T + 2, T + 3))
        for i in range(9):
            a("ds_read_b128 v[%d:%d], v%d offset:%d" % (R + 4 * i, R + 4 * i + 3, 10 + i % 4, (i // 4) * 1024))
        srd(a, 12, P_WS, ws_off, UP_BYTES)
        a("s_lshr_b32 s3, s%d, 2" % s_ob)
        a("s_mul_i32 s3, s3, %d" % (4 * 48 * 4096))
        a("s_and_b32 s4, s%d, 3" % s_ob)
        a("s_lshl_b32 s4, s4, 10")
        a("s_add_u32 s3, s3, s4")
        a("s_lshl_b32 s4, s%d, 1" % s_cp)
        a("s_add_u32 s4, s4, s5")
        a("s_mul_i32 s4, s4, %d" % (3 * 4096))
        a("s_add_u32 s3, s3, s4")
        a("s_mov_b32 s6, 0x07060100")
        a("s_mov_b32 s7, 0x05040302")
        a("s_and_b32 s5, s%d, 3" % S_WV)
        ls = [a.nl("wp") for _ in range(4)]
        a("s_waitcnt lgkmcnt(0)")
        a("s_cmp_eq_u32 s5, 2")
        a("s_cbranch_scc1 %s" % ls[1])
        a("s_cmp_eq_u32 s5, 3")
        a("s_cbranch_scc1 %s" % ls[2])
        for dx in range(3):
            a.label(ls[dx])
            for xi, t in ((0, dx), (3, 6 + dx)):
                o = O + 4 * xi
                for k in range(4):
                    e0 = 2 * k * 9 + t
                    e1 = e0 + 9
                    sel = 6 if e0 % 2 == 0 else 7
                    a("v_perm_b32 v%d, v%d, v%d, s%d" % (o + k, R + e1 // 2, R + e0 // 2, sel))
                a("s_add_u32 s4, s3, %d" % ((xi * 48 + dx) * 4096))
                a("buffer_store_dwordx4 v[%d:%d], v6, s[12:15], s4 offen sc1" % (o, o + 3))
            for k in range(4):
                for h in range(2):
                    j = 2 * k + h
                    for dy in range(3):
                        e = j * 9 + dy * 3 + dx
                        d = T + h * 3 + dy
                        if e % 2 == 0:
                            a("v_lshlrev_b32 v%d, 16, v%d" % (d, R + e // 2))
                        else:
                            a("v_and_b32 v%d, 0xffff0000, v%d" % (d, R + e // 2))
                for h in range(2):
                    a("v_add_f32 v%d, v%d, v%d" % (T + h * 3, T + h * 3, T + 2 + h * 3))
                for h in range(2):
                    a("v_add_f32 v%d, v%d, v%d" % (T + 6 + h, T + h * 3, T + 1 + h * 3))
                    a("v_sub_f32 v%d, v%d, v%d" % (T + 8 + h, T + h * 3, T + 1 + h * 3))
                a("v_cvt_pk_bf16_f32 v%d, v%d, v%d" % (O + 4 + k, T + 6, T + 7))
                a("v_cvt_pk_bf16_f32 v%d, v%d, v%d" % (O + 8 + k, T + 8, T + 9))
            for xi in (1, 2):
                a("s_add_u32 s4, s3, %d" % ((xi * 48 + dx) * 4096))
                a("buffer_store_dwordx4 v[%d:%d], v6, s[12:15], s4 offen sc1" % (O + 4 * xi, O + 4 * xi + 3))
            if dx < 2:
                a("s_branch %s" % ls[3])
        a.label(ls[3])
        a("s_nop 1")

    def norm_coeffs(self, G, BT, SC, SH):
        a = self.a
        for j in range(4):
            unpack(a, SC + 2 * j, SC + 2 * j + 1, G + j)
            unpack(a, SH + 2 * j, SH + 2 * j + 1, BT + j)
        for j in range(8):
            a("v_mul_f32 v%d, v17, v%d" % (SC + j, SC + j))
        for j in range(8):
            a("v_fma_f32 v%d, -v%d, v16, v%d" % (SH + j, SC + j, SH + j))

    def build(self):
        a, cfg = self.a, self.cfg
        name = "standalone__adm_resblock__diffusion_kernel"
        a.raw(".globl %s" % name)
        a.raw(".p2align 8")
        a.raw(".type %s,@function" % name)
        a.label(name)
        a("s_cmp_ge_u32 s2, 256")
        a("s_cbranch_scc1 L_end")
        a("s_load_dwordx16 s[64:79], s[0:1], 0")
        a("s_load_dwordx8 s[80:87], s[0:1], 64")
        a("v_lshrrev_b32 v1, 6, v0")
        a("v_and_b32 v2, 63, v0")
        a("v_readfirstlane_b32 s%d, v1" % S_WV)
        a("v_lshlrev_b32 v6, 4, v2")
        a("v_and_b32 v8, 15, v2")
        a("v_lshrrev_b32 v9, 4, v2")
        a("v_mov_b32 v14, 0")
        if cfg.get("cpf", 1):
            a("s_getpc_b64 s[12:13]")
            a.label("L_pc")
            a("s_sub_u32 s12, s12, L_pc-%s" % name)
            a("s_subb_u32 s13, s13, 0")
            a("s_mov_b32 s14, L_codeend-%s" % name)
            a("s_mov_b32 s15, 0x20000")
            a("s_lshr_b32 s3, s2, 3")
            a("s_lshl_b32 s4, s%d, 4" % S_WV)
            a("s_add_u32 s3, s3, s4")
            a("s_and_b32 s3, s3, 31")
            a("s_lshl_b32 s3, s3, 10")
            a("s_cmp_lt_u32 s%d, 6" % S_WV)
            a("s_cbranch_scc1 L_nocpf")
            a("buffer_load_dwordx4 v[104:107], v6, s[12:15], s3 offen")
            a.label("L_nocpf")
        a("v_and_b32 v3, 3, v0")
        a("v_lshrrev_b32 v4, 2, v0")
        a("v_lshlrev_b32 v5, 16, v3")
        a("v_lshl_add_u32 v5, v4, 3, v5")
        a("s_lshr_b32 s45, s2, 3")
        a("s_and_b32 s46, s2, 7")
        a("s_lshl_b32 s47, s45, 18")
        a("s_lshl_b32 s3, s46, 10")
        a("s_add_u32 s47, s47, s3")
        if cfg.get("stamp"):
            a("s_mov_b32 s98, 0")
            a("v_mov_b32 v15, 0")
        self.stamp()
        a("s_memrealtime s[4:5]")
        a("s_waitcnt lgkmcnt(0)")
        a("s_lshl_b32 s3, s2, 3")
        a("s_add_u32 s3, s3, s%d" % S_WV)
        a("s_cmp_lg_u32 s3, 7")
        a("s_cbranch_scc1 L_nononce")
        srd(a, 32, P_DBG, 0, 256)
        a("s_or_b32 s4, s4, 1")
        a("v_mov_b32 v13, s4")
        a("s_mov_b64 exec, 1")
        a("buffer_store_dword v13, v14, s[32:35], 0 offen sc1")
        a("s_mov_b64 exec, -1")
        a.label("L_nononce")
        srd(a, 8, P_X, 0, IMG_BYTES)
        a("s_mov_b32 s3, s47")
        XR = 48
        for j in range(8):
            a("buffer_load_dwordx2 v[%d:%d], v5, s[8:11], s3 offen" % (XR + 2 * j, XR + 2 * j + 1))
            if j < 7:
                a("s_add_u32 s3, s3, 8192")
        a("s_add_u32 s6, s%d, s47" % P_X)
        a("s_addc_u32 s7, s%d, 0" % (P_X + 1))
        a("s_load_dword s48, s[6:7], 0")
        srd(a, 24, P_G1, 0, 1024)
        srd(a, 28, P_BE1, 0, 1024)
        a("s_and_b32 s3, s45, 15")
        a("s_lshl_b32 s3, s3, 6")
        a("v_lshlrev_b32 v10, 4, v3")
        a("buffer_load_dwordx4 v[64:67], v10, s[24:27], s3 offen")
        a("buffer_load_dwordx4 v[68:71], v10, s[28:31], s3 offen")
        srd(a, SRD_SY, P_WS, WS_SYNC, 0x20000)
        a("s_and_b32 s3, s2, 1")
        a("s_lshl_b32 s3, s3, 2")
        a("s_bfe_u32 s4, s2, 0x20003")
        a("s_add_u32 s%d, s3, s4" % S_OCT)
        a("s_bfe_u32 s3, s2, 0x20001")
        a("s_lshl_b32 s3, s3, 3")
        a("s_lshr_b32 s4, s2, 5")
        a("s_add_u32 s%d, s3, s4" % S_PT)
        a("s_lshr_b32 s%d, s%d, 4" % (S_B, S_PT))
        a("s_and_b32 s%d, s%d, 15" % (S_RT, S_PT))
        a("s_mov_b32 s%d, %s" % (S_NL2E, fx(-LOG2E)))
        a("s_mov_b32 s%d, 0" % S_PHASE)
        a("s_mov_b32 s%d, 0" % S_TAG)
        RR = 112
        if cfg.get("xbar", 1):
            a("s_barrier")
        a("s_lshl_b32 s36, s%d, 2" % S_OCT)
        a("s_lshr_b32 s3, s%d, 3" % S_PT)
        a("s_add_u32 s36, s36, s3")
        a("s_and_b32 s37, s%d, 7" % S_PT)
        a("s_cmp_eq_u32 s%d, 0" % S_WV)
        a("s_cbranch_scc1 L_r0")
        a("s_cmp_eq_u32 s%d, 1" % S_WV)
        a("s_cbranch_scc1 L_r1")
        a("s_cmp_lt_u32 s%d, 4" % S_WV)
        a("s_cbranch_scc1 L_rw")
        a("s_cmp_lt_u32 s%d, 6" % S_WV)
        a("s_cbranch_scc1 L_rnone")
        a("s_and_b32 s3, s2, 31")
        a("s_cmp_lt_u32 s3, 8")
        a("s_cbranch_scc0 L_rnone")
        a("s_lshl_b32 s49, s3, 1")
        a("s_add_u32 s49, s49, s%d" % S_WV)
        a("s_sub_u32 s49, s49, 6")
        a("s_mul_i32 s3, s49, 48")
        a("v_lshrrev_b32 v10, 3, v2")
        a("v_mul_u32_u24 v10, 6, v10")
        a("v_add_u32 v10, s3, v10")
        a("v_lshlrev_b32 v11, 1, v10")
        a("v_lshlrev_b32 v10, 10, v10")
        a("v_and_b32 v12, 7, v2")
        a("v_lshl_add_u32 v10, v12, 4, v10")
        a("v_add_u32 v12, 4096, v10")
        a("s_lshr_b32 s3, s2, 5")
        a("s_lshl_b32 s3, s3, 7")
        srd(a, 12, P_TEMB, 0, 2 * 768 * 2)
        srd(a, 16, P_WEMB, 0, 768 * 512 * 2)
        a("buffer_load_dwordx3 v[%d:%d], v11, s[12:15], 0 offen" % (RR, RR + 2))
        a("buffer_load_dwordx3 v[%d:%d], v11, s[12:15], 0 offen offset:1536" % (RR + 4, RR + 6))
        for i in range(6):
            a("buffer_load_dwordx4 v[%d:%d], v%d, s[16:19], s3 offen offset:%d" %
              (RR + 8 + 4 * i, RR + 11 + 4 * i, 10 if i < 4 else 12, (i % 4) * 1024))
        a("s_waitcnt vmcnt(8)")
        a("s_branch L_rdone")
        a.label("L_rw")
        a("s_sub_u32 s51, s%d, 2" % S_WV)
        a("s_lshl_b32 s50, s46, 1")
        a("s_add_u32 s50, s50, s51")
        a("s_mul_i32 s51, s51, 9216")
        a("s_add_u32 s51, s51, %d" % L_W1)
        if cfg.get("w1late"):
            a("s_waitcnt vmcnt(0)")
        self.w_dma(P_W1, 45, 50, 51)
        a("s_waitcnt vmcnt(9)")
        a("s_branch L_rdone")
        a.label("L_r1")
        srd(a, 12, P_G2, 0, 1024)
        srd(a, 16, P_BE2, 0, 1024)
        a("buffer_load_dwordx4 v[%d:%d], v6, s[24:27], 0 offen" % (RR, RR + 3))
        a("buffer_load_dwordx4 v[%d:%d], v6, s[28:31], 0 offen" % (RR + 4, RR + 7))
        a("buffer_load_dwordx4 v[%d:%d], v6, s[12:15], 0 offen" % (RR + 8, RR + 11))
        a("buffer_load_dwordx4 v[%d:%d], v6, s[16:19], 0 offen" % (RR + 12, RR + 15))
        a("s_waitcnt vmcnt(4)")
        a("s_branch L_rdone")
        a.label("L_r0")
        srd(a, 32, P_DBG, 0, 256)
        a("s_waitcnt vmcnt(%d)" % cfg.get("nwait", 8))
        a("buffer_load_dword v%d, v14, s[32:35], 0 offen sc1" % RR)
        a("s_waitcnt vmcnt(1)")
        a("s_branch L_rdone")
        a.label("L_rnone")
        a("s_waitcnt vmcnt(0)")
        a.label("L_rdone")
        self.stamp()
        XF = 72
        for j in range(8):
            for d in range(2):
                unpack(a, XF + 4 * j + 2 * d, XF + 4 * j + 2 * d + 1, XR + 2 * j + d)
        a("s_waitcnt lgkmcnt(0)")
        a("s_lshl_b32 s48, s48, 16")
        a("s_mov_b32 s49, s48") if False else None
        a("v_mov_b32 v20, s48")
        a("v_mov_b32 v21, s48")
        self.local_stats([XF + 2 * i for i in range(16)], "v[20:21]")
        a("s_barrier")
        a("s_cmp_eq_u32 s%d, 0" % S_WV)
        a("s_cbranch_scc1 L_s0")
        a("s_cmp_eq_u32 s%d, 1" % S_WV)
        a("s_cbranch_scc1 L_s1")
        a("s_cmp_lt_u32 s%d, 4" % S_WV)
        a("s_cbranch_scc1 L_sw1")
        a("s_cmp_lt_u32 s%d, 6" % S_WV)
        a("s_cbranch_scc1 L_sdone")
        a("s_and_b32 s3, s2, 31")
        a("s_cmp_lt_u32 s3, 8")
        a("s_cbranch_scc0 L_sdone")
        E = 148
        a("s_waitcnt vmcnt(6)")
        for b in range(2):
            for d in range(3):
                unpack(a, E + 6 * b + 2 * d, E + 6 * b + 2 * d + 1, RR + 4 * b + d)
        silu_group(a, list(range(E, E + 12)), list(range(E + 12, E + 24)))
        EA = E + 24
        a("s_waitcnt vmcnt(0)")
        for i in range(6):
            for k in range(4):
                unpack(a, E + 12, E + 13, RR + 8 + 4 * i + k)
                for h in range(2):
                    j = 2 * k + h
                    for b in range(2):
                        if i == 0:
                            a("v_mul_f32 v%d, v%d, v%d" % (EA + 8 * b + j, E + 12 + h, E + 6 * b + i))
                        else:
                            a("v_fmac_f32 v%d, v%d, v%d" % (EA + 8 * b + j, E + 12 + h, E + 6 * b + i))
        a("s_nop 1")
        for j in range(8):
            a("v_permlane32_swap_b32 v%d, v%d" % (EA + j, EA + 8 + j))
        for j in range(8):
            a("v_add_f32 v%d, v%d, v%d" % (EA + j, EA + j, EA + 8 + j))
        a("s_nop 1")
        for j in range(4):
            a("v_permlane16_swap_b32 v%d, v%d" % (EA + j, EA + 4 + j))
        for j in range(4):
            a("v_add_f32 v%d, v%d, v%d" % (EA + j, EA + j, EA + 4 + j))
        a("s_nop 1")
        for j in range(4):
            a("v_add_f32_dpp v%d, v%d, v%d row_ror:8 row_mask:0xf bank_mask:0xf" % (EA + j, EA + j, EA + j))
        srd(a, 12, P_WS, WS_EMB, 65536)
        a("v_lshrrev_b32 v10, 5, v2")
        a("v_lshlrev_b32 v10, 11, v10")
        a("v_and_b32 v11, 7, v2")
        a("v_lshl_add_u32 v10, v11, 5, v10")
        a("v_and_b32 v11, 16, v2")
        a("v_add_u32 v10, v10, v11")
        a("s_lshl_b32 s3, s49, 12")
        a("s_lshr_b32 s4, s2, 5")
        a("s_lshl_b32 s4, s4, 8")
        a("s_add_u32 s3, s3, s4")
        a("buffer_store_dwordx4 v[%d:%d], v10, s[12:15], s3 offen sc1" % (EA, EA + 3))
        a("s_branch L_sdone")
        a.label("L_sw1")
        a("s_waitcnt vmcnt(0)")
        if cfg.get("u1early"):
            a("s_sub_u32 s38, s%d, 2" % S_WV)
            a("s_mov_b32 s39, s%d" % S_WV)
            a("s_mov_b32 s%d, 1" % S_WV)
            a.label("L_u1e")
            self.w_pack_part(WS_W1, 45, 46, L_W1, 112, 38)
            a("s_add_u32 s%d, s%d, 1" % (S_WV, S_WV))
            a("s_cmp_lt_u32 s%d, 4" % S_WV)
            a("s_cbranch_scc1 L_u1e")
            a("s_mov_b32 s%d, s39" % S_WV)
        a("s_branch L_sdone")
        a.label("L_s1")
        a("s_waitcnt vmcnt(0)")
        a("s_mov_b32 s3, 0x7fff7fff")
        for arr in range(4):
            r = RR + 4 * arr
            for k in range(4):
                a("v_and_b32 v%d, s3, v%d" % (r + k, r + k))
            a("v_pk_max_u16 v%d, v%d, v%d" % (r, r, r + 1))
            a("v_pk_max_u16 v%d, v%d, v%d" % (r + 2, r + 2, r + 3))
            a("v_pk_max_u16 v%d, v%d, v%d" % (r, r, r + 2))
            a("v_lshrrev_b32 v%d, 16, v%d" % (r + 1, r))
            a("v_and_b32 v%d, 0xffff, v%d" % (r, r))
            a("v_max_u32 v%d, v%d, v%d" % (r, r, r + 1))
        dpp_reduce(a, [RR, RR + 4, RR + 8, RR + 12], 6, "v_max_u32_dpp")
        for k in range(2):
            g, bt = RR + 8 * k, RR + 8 * k + 4
            a("v_lshrrev_b32 v%d, 7, v%d" % (g, g))
            a("v_lshrrev_b32 v%d, 7, v%d" % (bt, bt))
            a("v_add_u32 v%d, 10, v%d" % (g, g))
            a("v_max_u32 v%d, v%d, v%d" % (g, g, bt))
            a("v_max_u32 v%d, 14, v%d" % (g, g))
            a("v_min_u32 v%d, 0x10a, v%d" % (g, g))
            a("v_subrev_u32 v%d, 13, v%d" % (g, g))
            a("v_lshlrev_b32 v%d, 23, v%d" % (RR + 16 + k, g))
        a("v_mov_b32 v12, %d" % (L_BC + 8))
        a("s_mov_b32 exec_lo, 0")
        a("s_mov_b32 exec_hi, 0x80000000")
        a("ds_write_b64 v12, v[%d:%d]" % (RR + 16, RR + 17))
        a("s_mov_b64 exec, -1")
        a("s_waitcnt lgkmcnt(0)")
        a("s_branch L_sdone")
        a.label("L_s0")
        a("s_mov_b32 s5, 0")
        a.label("L_nonce")
        a("s_waitcnt vmcnt(0)")
        a("v_readfirstlane_b32 s%d, v%d" % (S_TAG, RR))
        a("s_nop 3")
        a("s_cmp_lg_u32 s%d, 0" % S_TAG)
        a("s_cbranch_scc1 L_nonced")
        a("s_add_u32 s5, s5, 1")
        a("s_cmp_lt_u32 s5, 0x10000")
        a("s_cbranch_scc0 L_nonced")
        a("s_sleep 4")
        srd(a, 32, P_DBG, 0, 256)
        a("buffer_load_dword v%d, v14, s[32:35], 0 offen sc1" % RR)
        a("s_branch L_nonce")
        a.label("L_nonced")
        a("v_mov_b32 v12, %d" % (L_BC + 16))
        a("v_mov_b32 v13, s%d" % S_TAG)
        a("ds_write_b32 v12, v13")
        a("s_lshl_b32 s50, s2, 7")
        a("s_and_b32 s51, s50, 0x7000")
        self.group_sync("v20", 50, 51)
        a.label("L_sdone")
        a("s_barrier")
        a("v_mov_b32 v12, %d" % L_BC)
        a("ds_read_b128 v[16:19], v12")
        a("ds_read_b32 v22, v12 offset:16")
        srd(a, 8, P_WS, WS_A1, IMG_BYTES)
        a("v_and_b32 v10, 1, v4")
        a("v_lshlrev_b32 v10, 1, v10")
        a("v_xor_b32 v10, v10, v3")
        a("v_lshlrev_b32 v10, 4, v10")
        a("v_lshl_add_u32 v10, v4, 8, v10")
        a("v_xor_b32 v11, 32, v10")
        a("s_lshl_b32 s47, s45, 18")
        a("s_lshl_b32 s3, s46, 15")
        a("s_add_u32 s47, s47, s3")
        a("s_waitcnt lgkmcnt(0)")
        a("v_readfirstlane_b32 s%d, v18" % S_ISA)
        a("v_readfirstlane_b32 s%d, v19" % S_ISA2)
        a("v_readfirstlane_b32 s%d, v22" % S_TAG)
        self.norm_coeffs(64, 68, 24, 32)
        for i in range(4):
            vals = [XF + 4 * j + i for j in range(8)]
            tm = list(range(40 + 8 * (i % 2), 48 + 8 * (i % 2)))
            for j in range(8):
                a("v_fma_f32 v%d, v%d, v%d, v%d" % (vals[j], vals[j], 24 + j, 32 + j))
            silu_group(a, vals, tm, S_ISA)
            o = 56 + 4 * i
            for k in range(4):
                a("v_cvt_pk_f16_f32 v%d, v%d, v%d" % (o + k, vals[2 * k], vals[2 * k + 1]))
            a("buffer_store_dwordx4 v[%d:%d], v%d, s[8:11], s47 offen offset:%d sc1" % (o, o + 3, 11 if i == 3 else 10, i * 64))
        if not cfg.get("u1early"):
            a("s_and_b32 s3, s%d, 3" % S_WV)
            a("s_cmp_eq_u32 s3, 0")
            a("s_cbranch_scc1 L_nop1")
            self.w_pack_part(WS_W1, 45, 46, L_W1, 112)
            a.label("L_nop1")
        a("s_lshl_b32 s3, s%d, 2" % S_RT)
        a("s_add_u32 s4, s3, 4")
        a("s_min_u32 s4, s4, 63")
        a("s_lshr_b32 s4, s4, 3")
        a("s_max_u32 s3, s3, 1")
        a("s_sub_u32 s3, s3, 1")
        a("s_lshr_b32 s3, s3, 3")
        a("v_mov_b32 v12, s3")
        a("v_mov_b32 v13, s4")
        a("v_cmp_gt_u32 vcc, 16, v2")
        a("s_lshl_b32 s3, s%d, 7" % S_B)
        a("s_lshl_b32 s4, s%d, 5" % S_OCT)
        a("v_cndmask_b32 v12, v13, v12, vcc")
        a("v_lshl_add_u32 v12, v8, 3, v12")
        a("v_add_u32 v12, s3, v12")
        a("s_sub_u32 s4, s4, 32")
        a("v_add_u32 v13, s4, v2")
        a("v_cmp_gt_u32 vcc, 32, v2")
        a("s_lshl_b32 s50, s2, 7")
        a("s_add_u32 s50, s50, %d" % SY_FB)
        a("v_cndmask_b32 v12, v13, v12, vcc")
        a("v_lshlrev_b32 v12, 7, v12")
        a("v_add_u32 v23, %d, v12" % SY_FB)

        a.label("L_conv")
        VV = [3, 4, 5]
        VFR, USET, ACC, EXT = 16, 48, 112, 240
        a("s_waitcnt vmcnt(0)")
        self.stamp()
        a("s_barrier")
        a("s_sub_u32 s%d, s%d, 0x800000" % (S_HISA, S_ISA))
        a("s_lshl_b32 s3, s%d, 23" % S_PHASE)
        a("s_cmp_ge_u32 s%d, 4" % S_WV)
        a("s_cbranch_scc1 L_prod")

        def ureg(st, blk):
            return USET + 16 * st + 4 * blk

        def vreg_(i):
            return VFR + 4 * i

        def areg(blk, i):
            return ACC + 4 * (blk * 8 + i)

        a("s_add_u32 s3, s3, 0x%x" % WS_W1)
        a("s_add_u32 s16, s%d, s3" % P_WS)
        a("s_addc_u32 s17, s%d, 0" % (P_WS + 1))
        a("s_mov_b32 s18, 0x%x" % UP_BYTES)
        a("s_mov_b32 s19, 0x20000")
        a("s_lshl_b32 s3, s%d, 2" % S_OCT)
        a("s_add_u32 s3, s3, s%d" % S_WV)
        a("s_mul_i32 s52, s3, %d" % (48 * 4096))
        a("s_mul_i32 s3, s%d, %d" % (S_WV, RS))
        for dx in range(3):
            a("v_add_u32 v11, %d, v8" % dx)
            a("v_bfe_u32 v12, v11, 2, 1")
            a("v_lshlrev_b32 v12, 1, v12")
            a("v_xor_b32 v12, v12, v9")
            a("v_lshlrev_b32 v12, 4, v12")
            a("v_lshl_add_u32 v12, v11, 6, v12")
            a("v_add_u32 v%d, s3, v12" % VV[dx])
        a("v_lshrrev_b32 v11, 3, v2")
        a("v_mul_u32_u24 v11, %d, v11" % XPITCH)
        a("v_bfe_u32 v12, v2, 2, 1")
        a("v_mul_u32_u24 v12, %d, v12" % (65 * 64))
        a("v_add_u32 v11, v11, v12")
        a("v_and_b32 v12, 3, v2")
        a("v_lshl_add_u32 v11, v12, 4, v11")
        a("v_add_u32 v11, s3, v11")
        for r in range(ACC, ACC + 128):
            a("v_mov_b32 v%d, 0" % r)
        a("ds_write_b128 v11, v[%d:%d]" % (ACC, ACC + 3))
        a("v_add_u32 v7, s3, v6")
        a("s_waitcnt lgkmcnt(0)")
        a("s_barrier")

        def uload(st, blk):
            r = ureg(st, blk)
            return "buffer_load_dwordx4 v[%d:%d], v6, s[16:19], s52 offen offset:%d sc1" % (r, r + 3, blk * 1024)

        def vread(i, buf, dx):
            r = vreg_(i)
            return "ds_read_b128 v[%d:%d], v%d offset:%d" % (r, r + 3, VV[dx], buf * VB + (i // 4) * XPITCH + (i % 4) * 1024)

        def mfma(st, blk, i):
            d, u, x = areg(blk, i), ureg(st, blk), vreg_(i)
            return "v_mfma_f32_16x16x32_bf16 v[%d:%d], v[%d:%d], v[%d:%d], v[%d:%d]" % (d, d + 3, u, u + 3, x, x + 3, d, d + 3)

        for st in range(3):
            for blk in range(4):
                a(uload(st, blk))
            a("s_add_u32 s52, s52, 4096")
        a("s_barrier")
        self.stamp()
        for i in range(7):
            a(vread(i, 0, 0))
        a("s_mov_b32 s53, 0")
        a.raw(".p2align 6")
        a.label("L_loop")
        upos = cfg.get("upos", (0, 2, 4, 6))
        for s in range(12):
            st = s % 4
            ns = (s + 1) % 12
            for i in range(8):
                a("s_waitcnt vmcnt(8) lgkmcnt(6)" if i == 0 else "s_waitcnt lgkmcnt(6)")
                for blk in range(4):
                    a(mfma(st, blk, i))
                    if blk == 0:
                        a(vread(7, s // 3, s % 3) if i == 0 else vread(i - 1, ns // 3, ns % 3))
                    if blk == 2 and i == 0 and s % 3 == 2:
                        if s == 11:
                            a("s_cbranch_scc1 L_nobar")
                        a("s_barrier")
                        if s == 11:
                            a.label("L_nobar")
                    if blk == 1 and i in upos:
                        a(uload((s + 3) % 4, upos.index(i)))
                    if blk == 2 and i == 7:
                        a("s_add_u32 s52, s52, 4096")
                    if blk == 2 and i == 7 and s == 10:
                        a("s_cmp_eq_u32 s53, 3")
        a("s_add_u32 s53, s53, 1")
        a("s_cmp_lt_u32 s53, 4")
        a("s_cbranch_scc1 L_loop")
        self.stamp()
        a("s_waitcnt lgkmcnt(0)")
        a("s_nop 3")
        for i in range(8):
            for blk in range(4):
                r = areg(blk, i)
                a("ds_write_b128 v7, v[%d:%d] offset:%d" % (r, r + 3, (blk * 8 + i) * FS))
        a("s_waitcnt vmcnt(0)")
        self.epi_loads()
        a("s_waitcnt lgkmcnt(0)")
        a("s_branch L_epi")

        a.label("L_prod")
        D = 2
        RAW, TMP, OUT = 24, 72, 88
        a("s_add_u32 s16, s%d, s3" % P_WS)
        a("s_addc_u32 s17, s%d, 0" % (P_WS + 1))
        a("s_mov_b32 s18, 0x%x" % IMG_BYTES)
        a("s_mov_b32 s19, 0x20000")
        a("s_sub_u32 s4, s%d, 4" % S_WV)
        a("s_lshl_b32 s4, s4, 10")
        a("v_add_u32 v3, s4, v6")
        a("v_add_u32 v4, 64, v3")
        a("v_add_u32 v5, %d, v4" % (2 * RS))
        a("s_lshl_b32 s3, s%d, 10" % S_B)
        a("s_lshl_b32 s4, s%d, 2" % S_RT)
        a("s_add_u32 s3, s3, s4")
        a("s_lshl_b32 s3, s3, 12")
        for r in range(6):
            a("s_add_u32 s%d, s3, 0x%x" % (52 + r, ((r - 1) * 4096) & 0xFFFFFFFF))
        a("s_cmp_eq_u32 s%d, 0" % S_RT)
        a("s_cselect_b32 s52, 0x40000000, s52")
        a("s_cmp_eq_u32 s%d, 15" % S_RT)
        a("s_cselect_b32 s57, 0x40000000, s57")
        a("s_cmp_lg_u32 s%d, 4" % S_WV)
        a("s_cbranch_scc1 L_nopoll")
        self.flag_and_poll(50, 23)
        a.label("L_nopoll")
        a("s_barrier")

        def rawload(st):
            for r in range(6):
                d = RAW + 24 * st + 4 * r
                a("buffer_load_dwordx4 v[%d:%d], v3, s[16:19], s%d offen sc1" % (d, d + 3, 52 + r))
            a("v_add_u32 v3, 0x40000, v3")

        COMB = [(0, 2, -1), (1, 2, 1), (2, 1, -1), (1, 3, -1)]

        def produce(st, buf):
            if buf in (1, 2):
                l1, l2 = a.nl("pw"), a.nl("pw")
                a("s_cmp_lg_u32 s38, 0")
                a("s_cbranch_scc1 %s" % l1)
                a("s_waitcnt vmcnt(6)")
                a.label(l1)
                a("s_waitcnt vmcnt(15)")
            else:
                a("s_waitcnt vmcnt(6)")
            for rp in range(2):
                for xi in range(4):
                    ra, rb, sg = COMB[xi]
                    ra, rb = RAW + 24 * st + 4 * (ra + 2 * rp), RAW + 24 * st + 4 * (rb + 2 * rp)
                    o = OUT + 4 * (rp * 4 + xi)
                    t = TMP + 8 * (xi % 2)
                    for d in range(4):
                        for h in range(2):
                            a("v_fma_mix_f32 v%d, v%d, 1.0, %sv%d op_sel:[%d,0,%d] op_sel_hi:[1,0,1]" %
                              (t + 2 * d + h, ra + d, "-" if sg < 0 else "", rb + d, h, h))
                    for d in range(4):
                        a("v_cvt_pk_bf16_f32 v%d, v%d, v%d" % (o + d, t + 2 * d, t + 2 * d + 1))
                    a("ds_write_b128 v%d, v[%d:%d] offset:%d" %
                      (4 if xi < 2 else 5, o, o + 3, (xi & 1) * RS + buf * VB + rp * XPITCH))
            rawload(st)
            if buf == 0:
                l1 = a.nl("pd")
                a("s_mov_b32 s38, 0")
                a("s_cmp_lg_u32 s58, s39")
                a("s_cbranch_scc1 %s" % l1)
                a("s_mov_b32 s38, 1")
                a("s_sub_u32 s51, s%d, 4" % S_WV)
                a("s_lshl_b32 s50, s37, 1")
                a("s_add_u32 s50, s50, s51")
                a("s_mul_i32 s51, s51, 9216")
                a("s_add_u32 s51, s51, %d" % L_W2)
                self.w_dma(P_W2, 36, 50, 51)
                a.label(l1)
            a("s_waitcnt lgkmcnt(0)")

        for st in range(D):
            rawload(st)
        a("s_mov_b32 s58, 0")
        a("s_mov_b32 s39, 99")
        a("s_lshl_b32 s3, s%d, 3" % S_PHASE)
        a("s_add_u32 s3, s3, s%d" % S_WV)
        a("s_cmp_lt_u32 s3, 6")
        a("s_cselect_b32 s39, 1, s39")
        a.label("L_ploop")
        for j in range(4):
            produce(j % D, j)
            a("s_barrier")
        a("s_add_u32 s58, s58, 1")
        a("s_cmp_lt_u32 s58, 4")
        a("s_cbranch_scc1 L_ploop")
        a("s_waitcnt vmcnt(0)")
        a("s_cmp_lg_u32 s%d, 0" % S_PHASE)
        a("s_cbranch_scc1 L_pextra_done")
        a("s_cmp_eq_u32 s%d, 4" % S_WV)
        a("s_cbranch_scc1 L_pemb")
        a("s_mov_b32 s38, 0")
        a.label("L_pu2")
        self.w_pack_part(WS_W2, 36, 37, L_W2, 24, 38)
        a("s_add_u32 s38, s38, 1")
        a("s_cmp_lt_u32 s38, 2")
        a("s_cbranch_scc1 L_pu2")
        a("s_branch L_pextra_done")
        a.label("L_pemb")
        srd(a, 12, P_WS, WS_EMB, 65536)
        a("s_lshl_b32 s3, s%d, 11" % S_B)
        a("s_lshl_b32 s4, s%d, 8" % S_OCT)
        a("s_add_u32 s3, s3, s4")
        a("v_lshlrev_b32 v10, 2, v2")
        for er in range(16):
            a("buffer_load_dword v%d, v10, s[12:15], s3 offen sc1" % (24 + er))
            if er < 15:
                a("s_add_u32 s3, s3, 4096")
        a("s_waitcnt vmcnt(0)")
        for k in range(8):
            a("v_add_f32 v%d, v%d, v%d" % (24 + k, 24 + k, 32 + k))
        for k in range(4):
            a("v_add_f32 v%d, v%d, v%d" % (24 + k, 24 + k, 28 + k))
        a("v_add_f32 v24, v24, v26")
        a("v_add_f32 v25, v25, v27")
        a("v_add_f32 v24, v24, v25")
        a("v_add_u32 v10, %d, v10" % L_EMB)
        a("ds_write_b32 v10, v24")
        a("s_waitcnt lgkmcnt(0)")
        a.label("L_pextra_done")
        self.epi_loads()

        a.label("L_epi")
        a("s_barrier")
        self.stamp()
        M, Y = 112, 176
        a("s_cmp_lg_u32 s%d, 0" % S_PHASE)
        a("s_cbranch_scc1 L_epi2")
        a("s_and_b32 s59, s%d, 1" % S_WV)
        a("s_lshr_b32 s3, s%d, 1" % S_WV)
        a("s_lshl_b32 s4, s59, 4")
        a("s_lshl_b32 s3, s3, 1")
        a("s_add_u32 s4, s4, s3")
        a("s_mul_i32 s4, s4, %d" % FS)
        a("v_add_u32 v10, s4, v6")
        a("v_add_u32 v11, %d, v10" % (2 * RS))
        a("v_mov_b32 v12, 0")
        a("ds_read_b32 v16, v12")
        a("ds_read_b32 v17, v12 offset:%d" % RS)
        a("v_mov_b32 v12, %d" % (2 * RS))
        a("ds_read_b32 v18, v12")
        a("s_lshl_b32 s3, s59, 7")
        a("s_add_u32 s3, s3, %d" % L_EMB)
        a("v_lshl_add_u32 v12, v9, 5, s3")
        a("ds_read_b128 v[48:51], v12")
        a("ds_read_b128 v[52:55], v12 offset:16")
        for u in range(2):
            for xi in range(4):
                for h in range(2):
                    r = M + 4 * ((u * 4 + xi) * 2 + h)
                    a("ds_read_b128 v[%d:%d], v%d offset:%d" %
                      (r, r + 3, 10 if xi < 2 else 11, (xi & 1) * RS + (h * 8 + u) * FS))
        a("s_waitcnt lgkmcnt(8)")
        a("v_add_f32 v17, v17, v18")
        a("v_fma_f32 v20, v17, 0.5, v16")
        a("v_mul_f32 v20, s%d, v20" % S_ISA)
        a("v_mov_b32 v21, v20")
        for u in range(2):
            if u == 1:
                a("s_waitcnt lgkmcnt(0)")
            for j in range(8):
                m = [M + 4 * ((u * 4 + xi) * 2 + j // 4) + j % 4 for xi in range(4)]
                ye, yo = Y + u * 16 + j, Y + u * 16 + 8 + j
                a("v_add_f32 v%d, v%d, v%d" % (ye, m[1], m[2]))
                a("v_sub_f32 v%d, v%d, v%d" % (yo, m[1], m[2]))
                a("v_fma_f32 v%d, v%d, s%d, v%d" % (m[0], m[0], S_ISA, 48 + j))
                a("v_fma_f32 v%d, -v%d, s%d, v%d" % (m[3], m[3], S_ISA, 48 + j))
                a("v_fma_f32 v%d, v%d, s%d, v%d" % (ye, ye, S_HISA, m[0]))
                a("v_fma_f32 v%d, v%d, s%d, v%d" % (yo, yo, S_HISA, m[3]))
        self.local_stats([Y + 2 * i for i in range(16)], "v[20:21]")
        a("s_waitcnt vmcnt(0)")
        a("s_barrier")
        a("s_cmp_lg_u32 s%d, 0" % S_WV)
        a("s_cbranch_scc1 L_edone")
        a.label("L_e0")
        a("s_lshl_b32 s51, s%d, 2" % S_B)
        a("s_lshr_b32 s3, s%d, 1" % S_OCT)
        a("s_add_u32 s51, s51, s3")
        a("s_lshl_b32 s51, s51, 12")
        a("s_add_u32 s51, s51, %d" % SY_GC)
        a("s_and_b32 s50, s%d, 1" % S_OCT)
        a("s_lshl_b32 s50, s50, 4")
        a("s_add_u32 s50, s50, s%d" % S_RT)
        a("s_lshl_b32 s50, s50, 7")
        a("s_add_u32 s50, s50, s51")
        self.group_sync("v20", 50, 51)
        a.label("L_edone")
        srd(a, 8, P_WS, WS_A2, IMG_BYTES)
        a("s_lshl_b32 s56, s%d, 4" % S_B)
        a("s_lshl_b32 s57, s%d, 1" % S_OCT)
        a("s_add_u32 s56, s56, s57")
        a("s_add_u32 s56, s56, s59")
        a("s_lshl_b32 s56, s56, 18")
        a("s_lshl_b32 s57, s%d, 14" % S_RT)
        a("s_add_u32 s56, s56, s57")
        a("s_lshr_b32 s57, s%d, 2" % S_WV)
        a("s_lshl_b32 s57, s57, 13")
        a("s_add_u32 s56, s56, s57")
        a("s_bfe_u32 s57, s%d, 0x10001" % S_WV)
        a("s_lshl_b32 s57, s57, 11")
        a("s_add_u32 s56, s56, s57")
        a("s_add_u32 s57, s56, 4096")
        a("v_add_u32 v11, 1, v8")
        a("v_bfe_u32 v11, v11, 2, 1")
        a("v_lshlrev_b32 v11, 1, v11")
        a("v_xor_b32 v11, v11, v9")
        a("v_lshlrev_b32 v11, 4, v11")
        a("v_lshl_add_u32 v11, v8, 6, v11")
        a("v_lshrrev_b32 v12, 3, v2")
        a("v_min_u32 v12, 2, v12")
        a("v_add_u32 v12, s%d, v12" % S_RT)
        a("v_max_u32 v12, 1, v12")
        a("v_min_u32 v12, 16, v12")
        a("s_lshl_b32 s3, s%d, 4" % S_B)
        a("s_sub_u32 s3, s3, 1")
        a("v_add_u32 v12, s3, v12")
        a("v_and_b32 v13, 7, v2")
        a("v_lshl_add_u32 v12, v12, 3, v13")
        a("v_subrev_u32 v13, 32, v2")
        a("v_lshlrev_b32 v13, 3, v13")
        a("v_add_u32 v13, s%d, v13" % S_OCT)
        a("v_cmp_gt_u32 vcc, 32, v2")
        a("s_lshl_b32 s50, s%d, 3" % S_PT)
        a("s_add_u32 s50, s50, s%d" % S_OCT)
        a("v_cndmask_b32 v12, v13, v12, vcc")
        a("v_lshlrev_b32 v12, 7, v12")
        a("v_add_u32 v23, %d, v12" % SY_FD)
        a("s_lshl_b32 s50, s50, 7")
        a("s_add_u32 s50, s50, %d" % SY_FD)
        a("v_mov_b32 v12, %d" % L_BC)
        a("s_barrier")
        a("ds_read_b64 v[16:17], v12")
        a("s_mov_b32 s%d, s%d" % (S_ISA, S_ISA2))
        a("s_mov_b32 s%d, 1" % S_PHASE)
        a("s_waitcnt lgkmcnt(0)")
        self.norm_coeffs(EXT + 8, EXT + 12, 24, 32)
        gi = 0
        for u in range(2):
            for e in range(2):
                vals = [Y + u * 16 + e * 8 + j for j in range(8)]
                tm = list(range(40 + 8 * (gi % 2), 48 + 8 * (gi % 2)))
                for j in range(8):
                    a("v_fma_f32 v%d, v%d, v%d, v%d" % (vals[j], vals[j], 24 + j, 32 + j))
                silu_group(a, vals, tm, S_ISA)
                o = 56 + 4 * gi
                for k in range(4):
                    a("v_cvt_pk_f16_f32 v%d, v%d, v%d" % (o + k, vals[2 * k], vals[2 * k + 1]))
                a("buffer_store_dwordx4 v[%d:%d], v11, s[8:11], s%d offen offset:%d sc1" % (o, o + 3, 56 + e, u * 1024))
                gi += 1
        a("s_branch L_conv")

        a.label("L_epi2")
        a("s_lshl_b32 s3, s%d, 2" % S_WV)
        a("s_mul_i32 s3, s3, %d" % FS)
        a("v_lshrrev_b32 v10, 2, v8")
        a("v_mul_u32_u24 v10, %d, v10" % FS)
        a("v_and_b32 v11, 3, v8")
        a("v_lshl_add_u32 v10, v11, 6, v10")
        a("v_lshl_add_u32 v10, v9, 8, v10")
        a("v_add_u32 v10, s3, v10")
        a("v_add_u32 v11, %d, v10" % (2 * RS))
        for k in range(4):
            for xi in range(4):
                r = M + 4 * (k * 4 + xi)
                a("ds_read_b128 v[%d:%d], v%d offset:%d" % (r, r + 3, 10 if xi < 2 else 11, (xi & 1) * RS + k * 16))
        a("s_waitcnt vmcnt(0)")
        for je in range(8):
            for d in range(2):
                unpack(a, 48 + je * 4 + 2 * d, 49 + je * 4 + 2 * d, EXT + je * 2 + d)
        for k in range(4):
            a("s_waitcnt lgkmcnt(%d)" % (12 - 4 * k))
            for j in range(4):
                m = [M + 4 * (k * 4 + xi) + j for xi in range(4)]
                ye, yo = Y + (j * 2) * 4 + k, Y + (j * 2 + 1) * 4 + k
                xe, xo = 48 + (j * 2) * 4 + k, 48 + (j * 2 + 1) * 4 + k
                a("v_add_f32 v%d, v%d, v%d" % (ye, m[1], m[2]))
                a("v_sub_f32 v%d, v%d, v%d" % (yo, m[1], m[2]))
                a("v_fma_f32 v%d, v%d, s%d, v%d" % (m[0], m[0], S_ISA, xe))
                a("v_fma_f32 v%d, -v%d, s%d, v%d" % (m[3], m[3], S_ISA, xo))
                a("v_fma_f32 v%d, v%d, s%d, v%d" % (ye, ye, S_HISA, m[0]))
                a("v_fma_f32 v%d, v%d, s%d, v%d" % (yo, yo, S_HISA, m[3]))
        srd(a, 8, P_OUT, 0, IMG_BYTES)
        for j in range(4):
            for e in range(2):
                je = j * 2 + e
                o = 16 + 2 * je
                a("v_cvt_pk_bf16_f32 v%d, v%d, v%d" % (o, Y + je * 4, Y + je * 4 + 1))
                a("v_cvt_pk_bf16_f32 v%d, v%d, v%d" % (o + 1, Y + je * 4 + 2, Y + je * 4 + 3))
                a("buffer_store_dwordx2 v[%d:%d], v13, s[8:11], s%d offen offset:%d" % (o, o + 1, 60 + j, e * 128))
        if cfg.get("stamp"):
            a("s_waitcnt vmcnt(0)")
        self.stamp()
        self.stamp_flush()
        a.label("L_end")
        a("s_endpgm")
        a.label("L_codeend")
        return name

    def epi_loads(self):
        a = self.a
        EXT = 240
        l1, l2 = a.nl("el"), a.nl("eld")
        a("s_cmp_lg_u32 s%d, 0" % S_PHASE)
        a("s_cbranch_scc1 %s" % l1)
        srd(a, 24, P_G2, 0, 1024)
        srd(a, 28, P_BE2, 0, 1024)
        a("s_and_b32 s4, s%d, 1" % S_WV)
        a("s_lshl_b32 s4, s4, 6")
        a("s_lshl_b32 s3, s%d, 7" % S_OCT)
        a("s_add_u32 s3, s3, s4")
        a("v_lshlrev_b32 v13, 4, v9")
        a("buffer_load_dwordx4 v[%d:%d], v13, s[24:27], s3 offen" % (EXT + 8, EXT + 11))
        a("buffer_load_dwordx4 v[%d:%d], v13, s[28:31], s3 offen" % (EXT + 12, EXT + 15))
        a("s_branch %s" % l2)
        a.label(l1)
        srd(a, 24, P_X, 0, IMG_BYTES)
        a("s_lshl_b32 s3, s%d, 22" % S_B)
        a("s_lshl_b32 s4, s%d, 19" % S_OCT)
        a("s_add_u32 s3, s3, s4")
        a("s_lshr_b32 s4, s%d, 2" % S_WV)
        a("s_lshl_b32 s4, s4, 18")
        a("s_add_u32 s3, s3, s4")
        a("s_bfe_u32 s4, s%d, 0x10001" % S_WV)
        a("s_lshl_b32 s4, s4, 15")
        a("s_add_u32 s3, s3, s4")
        a("s_lshl_b32 s4, s%d, 9" % S_RT)
        a("s_add_u32 s3, s3, s4")
        a("s_and_b32 s4, s%d, 1" % S_WV)
        a("s_lshl_b32 s4, s4, 8")
        a("s_add_u32 s60, s3, s4")
        a("s_add_u32 s61, s60, 8192")
        a("s_add_u32 s62, s60, 16384")
        a("s_add_u32 s63, s60, 24576")
        a("v_lshlrev_b32 v13, 16, v9")
        a("v_lshl_add_u32 v13, v8, 3, v13")
        for j in range(4):
            for e in range(2):
                r = EXT + (j * 2 + e) * 2
                a("buffer_load_dwordx2 v[%d:%d], v13, s[24:27], s%d offen offset:%d" % (r, r + 1, 60 + j, e * 128))
        a.label(l2)


def build(cfg):
    ref = open("standalone__adm_resblock__diffusion.s.ref").read()
    head = []
    for l in ref.splitlines():
        if "@launch" in l:
            break
        head.append(l)
    g = Gen(cfg)
    name = g.build()
    out = list(head)
    if cfg.get("aslist"):
        out.append("; @launch kernel=%s grid=(256,1,1) block=(512,1,1) lds=%d" % (name, LDS_BYTES))
    else:
        out.append("; @launch grid=(256,1,1) block=(512,1,1) lds=%d" % LDS_BYTES)
    out.append('.amdgcn_target "amdgcn-amd-amdhsa--gfx950"')
    out.append(".text")
    s = "\n".join(out) + "\n" + g.a.text()
    s += """.section .rodata,"a"
.p2align 6
.amdhsa_kernel %s
  .amdhsa_next_free_vgpr 256
  .amdhsa_next_free_sgpr 102
  .amdhsa_accum_offset 256
  .amdhsa_group_segment_fixed_size 0
  .amdhsa_kernarg_size 96
  .amdhsa_user_sgpr_count 2
  .amdhsa_user_sgpr_kernarg_segment_ptr 1
  .amdhsa_system_sgpr_workgroup_id_x 1
  .amdhsa_float_denorm_mode_32 3
  .amdhsa_float_denorm_mode_16_64 3
.end_amdhsa_kernel
""" % name
    return s


if __name__ == "__main__":
    cfg = {}
    outp = "standalone__adm_resblock__diffusion.s"
    for arg in sys.argv[1:]:
        k, v = arg.split("=", 1)
        if k == "out":
            outp = v
        else:
            cfg[k] = eval(v)
    open(outp, "w").write(build(cfg))
    print("wrote", outp)
```

```python
import struct
import sys

WS_A1 = 0x0000000
WS_A2 = 0x0800000
WS_W1 = 0x1000000
WS_W2 = 0x1800000
WS_SYNC = 0x2000000
WS_EMB = 0x2020000
WS_DBG = 0x3000000
IMG_BYTES = 8 << 20
W_BYTES = 512 * 4608 * 2
UP_BYTES = 32 * 48 * 4096
SY_GA, SY_FB, SY_GC, SY_FD = 0, 0x8000, 0x10000, 0x18000

XPITCH = 4160
POFF = [0, 2112, 3136, 1088]
VB = 2 * XPITCH
RS = 4 * VB
FS = 1040
L_STAT = 4 * RS
L_BC = L_STAT + 256
L_EMB = L_BC + 64
L_W1 = 0
L_XS = 20480
L_W2 = L_EMB + 256
LDS_BYTES = L_W2 + 2 * 9216

LOG2E = 1.4426950408889634

P_X, P_TEMB, P_G1, P_BE1, P_W1, P_WEMB, P_G2, P_BE2, P_W2, P_OUT, P_DBG, P_WS = [64 + 2 * i for i in range(12)]
S_OCT, S_B, S_RT, S_WV, S_PT = 40, 41, 42, 43, 44
S_TAG, S_PHASE, S_ISA, S_HISA, S_ISA2, S_NL2E, S_ISAO = 88, 89, 90, 91, 92, 93, 94
S_ST = 96
SRD_SY = 20


def f2u(f):
    return struct.unpack("<I", struct.pack("<f", f))[0]


def fx(f):
    return "0x%08x" % f2u(f)


class Asm:
    def __init__(self):
        self.lines = []
        self.uid = 0

    def __call__(self, s):
        for l in s.strip("\n").split("\n"):
            self.lines.append("    " + l.strip())

    def label(self, l):
        self.lines.append(l + ":")

    def raw(self, s):
        self.lines.append(s)

    def nl(self, base):
        self.uid += 1
        return "L_%s_%d" % (base, self.uid)

    def text(self):
        return "\n".join(self.lines) + "\n"


def srd(a, d, ptr, off, nbytes):
    if off:
        a("s_add_u32 s%d, s%d, 0x%x" % (d, ptr, off))
        a("s_addc_u32 s%d, s%d, 0" % (d + 1, ptr + 1))
    else:
        a("s_mov_b32 s%d, s%d" % (d, ptr))
        a("s_mov_b32 s%d, s%d" % (d + 1, ptr + 1))
    a("s_mov_b32 s%d, 0x%x" % (d + 2, nbytes))
    a("s_mov_b32 s%d, 0x20000" % (d + 3))


DPP_STEPS = [
    "quad_perm:[1,0,3,2] row_mask:0xf bank_mask:0xf",
    "quad_perm:[2,3,0,1] row_mask:0xf bank_mask:0xf",
    "row_half_mirror row_mask:0xf bank_mask:0xf",
    "row_mirror row_mask:0xf bank_mask:0xf",
    "row_bcast:15 row_mask:0xa bank_mask:0xf",
    "row_bcast:31 row_mask:0xc bank_mask:0xf",
]


def dpp_reduce(a, regs, nsteps, op="v_add_f32_dpp"):
    n = len(regs)
    a("s_nop 1")
    for st in DPP_STEPS[:nsteps]:
        for r in regs:
            a("%s v%d, v%d, v%d %s" % (op, r, r, r, st))
        if n == 1:
            a("s_nop 1")
        elif n == 2:
            a("s_nop 0")


def unpack(a, dst_lo, dst_hi, src):
    a("v_lshlrev_b32 v%d, 16, v%d" % (dst_lo, src))
    a("v_and_b32 v%d, 0xffff0000, v%d" % (dst_hi, src))


def silu_group(a, vals, tmps, s_isa=None):
    for v, t in zip(vals, tmps):
        a("v_mul_f32 v%d, s%d, v%d" % (t, S_NL2E, v))
    for v, t in zip(vals, tmps):
        a("v_exp_f32 v%d, v%d" % (t, t))
    for v, t in zip(vals, tmps):
        if s_isa is None:
            a("v_add_f32 v%d, 1.0, v%d" % (t, t))
        else:
            a("v_fma_f32 v%d, v%d, s%d, s%d" % (t, t, s_isa, s_isa))
    for v, t in zip(vals, tmps):
        a("v_rcp_f32 v%d, v%d" % (t, t))
    for v, t in zip(vals, tmps):
        a("v_mul_f32 v%d, v%d, v%d" % (v, v, t))


def pr(r):
    assert r % 2 == 0, r
    return "v[%d:%d]" % (r, r + 1)


def sbc(sreg):
    e = sreg & ~1
    return "s[%d:%d]" % (e, e + 1), sreg & 1


def vbc(vreg):
    e = vreg & ~1
    return "v[%d:%d]" % (e, e + 1), vreg & 1


def pk(a, op, dst, srcs, neg=None):
    txt, lo, hi = [], [], []
    for x in srcs:
        if isinstance(x, tuple):
            txt.append(x[0]); lo.append(x[1]); hi.append(x[1])
        else:
            txt.append(pr(x)); lo.append(0); hi.append(1)
    m = ""
    if any(lo):
        m += " op_sel:[%s]" % ",".join(map(str, lo))
    if not all(hi):
        m += " op_sel_hi:[%s]" % ",".join(map(str, hi))
    if neg and any(neg):
        n = ",".join(map(str, neg))
        m += " neg_lo:[%s] neg_hi:[%s]" % (n, n)
    a("v_pk_%s_f32 %s, %s%s" % (op, pr(dst), ", ".join(txt), m))


def silu_pk(a, pairs, tmps):
    for v, t in zip(pairs, tmps):
        pk(a, "mul", t, [v, sbc(S_NL2E)])
    for v, t in zip(pairs, tmps):
        a("v_exp_f32 v%d, v%d" % (t, t))
        a("v_exp_f32 v%d, v%d" % (t + 1, t + 1))
    for v, t in zip(pairs, tmps):
        pk(a, "fma", t, [t, sbc(S_ISA), sbc(S_ISA)])
    for v, t in zip(pairs, tmps):
        a("v_rcp_f32 v%d, v%d" % (t, t))
        a("v_rcp_f32 v%d, v%d" % (t + 1, t + 1))
    for v, t in zip(pairs, tmps):
        pk(a, "mul", v, [v, t])


class Gen:
    def __init__(self, cfg):
        self.cfg = cfg
        self.a = Asm()

    def stamp(self, real=True):
        if not self.cfg.get("stamp"):
            return
        a = self.a
        a("%s s[96:97]" % ("s_memrealtime" if real else "s_memtime"))
        a("s_waitcnt lgkmcnt(0)")
        a("s_mov_b32 m0, s98")
        a("s_nop 0")
        a("v_writelane_b32 v15, s96, m0")
        a("s_add_u32 s98, s98, 1")

    def stamp_flush(self):
        if not self.cfg.get("stamp"):
            return
        a = self.a
        a("s_mov_b64 exec, -1")
        srd(a, 8, P_WS, WS_DBG, 0x100000)
        a("s_lshl_b32 s3, s2, 11")
        a("s_lshl_b32 s4, s%d, 8" % S_WV)
        a("s_add_u32 s3, s3, s4")
        a("v_lshlrev_b32 v1, 2, v2")
        a("buffer_store_dword v15, v1, s[8:11], s3 offen")
        if self.cfg.get("stamp") == 2:
            l = a.nl("sd")
            a("s_cmp_lg_u32 s2, 5")
            a("s_cbranch_scc1 %s" % l)
            a("s_cmp_lg_u32 s%d, 0" % S_WV)
            a("s_cbranch_scc1 %s" % l)
            srd(a, 8, P_DBG, 0, 64)
            a("v_readlane_b32 s3, v15, 0")
            a("s_nop 3")
            a("v_subrev_u32 v15, s3, v15")
            a("buffer_store_dword v15, v1, s[8:11], 0 offen offset:4")
            a.label(l)

    def local_stats(self, vals, cpair):
        a = self.a
        for i, src in enumerate(vals):
            acc = 24 + 4 * (i % 2)
            if i < 2:
                pk(a, "add", acc, [src, vals[i + 2]])
                pk(a, "mul", acc + 2, [src, src])
            else:
                if i >= 4:
                    pk(a, "add", acc, [acc, src])
                pk(a, "fma", acc + 2, [src, src, acc + 2])
        a("v_pk_add_f32 v[24:25], v[24:25], v[28:29]")
        a("v_pk_add_f32 v[26:27], v[26:27], v[30:31]")
        a("v_add_f32 v24, v24, v25")
        a("v_add_f32 v25, v26, v27")
        dpp_reduce(a, [24, 25], 4)
        a("s_lshl_b32 s3, s%d, 5" % S_WV)
        a("s_add_u32 s3, s3, %d" % L_STAT)
        a("v_lshl_add_u32 v12, v9, 3, s3")
        a("ds_write_b64 v12, v[24:25]")
        a("s_waitcnt lgkmcnt(0)")

    def group_sync(self, csrc, s_own, s_grp, both=False, filler=None):
        a = self.a
        a("v_lshlrev_b32 v12, 4, v8")
        a("v_add_u32 v12, %d, v12" % L_STAT)
        a("ds_read_b128 v[24:27], v12")
        a("v_and_b32 v13, 31, v2")
        a("v_lshlrev_b32 v13, 7, v13")
        if both:
            a("s_xor_b32 s7, s%d, 0x4000" % s_grp)
            a("s_sub_u32 s7, s7, s%d" % s_grp)
            a("v_lshrrev_b32 v14, 5, v2")
            a("v_mul_lo_u32 v14, v14, s7")
            a("v_add_u32 v13, v13, v14")
            a("v_add_u32 v13, s%d, v13" % s_grp)
        a("v_mov_b32 v29, s%d" % S_TAG)
        a("v_mov_b32 v31, s%d" % S_TAG)
        a("v_mov_b32 v14, 0")
        a("s_waitcnt lgkmcnt(0)")
        a("v_add_f32 v24, v24, v26")
        a("v_add_f32 v25, v25, v27")
        dpp_reduce(a, [24, 25], 4)
        a("v_mul_f32 v26, %s, v24" % fx(1.0 / 16384))
        a("v_add_f32 v28, %s, v26" % csrc)
        a("v_fma_f32 v30, -v24, v26, v25")
        a("v_max_f32 v30, 0, v30")
        a("s_mov_b64 exec, 1")
        a("buffer_store_dwordx4 v[28:31], v14, s[%d:%d], s%d offen sc1" % (SRD_SY, SRD_SY + 3, s_own))
        a("s_mov_b64 exec, -1")
        self.stamp()
        if filler:
            filler()
        if self.cfg.get("presleep", 8):
            a("s_sleep %d" % self.cfg.get("presleep", 8))
        a("s_mov_b32 s5, 0")
        lp, ld = a.nl("poll"), a.nl("polld")
        a.label(lp)
        a("buffer_load_dwordx4 v[32:35], v13, s[%d:%d], %s offen sc1" % (SRD_SY, SRD_SY + 3, "0" if both else "s%d" % s_grp))
        a("s_waitcnt vmcnt(0)")
        a("v_cmp_ne_u32 vcc, s%d, v33" % S_TAG)
        a("v_cmp_ne_u32 s[6:7], s%d, v35" % S_TAG)
        a("s_or_b64 vcc, vcc, s[6:7]")
        a("s_cbranch_scc0 %s" % ld)
        a("s_add_u32 s5, s5, 1")
        a("s_cmp_lt_u32 s5, 0x10000")
        a("s_cbranch_scc0 %s" % ld)
        a("s_sleep 1")
        a("s_branch %s" % lp)
        a.label(ld)
        self.stamp()
        a("v_readfirstlane_b32 s6, v32")
        a("s_nop 1")
        a("v_subrev_f32 v36, s6, v32")
        a("v_mul_f32 v37, v36, v36")
        dpp_reduce(a, [36, 37, 34], 5)
        a("v_mul_f32 v41, %s, v36" % fx(1.0 / 32))
        a("v_fma_f32 v42, -v36, v41, v37")
        a("v_max_f32 v42, 0, v42")
        a("v_fmac_f32 v34, %s, v42" % fx(16384.0))
        a("v_mov_b32 v43, %s" % fx(1e-5))
        a("v_fmac_f32 v43, %s, v34" % fx(1.0 / 524288))
        a("v_add_f32 v42, s6, v41")
        a("v_rsq_f32 v43, v43")
        a("v_mov_b32 v12, %d" % L_BC)
        a("s_mov_b32 exec_lo, 0x80000000")
        a("s_mov_b32 exec_hi, 0")
        a("ds_write_b64 v12, v[42:43]")
        a("s_mov_b64 exec, -1")
        a("s_waitcnt lgkmcnt(0)")

    def granule_slot(self, area):
        a = self.a
        a("s_lshl_b32 s51, s%d, 2" % S_B)
        a("s_lshr_b32 s3, s%d, 1" % S_OCT)
        a("s_add_u32 s51, s51, s3")
        a("s_lshl_b32 s51, s51, 12")
        a("s_add_u32 s51, s51, %d" % area)
        a("s_and_b32 s50, s%d, 1" % S_OCT)
        a("s_lshl_b32 s50, s50, 4")
        a("s_add_u32 s50, s50, s%d" % S_RT)
        a("s_lshl_b32 s50, s50, 7")
        a("s_add_u32 s50, s50, s51")

    def flag_list(self, area, with_u):
        a = self.a
        a("v_lshrrev_b32 v12, 3, v2")
        a("v_min_u32 v12, 2, v12")
        a("v_add_u32 v12, s%d, v12" % S_RT)
        a("v_max_u32 v12, 1, v12")
        a("v_min_u32 v12, 16, v12")
        a("s_lshl_b32 s3, s%d, 4" % S_B)
        a("s_sub_u32 s3, s3, 1")
        a("v_add_u32 v12, s3, v12")
        a("v_and_b32 v13, 7, v2")
        a("v_lshl_add_u32 v12, v12, 3, v13")
        if with_u:
            a("v_subrev_u32 v13, 32, v2")
            a("v_lshlrev_b32 v13, 3, v13")
            a("v_add_u32 v13, s%d, v13" % S_OCT)
            a("v_cmp_gt_u32 vcc, 32, v2")
        a("s_lshl_b32 s50, s%d, 3" % S_PT)
        a("s_add_u32 s50, s50, s%d" % S_OCT)
        if with_u:
            a("v_cndmask_b32 v12, v13, v12, vcc")
        a("v_lshlrev_b32 v12, 7, v12")
        a("v_add_u32 v23, %d, v12" % area)
        a("s_lshl_b32 s50, s50, 7")
        a("s_add_u32 s50, s50, %d" % area)

    def flag_and_poll(self, s_own, v_list):
        a = self.a
        a("v_mov_b32 v24, s%d" % S_TAG)
        a("v_mov_b32 v14, 0")
        a("s_mov_b64 exec, 1")
        a("buffer_store_dword v24, v14, s[%d:%d], s%d offen sc1" % (SRD_SY, SRD_SY + 3, s_own))
        a("s_mov_b64 exec, -1")
        self.stamp()
        if self.cfg.get("presleep", 8):
            a("s_sleep %d" % self.cfg.get("presleep", 8))
        a("s_mov_b32 s5, 0")
        lp, ld = a.nl("poll"), a.nl("polld")
        a.label(lp)
        a("buffer_load_dword v25, v%d, s[%d:%d], 0 offen sc1" % (v_list, SRD_SY, SRD_SY + 3))
        a("s_waitcnt vmcnt(0)")
        a("v_cmp_ne_u32 vcc, s%d, v25" % S_TAG)
        a("s_cmp_eq_u64 vcc, 0")
        a("s_cbranch_scc1 %s" % ld)
        a("s_add_u32 s5, s5, 1")
        a("s_cmp_lt_u32 s5, 0x10000")
        a("s_cbranch_scc0 %s" % ld)
        a("s_sleep 1")
        a("s_branch %s" % lp)
        a.label(ld)
        self.stamp()

    def w_dma(self, ptr, s_ob, s_cc, s_lds):
        a = self.a
        srd(a, 12, ptr, 0, W_BYTES)
        a("v_lshlrev_b32 v10, 3, v9")
        a("v_bfe_u32 v11, v2, 2, 2")
        a("v_add_u32 v10, v10, v11")
        a("v_mul_u32_u24 v10, 9216, v10")
        a("v_and_b32 v11, 3, v2")
        a("v_lshl_add_u32 v10, v11, 4, v10")
        a("s_lshr_b32 s3, s%d, 1" % s_ob)
        a("s_lshl_b32 s3, s3, 5")
        a("s_and_b32 s4, s%d, 1" % s_ob)
        a("s_lshl_b32 s4, s4, 2")
        a("s_add_u32 s3, s3, s4")
        a("s_mul_i32 s3, s3, 9216")
        a("s_mul_i32 s4, s%d, 576" % s_cc)
        a("s_add_u32 s3, s3, s4")
        for i in range(9):
            a("s_add_u32 m0, s%d, %d" % (s_lds, i * 960))
            a("s_nop 0")
            a("buffer_load_dwordx4 v10, s[12:15], s3 offen offset:%d%s lds" % (i * 64, self.cfg.get("wf", " nt")))

    def w_pack_part(self, ws_off, s_ob, s_cp, lds_base, R, s_u=None, defer=False):
        a = self.a
        T = R + 36
        O = T + 10
        if s_u is None:
            a("s_lshr_b32 s5, s%d, 2" % S_WV)
        else:
            a("s_mov_b32 s5, s%d" % s_u)
        a("s_mul_i32 s3, s5, 9216")
        a("s_add_u32 s3, s3, %d" % lds_base)
        a("v_mul_u32_u24 v%d, 9, v9" % T)
        a("v_lshl_add_u32 v%d, v8, 6, s3" % (T + 1))
        for i in range(4):
            a("v_add_u32 v%d, %d, v%d" % (T + 2, i, T))
            a("v_lshrrev_b32 v%d, 2, v%d" % (T + 3, T + 2))
            a("v_and_b32 v%d, 3, v%d" % (T + 2, T + 2))
            a("v_lshl_add_u32 v%d, v%d, 10, v%d" % (T + 3, T + 3, T + 1))
            a("v_lshl_add_u32 v%d, v%d, 4, v%d" % (10 + i, T + 2, T + 3))
        for i in range(9):
            a("ds_read_b128 v[%d:%d], v%d offset:%d" % (R + 4 * i, R + 4 * i + 3, 10 + i % 4, (i // 4) * 1024))
        a("s_lshr_b32 s3, s%d, 2" % s_ob)
        a("s_mul_i32 s3, s3, %d" % (4 * 48 * 4096))
        a("s_and_b32 s4, s%d, 3" % s_ob)
        a("s_lshl_b32 s4, s4, 10")
        a("s_add_u32 s3, s3, s4")
        a("s_lshl_b32 s4, s%d, 1" % s_cp)
        a("s_add_u32 s4, s4, s5")
        a("s_mul_i32 s4, s4, 3")
        a("s_and_b32 s5, s%d, 3" % S_WV)
        a("s_add_u32 s4, s4, s5")
        a("s_sub_u32 s4, s4, 1")
        a("s_lshl_b32 s4, s4, 12")
        a("s_add_u32 s39, s3, s4")
        a("s_mov_b32 s6, 0x07060100")
        a("s_mov_b32 s7, 0x05040302")
        ls = [a.nl("wp") for _ in range(4)]
        a("s_waitcnt lgkmcnt(0)")
        a("s_cmp_eq_u32 s5, 2")
        a("s_cbranch_scc1 %s" % ls[1])
        a("s_cmp_eq_u32 s5, 3")
        a("s_cbranch_scc1 %s" % ls[2])
        for dx in range(3):
            a.label(ls[dx])
            for xi, t in ((0, dx), (3, 6 + dx)):
                o = O + 4 * xi
                for k in range(4):
                    e0 = 2 * k * 9 + t
                    e1 = e0 + 9
                    sel = 6 if e0 % 2 == 0 else 7
                    a("v_perm_b32 v%d, v%d, v%d, s%d" % (o + k, R + e1 // 2, R + e0 // 2, sel))
            for k in range(4):
                for h in range(2):
                    j = 2 * k + h
                    for dy in range(3):
                        e = j * 9 + dy * 3 + dx
                        d = T + h * 3 + dy
                        if e % 2 == 0:
                            a("v_lshlrev_b32 v%d, 16, v%d" % (d, R + e // 2))
                        else:
                            a("v_and_b32 v%d, 0xffff0000, v%d" % (d, R + e // 2))
                for h in range(2):
                    a("v_add_f32 v%d, v%d, v%d" % (T + h * 3, T + h * 3, T + 2 + h * 3))
                for h in range(2):
                    a("v_add_f32 v%d, v%d, v%d" % (T + 6 + h, T + h * 3, T + 1 + h * 3))
                    a("v_sub_f32 v%d, v%d, v%d" % (T + 8 + h, T + h * 3, T + 1 + h * 3))
                a("v_cvt_pk_bf16_f32 v%d, v%d, v%d" % (O + 4 + k, T + 6, T + 7))
                a("v_cvt_pk_bf16_f32 v%d, v%d, v%d" % (O + 8 + k, T + 8, T + 9))
            if dx < 2:
                a("s_branch %s" % ls[3])
        a.label(ls[3])
        if not defer:
            self.w_pack_store(ws_off, R)

    def w_pack_store(self, ws_off, R):
        a = self.a
        O = R + 46
        srd(a, 12, P_WS, ws_off, UP_BYTES)
        for xi in range(4):
            a("buffer_store_dwordx4 v[%d:%d], v6, s[12:15], s39 offen sc1" % (O + 4 * xi, O + 4 * xi + 3))
            a("s_add_u32 s39, s39, %d" % (48 * 4096))
        a("s_nop 1")

    def norm_coeffs(self, G, BT, SC, SH):
        a = self.a
        for j in range(4):
            unpack(a, SC + 2 * j, SC + 2 * j + 1, G + j)
            unpack(a, SH + 2 * j, SH + 2 * j + 1, BT + j)
        a("s_waitcnt lgkmcnt(0)")
        a("v_sub_f32 v16, v16, v20")
        for j in range(4):
            pk(a, "mul", SC + 2 * j, [SC + 2 * j, vbc(17)])
        for j in range(4):
            pk(a, "fma", SH + 2 * j, [SC + 2 * j, vbc(16), SH + 2 * j], neg=[1, 0, 0])

    def build(self):
        a, cfg = self.a, self.cfg
        name = "standalone__adm_resblock__diffusion_kernel"
        a.raw(".globl %s" % name)
        a.raw(".p2align 8")
        a.raw(".type %s,@function" % name)
        a.label(name)
        a("s_cmp_ge_u32 s2, 256")
        a("s_cbranch_scc1 L_end")
        a("s_load_dwordx16 s[64:79], s[0:1], 0")
        a("s_load_dwordx8 s[80:87], s[0:1], 64")
        a("v_lshrrev_b32 v1, 6, v0")
        a("v_and_b32 v2, 63, v0")
        a("v_readfirstlane_b32 s%d, v1" % S_WV)
        a("v_lshlrev_b32 v6, 4, v2")
        a("v_and_b32 v8, 15, v2")
        a("v_lshrrev_b32 v9, 4, v2")
        a("v_mov_b32 v14, 0")
        if cfg.get("cpf", 1):
            a("s_getpc_b64 s[12:13]")
            a.label("L_pc")
            a("s_sub_u32 s12, s12, L_pc-%s" % name)
            a("s_subb_u32 s13, s13, 0")
            a("s_mov_b32 s14, L_codeend-%s" % name)
            a("s_mov_b32 s15, 0x20000")
            a("s_lshr_b32 s3, s2, 3")
            a("s_lshl_b32 s4, s%d, 4" % S_WV)
            a("s_add_u32 s3, s3, s4")
            a("s_and_b32 s3, s3, 31")
            a("s_lshl_b32 s3, s3, 10")
            a("s_cmp_lt_u32 s%d, 6" % S_WV)
            a("s_cbranch_scc1 L_nocpf")
            a("buffer_load_dwordx4 v[104:107], v6, s[12:15], s3 offen")
            a.label("L_nocpf")
        a("s_and_b32 s3, s2, 1")
        a("s_lshl_b32 s3, s3, 2")
        a("s_bfe_u32 s4, s2, 0x20003")
        a("s_add_u32 s%d, s3, s4" % S_OCT)
        a("s_bfe_u32 s3, s2, 0x20001")
        a("s_lshl_b32 s3, s3, 3")
        a("s_lshr_b32 s4, s2, 5")
        a("s_add_u32 s%d, s3, s4" % S_PT)
        a("s_lshr_b32 s%d, s%d, 4" % (S_B, S_PT))
        a("s_and_b32 s%d, s%d, 15" % (S_RT, S_PT))
        a("v_and_b32 v3, 3, v2")
        a("v_lshrrev_b32 v4, 2, v2")
        a("v_lshlrev_b32 v5, 16, v3")
        a("v_lshl_add_u32 v5, v4, 3, v5")
        a("s_lshl_b32 s47, s%d, 22" % S_B)
        a("s_lshl_b32 s3, s%d, 19" % S_OCT)
        a("s_add_u32 s47, s47, s3")
        a("s_lshl_b32 s3, s%d, 9" % S_RT)
        a("s_add_u32 s47, s47, s3")
        a("s_lshr_b32 s45, s%d, 2" % S_WV)
        a("s_and_b32 s46, s%d, 3" % S_WV)
        if cfg.get("stamp"):
            a("s_mov_b32 s98, 0")
            a("v_mov_b32 v15, 0")
        self.stamp()
        a("s_memrealtime s[4:5]")
        a("s_waitcnt lgkmcnt(0)")
        a("s_lshl_b32 s3, s2, 3")
        a("s_add_u32 s3, s3, s%d" % S_WV)
        a("s_cmp_lg_u32 s3, 7")
        a("s_cbranch_scc1 L_nononce")
        srd(a, 32, P_DBG, 0, 256)
        a("s_or_b32 s4, s4, 1")
        a("v_mov_b32 v13, s4")
        a("s_mov_b64 exec, 1")
        a("buffer_store_dword v13, v14, s[32:35], 0 offen sc1")
        a("s_mov_b64 exec, -1")
        a.label("L_nononce")
        srd(a, 8, P_X, 0, IMG_BYTES)
        a("s_lshl_b32 s3, s45, 18")
        a("s_lshl_b32 s4, s46, 7")
        a("s_add_u32 s3, s3, s4")
        a("s_add_u32 s3, s3, s47")
        XR = 48
        for j in range(8):
            a("buffer_load_dwordx2 v[%d:%d], v5, s[8:11], s3 offen%s" % (XR + 2 * j, XR + 2 * j + 1, cfg.get("xf", " nt")))
            if j < 7:
                a("s_add_u32 s3, s3, 8192")
        a("s_add_u32 s6, s%d, s47" % P_X)
        a("s_addc_u32 s7, s%d, 0" % (P_X + 1))
        a("s_load_dword s48, s[6:7], 0")
        srd(a, 24, P_G1, 0, 1024)
        srd(a, 28, P_BE1, 0, 1024)
        a("s_lshl_b32 s3, s%d, 7" % S_OCT)
        a("s_lshl_b32 s4, s45, 6")
        a("s_add_u32 s3, s3, s4")
        a("v_lshlrev_b32 v10, 4, v3")
        a("buffer_load_dwordx4 v[64:67], v10, s[24:27], s3 offen")
        a("buffer_load_dwordx4 v[68:71], v10, s[28:31], s3 offen")
        srd(a, SRD_SY, P_WS, WS_SYNC, 0x20000)
        a("s_mov_b32 s%d, %s" % (S_NL2E, fx(-LOG2E)))
        a("s_mov_b32 s%d, 0" % S_PHASE)
        a("s_mov_b32 s%d, 0" % S_TAG)
        RR = 112
        a("s_barrier")
        a("s_lshl_b32 s36, s%d, 2" % S_OCT)
        a("s_lshr_b32 s3, s%d, 3" % S_PT)
        a("s_add_u32 s36, s36, s3")
        a("s_and_b32 s37, s%d, 7" % S_PT)
        a("s_cmp_eq_u32 s%d, 0" % S_WV)
        a("s_cbranch_scc1 L_r0")
        a("s_cmp_eq_u32 s%d, 1" % S_WV)
        a("s_cbranch_scc1 L_r1")
        a("s_cmp_lt_u32 s%d, 4" % S_WV)
        a("s_cbranch_scc1 L_rw")
        if cfg.get("w2p0", 2) == 2:
            a("s_cmp_gt_u32 s%d, 5" % S_WV)
            a("s_cbranch_scc1 L_rw2")
        a("s_cmp_lg_u32 s%d, 4" % S_WV)
        a("s_cbranch_scc1 L_rnone")
        a("s_bitcmp1_b32 s%d, 0" % S_PT)
        a("s_cbranch_scc1 L_rnone")
        a("s_lshr_b32 s49, s%d, 1" % S_PT)
        a("s_mul_i32 s3, s49, 48")
        a("v_lshrrev_b32 v10, 3, v2")
        a("v_mul_u32_u24 v10, 6, v10")
        a("v_add_u32 v10, s3, v10")
        a("v_lshlrev_b32 v11, 1, v10")
        a("v_lshlrev_b32 v10, 10, v10")
        a("v_and_b32 v12, 7, v2")
        a("v_lshl_add_u32 v10, v12, 4, v10")
        a("v_add_u32 v12, 4096, v10")
        a("s_lshl_b32 s3, s%d, 7" % S_OCT)
        srd(a, 12, P_TEMB, 0, 2 * 768 * 2)
        srd(a, 16, P_WEMB, 0, 768 * 512 * 2)
        a("buffer_load_dwordx3 v[%d:%d], v11, s[12:15], 0 offen" % (RR, RR + 2))
        a("buffer_load_dwordx3 v[%d:%d], v11, s[12:15], 0 offen offset:1536" % (RR + 4, RR + 6))
        for i in range(6):
            a("buffer_load_dwordx4 v[%d:%d], v%d, s[16:19], s3 offen offset:%d nt" %
              (RR + 8 + 4 * i, RR + 11 + 4 * i, 10 if i < 4 else 12, (i % 4) * 1024))
        a("s_waitcnt vmcnt(8)")
        a("s_branch L_rdone")
        a.label("L_rw")
        a("s_sub_u32 s51, s%d, 2" % S_WV)
        a("s_lshl_b32 s50, s37, 1")
        a("s_add_u32 s50, s50, s51")
        a("s_mul_i32 s51, s51, 9216")
        a("s_add_u32 s51, s51, %d" % L_W1)
        self.w_dma(P_W1, 36, 50, 51)
        a("s_waitcnt vmcnt(9)")
        a("s_branch L_rdone")
        if cfg.get("w2p0", 2) == 2:
            a.label("L_rw2")
            a("s_sub_u32 s51, s%d, 6" % S_WV)
            a("s_lshl_b32 s50, s37, 1")
            a("s_add_u32 s50, s50, s51")
            a("s_mul_i32 s51, s51, 9216")
            a("s_add_u32 s51, s51, %d" % L_W2)
            a("s_waitcnt vmcnt(%d)" % cfg.get("w2wait", 10))
            self.w_dma(P_W2, 36, 50, 51)
            a("s_waitcnt vmcnt(9)")
            a("s_branch L_rdone")
        a.label("L_r1")
        srd(a, 12, P_G2, 0, 1024)
        srd(a, 16, P_BE2, 0, 1024)
        a("buffer_load_dwordx4 v[%d:%d], v6, s[24:27], 0 offen" % (RR, RR + 3))
        a("buffer_load_dwordx4 v[%d:%d], v6, s[28:31], 0 offen" % (RR + 4, RR + 7))
        a("buffer_load_dwordx4 v[%d:%d], v6, s[12:15], 0 offen" % (RR + 8, RR + 11))
        a("buffer_load_dwordx4 v[%d:%d], v6, s[16:19], 0 offen" % (RR + 12, RR + 15))
        a("s_waitcnt vmcnt(4)")
        a("s_branch L_rdone")
        a.label("L_r0")
        srd(a, 32, P_DBG, 0, 256)
        a("s_waitcnt vmcnt(%d)" % cfg.get("nwait", 8))
        a("buffer_load_dword v%d, v14, s[32:35], 0 offen sc1" % RR)
        a("s_waitcnt vmcnt(1)")
        a("s_branch L_rdone")
        a.label("L_rnone")
        a("s_waitcnt vmcnt(0)")
        a.label("L_rdone")
        self.stamp()
        XF = 72

        def stash_write():
            a("s_mul_i32 s3, s45, %d" % (4 * 4224))
            a("s_lshl_b32 s4, s46, 7")
            a("s_add_u32 s3, s3, s4")
            a("s_add_u32 s3, s3, %d" % L_XS)
            a("v_mul_u32_u24 v10, 4224, v3")
            a("v_lshl_add_u32 v10, v4, 3, v10")
            a("v_add_u32 v10, s3, v10")
            for j in range(8):
                a("ds_write_b64 v10, v[%d:%d] offset:%d" % (XR + 2 * j, XR + 2 * j + 1, j * 512))

        for j in range(8):
            for d in range(2):
                unpack(a, XF + 4 * j + 2 * d, XF + 4 * j + 2 * d + 1, XR + 2 * j + d)
        a("s_waitcnt lgkmcnt(0)")
        a("s_lshl_b32 s48, s48, 16")
        a("s_mov_b32 s49, s48") if False else None
        a("v_mov_b32 v20, s48")
        for i in range(16):
            pk(a, "add", XF + 2 * i, [XF + 2 * i, sbc(48)], neg=[0, 1])
        self.local_stats([XF + 2 * i for i in range(16)], "v[20:21]")
        a("s_and_b32 s3, s%d, 6" % S_WV)
        a("s_cmp_lg_u32 s3, 2")
        a("s_cbranch_scc1 L_nww")
        a("s_waitcnt vmcnt(0)")
        a.label("L_nww")
        a("s_barrier")
        a("s_cmp_eq_u32 s%d, 0" % S_WV)
        a("s_cbranch_scc1 L_s0")
        stash_write()
        a("s_cmp_eq_u32 s%d, 4" % S_WV)
        a("s_cbranch_scc1 L_semb")
        self.w_pack_part(WS_W1, 36, 37, L_W1, 144, defer=True)
        a("s_cmp_eq_u32 s%d, 1" % S_WV)
        a("s_cbranch_scc1 L_s1")
        a("s_branch L_sdone")
        a.label("L_semb")
        a("s_waitcnt vmcnt(0) lgkmcnt(0)")
        a("s_bitcmp1_b32 s%d, 0" % S_PT)
        a("s_cbranch_scc1 L_sdone")
        E = 148
        for b in range(2):
            for d in range(3):
                unpack(a, E + 6 * b + 2 * d, E + 6 * b + 2 * d + 1, RR + 4 * b + d)
        silu_group(a, list(range(E, E + 12)), list(range(E + 12, E + 24)))
        EA = E + 24
        for i in range(6):
            for k in range(4):
                unpack(a, E + 12, E + 13, RR + 8 + 4 * i + k)
                for h in range(2):
                    j = 2 * k + h
                    for b in range(2):
                        if i == 0:
                            a("v_mul_f32 v%d, v%d, v%d" % (EA + 8 * b + j, E + 12 + h, E + 6 * b + i))
                        else:
                            a("v_fmac_f32 v%d, v%d, v%d" % (EA + 8 * b + j, E + 12 + h, E + 6 * b + i))
        a("s_nop 1")
        for j in range(8):
            a("v_permlane32_swap_b32 v%d, v%d" % (EA + j, EA + 8 + j))
        for j in range(8):
            a("v_add_f32 v%d, v%d, v%d" % (EA + j, EA + j, EA + 8 + j))
        a("s_nop 1")
        for j in range(4):
            a("v_permlane16_swap_b32 v%d, v%d" % (EA + j, EA + 4 + j))
        for j in range(4):
            a("v_add_f32 v%d, v%d, v%d" % (EA + j, EA + j, EA + 4 + j))
        a("s_nop 1")
        for j in range(4):
            a("v_add_f32_dpp v%d, v%d, v%d row_ror:8 row_mask:0xf bank_mask:0xf" % (EA + j, EA + j, EA + j))
        srd(a, 12, P_WS, WS_EMB, 65536)
        a("v_lshrrev_b32 v10, 5, v2")
        a("v_lshlrev_b32 v10, 11, v10")
        a("v_and_b32 v11, 7, v2")
        a("v_lshl_add_u32 v10, v11, 5, v10")
        a("v_and_b32 v11, 16, v2")
        a("v_add_u32 v10, v10, v11")
        a("s_lshl_b32 s3, s49, 12")
        a("s_lshl_b32 s4, s%d, 8" % S_OCT)
        a("s_add_u32 s3, s3, s4")
        a("buffer_store_dwordx4 v[%d:%d], v10, s[12:15], s3 offen sc1" % (EA, EA + 3))
        a("s_branch L_sdone")
        a.label("L_s1")
        a("s_waitcnt vmcnt(0)")
        a("s_mov_b32 s3, 0x7fff7fff")
        for arr in range(4):
            r = RR + 4 * arr
            for k in range(4):
                a("v_and_b32 v%d, s3, v%d" % (r + k, r + k))
            a("v_pk_max_u16 v%d, v%d, v%d" % (r, r, r + 1))
            a("v_pk_max_u16 v%d, v%d, v%d" % (r + 2, r + 2, r + 3))
            a("v_pk_max_u16 v%d, v%d, v%d" % (r, r, r + 2))
            a("v_lshrrev_b32 v%d, 16, v%d" % (r + 1, r))
            a("v_and_b32 v%d, 0xffff, v%d" % (r, r))
            a("v_max_u32 v%d, v%d, v%d" % (r, r, r + 1))
        dpp_reduce(a, [RR, RR + 4, RR + 8, RR + 12], 6, "v_max_u32_dpp")
        for k in range(2):
            g, bt = RR + 8 * k, RR + 8 * k + 4
            a("v_lshrrev_b32 v%d, 7, v%d" % (g, g))
            a("v_lshrrev_b32 v%d, 7, v%d" % (bt, bt))
            a("v_add_u32 v%d, 10, v%d" % (g, g))
            a("v_max_u32 v%d, v%d, v%d" % (g, g, bt))
            a("v_max_u32 v%d, 14, v%d" % (g, g))
            a("v_min_u32 v%d, 0x10a, v%d" % (g, g))
            a("v_subrev_u32 v%d, 13, v%d" % (g, g))
            a("v_lshlrev_b32 v%d, 23, v%d" % (RR + 16 + k, g))
        a("v_mov_b32 v12, %d" % (L_BC + 8))
        a("s_mov_b32 exec_lo, 0")
        a("s_mov_b32 exec_hi, 0x80000000")
        a("ds_write_b64 v12, v[%d:%d]" % (RR + 16, RR + 17))
        a("s_mov_b64 exec, -1")
        a("s_waitcnt lgkmcnt(0)")
        a("s_branch L_sdone")
        a.label("L_s0")
        a("s_mov_b32 s5, 0")
        a.label("L_nonce")
        a("s_waitcnt vmcnt(0)")
        a("v_readfirstlane_b32 s%d, v%d" % (S_TAG, RR))
        a("s_nop 3")
        a("s_cmp_lg_u32 s%d, 0" % S_TAG)
        a("s_cbranch_scc1 L_nonced")
        a("s_add_u32 s5, s5, 1")
        a("s_cmp_lt_u32 s5, 0x10000")
        a("s_cbranch_scc0 L_nonced")
        a("s_sleep 4")
        srd(a, 32, P_DBG, 0, 256)
        a("buffer_load_dword v%d, v14, s[32:35], 0 offen sc1" % RR)
        a("s_branch L_nonce")
        a.label("L_nonced")
        a("v_mov_b32 v12, %d" % (L_BC + 16))
        a("v_mov_b32 v13, s%d" % S_TAG)
        a("ds_write_b32 v12, v13")
        self.granule_slot(SY_GA)
        self.group_sync("v20", 50, 51, filler=stash_write)
        a.label("L_sdone")
        if cfg.get("stamp") == 3:
            self.stamp()
        a("s_barrier")
        if cfg.get("stamp") == 3:
            self.stamp()
        a("v_mov_b32 v12, %d" % L_BC)
        a("ds_read_b128 v[16:19], v12")
        a("ds_read_b32 v22, v12 offset:16")
        a("s_cmp_eq_u32 s46, 0")
        a("s_cbranch_scc1 L_nop1")
        self.w_pack_store(WS_W1, 144)
        if cfg.get("w2p0", 2) == 1:
            a("s_branch L_nop1b")
        a.label("L_nop1")
        if cfg.get("w2p0", 2) == 1:
            a("s_lshl_b32 s50, s37, 1")
            a("s_add_u32 s50, s50, s45")
            a("s_mul_i32 s51, s45, 9216")
            a("s_add_u32 s51, s51, %d" % L_W2)
            self.w_dma(P_W2, 36, 50, 51)
            a.label("L_nop1b")
        srd(a, 8, P_WS, WS_A1, IMG_BYTES)
        a("v_bfe_u32 v10, v4, 2, 1")
        a("v_lshlrev_b32 v10, 1, v10")
        a("v_xor_b32 v10, v10, v3")
        a("v_lshlrev_b32 v10, 4, v10")
        a("v_lshl_add_u32 v10, v4, 6, v10")
        a("s_lshl_b32 s47, s%d, 4" % S_B)
        a("s_lshl_b32 s3, s%d, 1" % S_OCT)
        a("s_add_u32 s47, s47, s3")
        a("s_add_u32 s47, s47, s45")
        a("s_lshl_b32 s47, s47, 18")
        a("s_lshl_b32 s3, s%d, 14" % S_RT)
        a("s_add_u32 s47, s47, s3")
        a("s_lshl_b32 s3, s46, 12")
        a("s_add_u32 s47, s47, s3")
        self.norm_coeffs(64, 68, 24, 32)
        a("v_readfirstlane_b32 s%d, v18" % S_ISA)
        a("v_readfirstlane_b32 s%d, v19" % S_ISA2)
        a("v_readfirstlane_b32 s%d, v22" % S_TAG)
        for d in range(2):
            prs = [XF + 4 * j + 2 * d for j in range(8)]
            tm = [40 + 2 * j for j in range(8)]
            for j in range(8):
                pk(a, "fma", prs[j], [prs[j], vbc(24 + j), vbc(32 + j)])
            silu_pk(a, prs, tm)
            for h in range(2):
                i = 2 * d + h
                o = 56 + 4 * i
                for k in range(4):
                    a("v_cvt_pk_f16_f32 v%d, v%d, v%d" % (o + k, prs[2 * k] + h, prs[2 * k + 1] + h))
                a("buffer_store_dwordx4 v[%d:%d], v10, s[8:11], s47 offen offset:%d sc1" % (o, o + 3, i * 1024))
        if cfg.get("stamp") == 3:
            self.stamp()
        a("s_cmp_lt_u32 s%d, 4" % S_WV)
        a("s_cbranch_scc1 L_nores")
        a("s_bfe_u32 s3, s%d, 0x10001" % S_WV)
        a("s_lshl_b32 s3, s3, 11")
        a("s_and_b32 s4, s%d, 1" % S_WV)
        a("s_lshl_b32 s4, s4, 8")
        a("s_add_u32 s3, s3, s4")
        a("s_add_u32 s3, s3, %d" % L_XS)
        a("v_mul_u32_u24 v10, 4224, v9")
        a("v_lshl_add_u32 v10, v8, 3, v10")
        a("v_add_u32 v10, s3, v10")
        a("v_add_u32 v11, %d, v10" % (4 * 4224))
        for j in range(4):
            a("ds_read2_b64 v[%d:%d], v11 offset0:%d offset1:%d" % (208 + 4 * j, 211 + 4 * j, j * 64, j * 64 + 16))
            a("ds_read2_b64 v[%d:%d], v10 offset0:%d offset1:%d" % (224 + 4 * j, 227 + 4 * j, j * 64, j * 64 + 16))
        a("s_waitcnt lgkmcnt(0)")
        a.label("L_nores")
        self.flag_list(SY_FB, True)
        if cfg.get("stamp") == 3:
            self.stamp()

        a.label("L_conv")
        VV = [3, 4, 5]
        VFR, USET, ACC, EXT = 16, 64, 128, 96
        a("s_waitcnt vmcnt(0)")
        self.stamp()
        a("s_barrier")
        a("s_sub_u32 s%d, s%d, 0x800000" % (S_HISA, S_ISA))
        a("s_lshl_b32 s3, s%d, 23" % S_PHASE)
        a("s_cmp_ge_u32 s%d, 4" % S_WV)
        a("s_cbranch_scc1 L_prod")

        def ureg(st, blk):
            return USET + 16 * st + 4 * blk

        def vreg_(rp, k):
            return VFR + 4 * (rp * 6 + k)

        def areg(blk, i):
            return ACC + 4 * (blk * 8 + i)

        a("s_lshl_b32 s4, s%d, 2" % S_OCT)
        a("s_add_u32 s4, s4, s%d" % S_WV)
        a("s_mul_i32 s4, s4, %d" % (48 * 4096))
        a("s_add_u32 s3, s3, s4")
        a("s_add_u32 s3, s3, 0x%x" % WS_W1)
        a("s_add_u32 s16, s%d, s3" % P_WS)
        a("s_addc_u32 s17, s%d, 0" % (P_WS + 1))
        a("s_mov_b32 s18, 0x%x" % (48 * 4096))
        a("s_mov_b32 s19, 0x20000")
        a("s_mov_b32 s52, 0")
        a("s_mul_i32 s3, s%d, %d" % (S_WV, RS))
        for sh in range(3):
            a("v_add_u32 v11, %d, v8" % (15 + sh))
            a("v_bfe_u32 v12, v11, 2, 1")
            a("v_lshlrev_b32 v12, 1, v12")
            a("v_xor_b32 v12, v12, v9")
            a("v_lshlrev_b32 v12, 4, v12")
            a("v_lshl_add_u32 v12, v8, 6, v12")
            a("v_add_u32 v%d, s3, v12" % VV[sh])
        a("v_bfe_u32 v11, v2, 2, 3")
        a("v_mul_u32_u24 v11, %d, v11" % XPITCH)
        a("v_and_b32 v12, 3, v2")
        a("v_lshl_add_u32 v11, v12, 4, v11")
        a("v_add_u32 v11, s3, v11")
        for r in range(ACC, ACC + 128):
            a("v_mov_b32 v%d, 0" % r)
        a("ds_write_b128 v11, v[%d:%d] offset:1024" % (ACC, ACC + 3))
        a("v_add_u32 v7, s3, v6")
        a("s_waitcnt lgkmcnt(0)")
        a("s_cmp_lg_u32 s%d, 0" % S_PHASE)
        a("s_cbranch_scc1 L_uerly")
        a("s_barrier")
        a.label("L_uerly")

        def uload(st, blk):
            r = ureg(st, blk)
            return "buffer_load_dwordx4 v[%d:%d], v6, s[16:19], s52 offen offset:%d sc1" % (r, r + 3, blk * 1024)

        def vread(rp, k, buf):
            r = vreg_(rp, k)
            sh, off = {0: (0, POFF[3] - 64), 5: (2, POFF[0] + 64)}.get(k, (1, POFF[(k - 1) % 4]))
            return "ds_read_b128 v[%d:%d], v%d offset:%d" % (r, r + 3, VV[sh], buf * VB + rp * XPITCH + off)

        def mfma(st, blk, g, dx):
            rp, f = g % 2, g // 2
            d, u, x = areg(blk, rp * 4 + f), ureg(st, blk), vreg_(rp, f + dx)
            return "v_mfma_f32_16x16x32_bf16 v[%d:%d], v[%d:%d], v[%d:%d], v[%d:%d]" % (d, d + 3, u, u + 3, x, x + 3, d, d + 3)

        for st in range(4 if "u" in cfg.get("x", "") else 3):
            for blk in range(4):
                a(uload(st, blk))
            a("s_add_u32 s52, s52, 4096")
        a("s_cmp_eq_u32 s%d, 0" % S_PHASE)
        a("s_cbranch_scc1 L_ulate")
        a("s_barrier")
        a.label("L_ulate")
        a("s_barrier")
        self.stamp()
        for k in range(4):
            for rp in range(2):
                a(vread(rp, k, 0))
        a("s_mov_b32 s53, 0")
        a.raw(".p2align 6")
        a.label("L_loop")
        upos = cfg.get("upos", (0, 2, 4, 6))
        def dump(g, blk):
            i = (g % 2) * 4 + g // 2
            r = areg(blk, i)
            return "ds_write_b128 v7, v[%d:%d] offset:%d" % (r, r + 3, (blk * 8 + i) * FS)

        for s in range(12):
            st, dx, buf = s % 4, s % 3, s // 3
            nbuf = (buf + 1) % 4
            rd = {}
            if dx == 0:
                rd[(6, 0)] = vread(0, 4, buf)
                rd[(7, 0)] = vread(1, 4, buf)
            elif dx == 1:
                rd[(0, 0)] = vread(0, 5, buf)
                rd[(1, 0)] = vread(1, 5, buf)
            else:
                for g, k in ((1, 0), (2, 1), (3, 2), (5, 3)):
                    rd[(g, 0)] = vread(0, k, nbuf)
                    rd[(g, 2)] = vread(1, k, nbuf)
            if s == 11:
                a("s_cbranch_scc1 L_last")
            for g in range(8):
                if g == 0:
                    a("s_waitcnt vmcnt(8) lgkmcnt(4)" if dx == 0 else "s_waitcnt vmcnt(8)")
                if (dx == 0 and g == 4) or (dx == 1 and g == 6):
                    a("s_waitcnt lgkmcnt(0)")
                for blk in range(4):
                    a(mfma(st, blk, g, dx))
                    if (g, blk) in rd and "d" not in cfg.get("x", ""):
                        a(rd[(g, blk)])
                    if blk == 2 and g == 0 and dx == 2:
                        a("s_barrier")
                    if blk == 1 and g in upos and "u" not in cfg.get("x", ""):
                        a(uload((s + 3) % 4, upos.index(g)))
                    if blk == 2 and g == 7:
                        a("s_add_u32 s52, s52, 4096")
                    if blk == 2 and g == 7 and s == 10:
                        a("s_cmp_eq_u32 s53, 3")
                    if blk == 0 and g == 7 and s == 11:
                        a("s_add_u32 s53, s53, 1")
        a("s_branch L_loop")
        a.label("L_last")
        a("s_waitcnt vmcnt(8)")
        for g in range(8):
            for blk in range(4):
                a(mfma(3, blk, g, 2))
                if g >= 2:
                    a(dump(g - 2, blk))
        self.stamp()
        for blk in range(4):
            a(dump(6, blk))
        a("s_nop 3")
        for blk in range(4):
            a(dump(7, blk))
        a("s_waitcnt vmcnt(0)")
        self.epi_loads()
        a("s_waitcnt lgkmcnt(0)")
        a("s_branch L_epi")

        a.label("L_prod")
        D = 2
        RAW, TMP, OUT = 24, 72, 88
        a("s_lshl_b32 s4, s%d, 22" % S_B)
        a("s_add_u32 s3, s3, s4")
        a("s_add_u32 s16, s%d, s3" % P_WS)
        a("s_addc_u32 s17, s%d, 0" % (P_WS + 1))
        a("s_mov_b32 s18, 0x%x" % (IMG_BYTES // 2))
        a("s_mov_b32 s19, 0x20000")
        a("s_sub_u32 s4, s%d, 4" % S_WV)
        a("s_lshl_b32 s4, s4, 10")
        a("v_add_u32 v3, s4, v6")
        a("s_cmp_eq_u32 s%d, 7" % S_WV)
        a("s_cselect_b32 s4, 0, s4")
        a("s_add_u32 s4, s4, 1088")
        a("s_cmp_eq_u32 s%d, 4" % S_WV)
        a("s_cselect_b32 s4, 0, s4")
        a("v_add_u32 v4, s4, v6")
        a("v_add_u32 v5, %d, v4" % (2 * RS))
        a("s_lshl_b32 s3, s%d, 14" % S_RT)
        for r in range(6):
            a("s_add_u32 s%d, s3, 0x%x" % (52 + r, ((r - 1) * 4096) & 0xFFFFFFFF))
        a("s_cmp_eq_u32 s%d, 0" % S_RT)
        a("s_cselect_b32 s52, 0x40000000, s52")
        a("s_cmp_eq_u32 s%d, 15" % S_RT)
        a("s_cselect_b32 s57, 0x40000000, s57")
        a("s_cmp_lg_u32 s%d, 4" % S_WV)
        a("s_cbranch_scc1 L_nopoll")
        self.flag_and_poll(50, 23)
        a.label("L_nopoll")
        a("s_barrier")

        def rawload(st):
            for r in range(6):
                d = RAW + 24 * st + 4 * r
                a("buffer_load_dwordx4 v[%d:%d], v3, s[16:19], s%d offen sc1" % (d, d + 3, 52 + r))
            a("v_add_u32 v3, 0x40000, v3")

        COMB = [(0, 2, -1), (1, 2, 1), (2, 1, -1), (1, 3, -1)]

        def produce(st, buf):
            if buf in (1, 2) and not cfg.get("w2p0", 2):
                l1, l2 = a.nl("pw"), a.nl("pw")
                a("s_cmp_lg_u32 s38, 0")
                a("s_cbranch_scc1 %s" % l1)
                a("s_waitcnt vmcnt(6)")
                a.label(l1)
                a("s_waitcnt vmcnt(15)")
            else:
                a("s_waitcnt vmcnt(6)")
            for rp in range(2):
                for xi in range(4):
                    ra, rb, sg = COMB[xi]
                    ra, rb = RAW + 24 * st + 4 * (ra + 2 * rp), RAW + 24 * st + 4 * (rb + 2 * rp)
                    o = OUT + 4 * (rp * 4 + xi)
                    t = TMP + 8 * (xi % 2)
                    X = cfg.get("x", "")
                    lsk = a.nl("xs")
                    if "v" in X:
                        a("s_cmp_lg_u32 s58, 0")
                        a("s_cbranch_scc1 %s" % lsk)
                    for d in range(4):
                        for h in range(2):
                            a("v_fma_mix_f32 v%d, v%d, 1.0, %sv%d op_sel:[%d,0,%d] op_sel_hi:[1,0,1]" %
                              (t + 2 * d + h, ra + d, "-" if sg < 0 else "", rb + d, h, h))
                    for d in range(4):
                        a("v_cvt_pk_bf16_f32 v%d, v%d, v%d" % (o + d, t + 2 * d, t + 2 * d + 1))
                    if "w" not in X:
                        a.label(lsk)
                    a("ds_write_b128 v%d, v[%d:%d] offset:%d" %
                      (4 if xi < 2 else 5, o, o + 3, (xi & 1) * RS + buf * VB + rp * XPITCH))
                    if "w" in X:
                        a.label(lsk)
            if "r" not in cfg.get("x", ""):
                rawload(st)
            if buf == 0 and not cfg.get("w2p0", 2):
                l1 = a.nl("pd")
                a("s_mov_b32 s38, 0")
                a("s_cmp_lg_u32 s58, s39")
                a("s_cbranch_scc1 %s" % l1)
                a("s_mov_b32 s38, 1")
                a("s_sub_u32 s51, s%d, 4" % S_WV)
                a("s_lshl_b32 s50, s37, 1")
                a("s_add_u32 s50, s50, s51")
                a("s_mul_i32 s51, s51, 9216")
                a("s_add_u32 s51, s51, %d" % L_W2)
                self.w_dma(P_W2, 36, 50, 51)
                a.label(l1)
            a("s_waitcnt lgkmcnt(0)")

        for st in range(D):
            rawload(st)
        a("s_mov_b32 s58, 0")
        a("s_cmp_lt_u32 s%d, 6" % S_WV)
        a("s_cselect_b32 s39, %d, 99" % cfg.get("w2it", 1))
        a("s_cmp_lg_u32 s%d, 0" % S_PHASE)
        a("s_cselect_b32 s39, 99, s39")
        a.label("L_ploop")
        for j in range(4):
            produce(j % D, j)
            a("s_barrier")
        a("s_add_u32 s58, s58, 1")
        a("s_cmp_lt_u32 s58, 4")
        a("s_cbranch_scc1 L_ploop")
        a("s_waitcnt vmcnt(0)")
        a("s_cmp_eq_u32 s%d, 0" % S_PHASE)
        a("s_cbranch_scc1 L_pph0")
        a("s_lshl_b32 s3, s%d, 12" % S_WV)
        a("s_add_u32 s3, s3, %d" % (L_W2 - 4 * 4096))
        a("v_add_u32 v10, s3, v6")
        for k in range(4):
            a("ds_write_b128 v10, v[%d:%d] offset:%d" % (224 + 4 * k, 227 + 4 * k, k * 1024))
        a("s_waitcnt lgkmcnt(0)")
        a("s_branch L_pextra_done")
        a.label("L_pph0")
        a("s_cmp_eq_u32 s%d, 4" % S_WV)
        a("s_cbranch_scc1 L_pemb")
        a("s_mov_b32 s38, 0")
        if cfg.get("nou2"):
            a("s_branch L_pextra_done")
        a.label("L_pu2")
        self.w_pack_part(WS_W2, 36, 37, L_W2, 24, 38)
        a("s_add_u32 s38, s38, 1")
        a("s_cmp_lt_u32 s38, 2")
        a("s_cbranch_scc1 L_pu2")
        a("s_branch L_pextra_done")
        a.label("L_pemb")
        srd(a, 12, P_WS, WS_EMB, 65536)
        a("s_lshl_b32 s3, s%d, 11" % S_B)
        a("s_lshl_b32 s4, s%d, 8" % S_OCT)
        a("s_add_u32 s3, s3, s4")
        a("v_lshlrev_b32 v10, 2, v2")
        for er in range(16):
            a("buffer_load_dword v%d, v10, s[12:15], s3 offen sc1" % (24 + er))
            if er < 15:
                a("s_add_u32 s3, s3, 4096")
        a("s_waitcnt vmcnt(0)")
        for k in range(8):
            a("v_add_f32 v%d, v%d, v%d" % (24 + k, 24 + k, 32 + k))
        for k in range(4):
            a("v_add_f32 v%d, v%d, v%d" % (24 + k, 24 + k, 28 + k))
        a("v_add_f32 v24, v24, v26")
        a("v_add_f32 v25, v25, v27")
        a("v_add_f32 v24, v24, v25")
        a("v_add_u32 v10, %d, v10" % L_EMB)
        a("ds_write_b32 v10, v24")
        a("s_waitcnt lgkmcnt(0)")
        a.label("L_pextra_done")
        self.epi_loads(warm=True)

        a.label("L_epi")
        a("s_barrier")
        self.stamp()
        M, Y = 112, 176
        a("s_cmp_lg_u32 s%d, 0" % S_PHASE)
        a("s_cbranch_scc1 L_epi2")
        a("s_and_b32 s59, s%d, 1" % S_WV)
        a("s_lshr_b32 s3, s%d, 1" % S_WV)
        a("s_lshl_b32 s4, s59, 4")
        a("s_lshl_b32 s3, s3, 1")
        a("s_add_u32 s4, s4, s3")
        a("s_mul_i32 s4, s4, %d" % FS)
        a("v_add_u32 v10, s4, v6")
        a("v_add_u32 v11, %d, v10" % (2 * RS))
        a("v_mov_b32 v12, 0")
        a("ds_read_b32 v16, v12")
        a("ds_read_b32 v17, v12 offset:%d" % RS)
        a("v_mov_b32 v12, %d" % (2 * RS))
        a("ds_read_b32 v18, v12")
        a("s_lshl_b32 s3, s59, 7")
        a("s_add_u32 s3, s3, %d" % L_EMB)
        a("v_lshl_add_u32 v12, v9, 5, s3")
        a("ds_read_b128 v[48:51], v12")
        a("ds_read_b128 v[52:55], v12 offset:16")
        for u in range(2):
            for xi in range(4):
                for h in range(2):
                    r = M + 4 * ((u * 4 + xi) * 2 + h)
                    a("ds_read_b128 v[%d:%d], v%d offset:%d" %
                      (r, r + 3, 10 if xi < 2 else 11, (xi & 1) * RS + (h * 8 + u) * FS))
        a("s_waitcnt lgkmcnt(8)")
        a("v_add_f32 v17, v17, v18")
        a("v_fma_f32 v20, v17, 0.5, v16")
        a("v_mul_f32 v20, s%d, v20" % S_ISA)
        for j in range(4):
            pk(a, "add", 48 + 2 * j, [48 + 2 * j, vbc(20)], neg=[0, 1])
        for u in range(2):
            if u == 1:
                a("s_waitcnt lgkmcnt(0)")
            for j in range(0, 8, 2):
                m = [M + 4 * ((u * 4 + xi) * 2 + j // 4) + j % 4 for xi in range(4)]
                ye, yo = Y + u * 16 + j, Y + u * 16 + 8 + j
                pk(a, "add", ye, [m[1], m[2]])
                pk(a, "add", yo, [m[1], m[2]], neg=[0, 1])
                pk(a, "fma", m[0], [m[0], sbc(S_ISA), 48 + j])
                pk(a, "fma", m[3], [m[3], sbc(S_ISA), 48 + j], neg=[1, 0, 0])
                pk(a, "fma", ye, [ye, sbc(S_HISA), m[0]])
                pk(a, "fma", yo, [yo, sbc(S_HISA), m[3]])
        self.local_stats([Y + 2 * i for i in range(16)], "v[20:21]")
        a("s_waitcnt vmcnt(0)")
        a("s_barrier")
        a("s_cmp_lg_u32 s%d, 0" % S_WV)
        a("s_cbranch_scc1 L_edone")
        a.label("L_e0")
        self.granule_slot(SY_GC)
        self.group_sync("v20", 50, 51, both=True)
        a.label("L_edone")
        srd(a, 8, P_WS, WS_A2, IMG_BYTES)
        a("s_lshl_b32 s56, s%d, 4" % S_B)
        a("s_lshl_b32 s57, s%d, 1" % S_OCT)
        a("s_add_u32 s56, s56, s57")
        a("s_add_u32 s56, s56, s59")
        a("s_lshl_b32 s56, s56, 18")
        a("s_lshl_b32 s57, s%d, 14" % S_RT)
        a("s_add_u32 s56, s56, s57")
        a("s_lshr_b32 s57, s%d, 2" % S_WV)
        a("s_lshl_b32 s57, s57, 13")
        a("s_add_u32 s56, s56, s57")
        a("s_bfe_u32 s57, s%d, 0x10001" % S_WV)
        a("s_lshl_b32 s57, s57, 11")
        a("s_add_u32 s56, s56, s57")
        a("s_add_u32 s57, s56, 4096")
        a("v_bfe_u32 v11, v8, 2, 1")
        a("v_lshlrev_b32 v11, 1, v11")
        a("v_xor_b32 v11, v11, v9")
        a("v_lshlrev_b32 v11, 4, v11")
        a("v_lshl_add_u32 v11, v8, 6, v11")
        self.flag_list(SY_FD, False)
        a("v_mov_b32 v12, %d" % L_BC)
        a("s_barrier")
        a("ds_read_b64 v[16:17], v12")
        a("s_mov_b32 s%d, s%d" % (S_ISA, S_ISA2))
        a("s_mov_b32 s%d, 1" % S_PHASE)
        self.norm_coeffs(EXT + 8, EXT + 12, 24, 32)
        for u in range(2):
            prs = [Y + u * 16 + 2 * j for j in range(8)]
            tm = [40 + 2 * j for j in range(8)]
            for j in range(8):
                pk(a, "fma", prs[j], [prs[j], 24 + 2 * (j % 4), 32 + 2 * (j % 4)])
            silu_pk(a, prs, tm)
            for e in range(2):
                o = 56 + 4 * (u * 2 + e)
                for k in range(4):
                    a("v_cvt_pk_f16_f32 v%d, v%d, v%d" % (o + k, prs[e * 4 + k], prs[e * 4 + k] + 1))
                a("buffer_store_dwordx4 v[%d:%d], v11, s[8:11], s%d offen offset:%d sc1" % (o, o + 3, 56 + e, u * 1024))
        a("s_branch L_conv")

        a.label("L_epi2")
        a("s_cmp_ge_u32 s%d, 4" % S_WV)
        a("s_cbranch_scc1 L_haveres")
        a("s_lshl_b32 s3, s%d, 12" % S_WV)
        a("s_add_u32 s3, s3, %d" % L_W2)
        a("v_add_u32 v10, s3, v6")
        for k in range(4):
            a("ds_read_b128 v[%d:%d], v10 offset:%d" % (208 + 4 * k, 211 + 4 * k, k * 1024))
        a.label("L_haveres")
        a("s_lshl_b32 s3, s%d, 2" % S_WV)
        a("s_mul_i32 s3, s3, %d" % FS)
        a("v_add_u32 v10, s3, v6")
        a("v_add_u32 v11, %d, v10" % (2 * RS))
        for k in range(4):
            for xi in range(4):
                r = M + 4 * (k * 4 + xi)
                a("ds_read_b128 v[%d:%d], v%d offset:%d" % (r, r + 3, 10 if xi < 2 else 11, (xi & 1) * RS + k * FS))
        a("s_waitcnt lgkmcnt(15)")
        for j in range(4):
            for e in range(2):
                for d in range(2):
                    unpack(a, 48 + ((2 * d) * 2 + e) * 4 + j, 48 + ((2 * d + 1) * 2 + e) * 4 + j, 208 + (j * 2 + e) * 2 + d)
        for k in range(4):
            a("s_waitcnt lgkmcnt(%d)" % (12 - 4 * k))
            for j in range(0, 4, 2):
                m = [M + 4 * (k * 4 + xi) + j for xi in range(4)]
                ye, yo = Y + (k * 2) * 4 + j, Y + (k * 2 + 1) * 4 + j
                xe, xo = 48 + (k * 2) * 4 + j, 48 + (k * 2 + 1) * 4 + j
                pk(a, "add", ye, [m[1], m[2]])
                pk(a, "add", yo, [m[1], m[2]], neg=[0, 1])
                pk(a, "fma", m[0], [m[0], sbc(S_ISA), xe])
                pk(a, "fma", m[3], [m[3], sbc(S_ISA), xo], neg=[1, 0, 0])
                pk(a, "fma", ye, [ye, sbc(S_HISA), m[0]])
                pk(a, "fma", yo, [yo, sbc(S_HISA), m[3]])
        srd(a, 8, P_OUT, 0, IMG_BYTES)
        for j in range(4):
            for e in range(2):
                o = 16 + 2 * (j * 2 + e)
                for d in range(2):
                    a("v_cvt_pk_bf16_f32 v%d, v%d, v%d" % (o + d, Y + ((2 * d) * 2 + e) * 4 + j, Y + ((2 * d + 1) * 2 + e) * 4 + j))
                a("buffer_store_dwordx2 v[%d:%d], v13, s[8:11], s%d offen offset:%d%s" % (o, o + 1, 60 + j, e * 128, cfg.get("of", " nt")))
        if cfg.get("stamp"):
            a("s_waitcnt vmcnt(0)")
        self.stamp()
        self.stamp_flush()
        a.label("L_end")
        a("s_endpgm")
        a.label("L_codeend")
        return name

    def epi_loads(self, warm=False):
        a = self.a
        EXT = 96
        l1, l2 = a.nl("el"), a.nl("eld")
        a("s_cmp_lg_u32 s%d, 0" % S_PHASE)
        a("s_cbranch_scc1 %s" % l1)
        srd(a, 24, P_G2, 0, 1024)
        srd(a, 28, P_BE2, 0, 1024)
        a("s_and_b32 s4, s%d, 1" % S_WV)
        a("s_lshl_b32 s4, s4, 6")
        a("s_lshl_b32 s3, s%d, 7" % S_OCT)
        a("s_add_u32 s3, s3, s4")
        a("v_lshlrev_b32 v13, 4, v9")
        a("buffer_load_dwordx4 v[%d:%d], v13, s[24:27], s3 offen" % (EXT + 8, EXT + 11))
        a("buffer_load_dwordx4 v[%d:%d], v13, s[28:31], s3 offen" % (EXT + 12, EXT + 15))
        a("s_branch %s" % l2)
        a.label(l1)
        a("s_lshl_b32 s3, s%d, 22" % S_B)
        a("s_lshl_b32 s4, s%d, 19" % S_OCT)
        a("s_add_u32 s3, s3, s4")
        a("s_lshr_b32 s4, s%d, 2" % S_WV)
        a("s_lshl_b32 s4, s4, 18")
        a("s_add_u32 s3, s3, s4")
        a("s_bfe_u32 s4, s%d, 0x10001" % S_WV)
        a("s_lshl_b32 s4, s4, 15")
        a("s_add_u32 s3, s3, s4")
        a("s_lshl_b32 s4, s%d, 9" % S_RT)
        a("s_add_u32 s3, s3, s4")
        a("s_and_b32 s4, s%d, 1" % S_WV)
        a("s_lshl_b32 s4, s4, 8")
        a("s_add_u32 s60, s3, s4")
        a("s_add_u32 s61, s60, 8192")
        a("s_add_u32 s62, s60, 16384")
        a("s_add_u32 s63, s60, 24576")
        a("v_lshlrev_b32 v13, 16, v9")
        a("v_lshl_add_u32 v13, v8, 3, v13")
        a.label(l2)


def build(cfg):
    ref = open("standalone__adm_resblock__diffusion.s.ref").read()
    head = []
    for l in ref.splitlines():
        if "@launch" in l:
            break
        head.append(l)
    g = Gen(cfg)
    name = g.build()
    out = list(head)
    if cfg.get("aslist"):
        out.append("; @launch kernel=%s grid=(256,1,1) block=(512,1,1) lds=%d" % (name, LDS_BYTES))
    else:
        out.append("; @launch grid=(256,1,1) block=(512,1,1) lds=%d" % LDS_BYTES)
    out.append('.amdgcn_target "amdgcn-amd-amdhsa--gfx950"')
    out.append(".text")
    s = "\n".join(out) + "\n" + g.a.text()
    s += """.section .rodata,"a"
.p2align 6
.amdhsa_kernel %s
  .amdhsa_next_free_vgpr 256
  .amdhsa_next_free_sgpr 102
  .amdhsa_accum_offset 256
  .amdhsa_group_segment_fixed_size 0
  .amdhsa_kernarg_size 96
  .amdhsa_user_sgpr_count 2
  .amdhsa_user_sgpr_kernarg_segment_ptr 1
  .amdhsa_system_sgpr_workgroup_id_x 1
  .amdhsa_float_denorm_mode_32 3
  .amdhsa_float_denorm_mode_16_64 3
.end_amdhsa_kernel
""" % name
    return s


if __name__ == "__main__":
    cfg = {}
    outp = "standalone__adm_resblock__diffusion.s"
    for arg in sys.argv[1:]:
        k, v = arg.split("=", 1)
        if k == "out":
            outp = v
        else:
            cfg[k] = eval(v)
    open(outp, "w").write(build(cfg))
    print("wrote", outp)
```

```python
import struct
import sys

WS_A1 = 0x0000000
WS_A2 = 0x0800000
WS_W1 = 0x1000000
WS_W2 = 0x1800000
WS_SYNC = 0x2000000
WS_EMB = 0x2020000
WS_DBG = 0x3000000
IMG_BYTES = 8 << 20
W_BYTES = 512 * 4608 * 2
UP_BYTES = 32 * 48 * 4096
SY_GA, SY_FB, SY_GC, SY_FD = 0, 0x8000, 0x10000, 0x18000

XPITCH = 4160
POFF = [0, 2112, 3136, 1088]
VB = 2 * XPITCH
RS = 4 * VB
FS = 1040
L_STAT = 4 * RS
L_BC = L_STAT + 256
L_EMB = L_BC + 64
L_W1 = 0
L_XS = 20480
L_W2 = L_EMB + 256
LDS_BYTES = L_W2 + 2 * 9216

LOG2E = 1.4426950408889634

P_X, P_TEMB, P_G1, P_BE1, P_W1, P_WEMB, P_G2, P_BE2, P_W2, P_OUT, P_DBG, P_WS = [64 + 2 * i for i in range(12)]
S_OCT, S_B, S_RT, S_WV, S_PT = 40, 41, 42, 43, 44
S_TAG, S_PHASE, S_ISA, S_HISA, S_ISA2, S_NL2E, S_ISAO = 88, 89, 90, 91, 92, 93, 94
S_ST = 96
SRD_SY = 20


def f2u(f):
    return struct.unpack("<I", struct.pack("<f", f))[0]


def fx(f):
    return "0x%08x" % f2u(f)


class Asm:
    def __init__(self):
        self.lines = []
        self.uid = 0

    def __call__(self, s):
        for l in s.strip("\n").split("\n"):
            self.lines.append("    " + l.strip())

    def label(self, l):
        self.lines.append(l + ":")

    def raw(self, s):
        self.lines.append(s)

    def nl(self, base):
        self.uid += 1
        return "L_%s_%d" % (base, self.uid)

    def text(self):
        return "\n".join(self.lines) + "\n"


def srd(a, d, ptr, off, nbytes):
    if off:
        a("s_add_u32 s%d, s%d, 0x%x" % (d, ptr, off))
        a("s_addc_u32 s%d, s%d, 0" % (d + 1, ptr + 1))
    else:
        a("s_mov_b32 s%d, s%d" % (d, ptr))
        a("s_mov_b32 s%d, s%d" % (d + 1, ptr + 1))
    a("s_mov_b32 s%d, 0x%x" % (d + 2, nbytes))
    a("s_mov_b32 s%d, 0x20000" % (d + 3))


DPP_STEPS = [
    "quad_perm:[1,0,3,2] row_mask:0xf bank_mask:0xf",
    "quad_perm:[2,3,0,1] row_mask:0xf bank_mask:0xf",
    "row_half_mirror row_mask:0xf bank_mask:0xf",
    "row_mirror row_mask:0xf bank_mask:0xf",
    "row_bcast:15 row_mask:0xa bank_mask:0xf",
    "row_bcast:31 row_mask:0xc bank_mask:0xf",
]


def dpp_reduce(a, regs, nsteps, op="v_add_f32_dpp"):
    n = len(regs)
    a("s_nop 1")
    for st in DPP_STEPS[:nsteps]:
        for r in regs:
            a("%s v%d, v%d, v%d %s" % (op, r, r, r, st))
        if n == 1:
            a("s_nop 1")
        elif n == 2:
            a("s_nop 0")


def unpack(a, dst_lo, dst_hi, src):
    a("v_lshlrev_b32 v%d, 16, v%d" % (dst_lo, src))
    a("v_and_b32 v%d, 0xffff0000, v%d" % (dst_hi, src))


def silu_group(a, vals, tmps, s_isa=None):
    for v, t in zip(vals, tmps):
        a("v_mul_f32 v%d, s%d, v%d" % (t, S_NL2E, v))
    for v, t in zip(vals, tmps):
        a("v_exp_f32 v%d, v%d" % (t, t))
    for v, t in zip(vals, tmps):
        if s_isa is None:
            a("v_add_f32 v%d, 1.0, v%d" % (t, t))
        else:
            a("v_fma_f32 v%d, v%d, s%d, s%d" % (t, t, s_isa, s_isa))
    for v, t in zip(vals, tmps):
        a("v_rcp_f32 v%d, v%d" % (t, t))
    for v, t in zip(vals, tmps):
        a("v_mul_f32 v%d, v%d, v%d" % (v, v, t))


def pr(r):
    assert r % 2 == 0, r
    return "v[%d:%d]" % (r, r + 1)


def sbc(sreg):
    e = sreg & ~1
    return "s[%d:%d]" % (e, e + 1), sreg & 1


def vbc(vreg):
    e = vreg & ~1
    return "v[%d:%d]" % (e, e + 1), vreg & 1


def pk(a, op, dst, srcs, neg=None):
    txt, lo, hi = [], [], []
    for x in srcs:
        if isinstance(x, tuple):
            txt.append(x[0]); lo.append(x[1]); hi.append(x[1])
        else:
            txt.append(pr(x)); lo.append(0); hi.append(1)
    m = ""
    if any(lo):
        m += " op_sel:[%s]" % ",".join(map(str, lo))
    if not all(hi):
        m += " op_sel_hi:[%s]" % ",".join(map(str, hi))
    if neg and any(neg):
        n = ",".join(map(str, neg))
        m += " neg_lo:[%s] neg_hi:[%s]" % (n, n)
    a("v_pk_%s_f32 %s, %s%s" % (op, pr(dst), ", ".join(txt), m))


def silu_pk(a, pairs, tmps):
    for v, t in zip(pairs, tmps):
        pk(a, "mul", t, [v, sbc(S_NL2E)])
    for v, t in zip(pairs, tmps):
        a("v_exp_f32 v%d, v%d" % (t, t))
        a("v_exp_f32 v%d, v%d" % (t + 1, t + 1))
    for v, t in zip(pairs, tmps):
        pk(a, "fma", t, [t, sbc(S_ISA), sbc(S_ISA)])
    for v, t in zip(pairs, tmps):
        a("v_rcp_f32 v%d, v%d" % (t, t))
        a("v_rcp_f32 v%d, v%d" % (t + 1, t + 1))
    for v, t in zip(pairs, tmps):
        pk(a, "mul", v, [v, t])


class Gen:
    def __init__(self, cfg):
        self.cfg = cfg
        self.a = Asm()

    def stamp(self, real=True):
        if not self.cfg.get("stamp"):
            return
        a = self.a
        a("%s s[96:97]" % ("s_memrealtime" if real else "s_memtime"))
        a("s_waitcnt lgkmcnt(0)")
        a("s_mov_b32 m0, s98")
        a("s_nop 0")
        a("v_writelane_b32 v15, s96, m0")
        a("s_add_u32 s98, s98, 1")

    def stamp_flush(self):
        if not self.cfg.get("stamp"):
            return
        a = self.a
        a("s_mov_b64 exec, -1")
        srd(a, 8, P_WS, WS_DBG, 0x100000)
        a("s_lshl_b32 s3, s2, 11")
        a("s_lshl_b32 s4, s%d, 8" % S_WV)
        a("s_add_u32 s3, s3, s4")
        a("v_lshlrev_b32 v1, 2, v2")
        a("buffer_store_dword v15, v1, s[8:11], s3 offen")
        if self.cfg.get("stamp") == 2:
            l = a.nl("sd")
            a("s_cmp_lg_u32 s2, 5")
            a("s_cbranch_scc1 %s" % l)
            a("s_cmp_lg_u32 s%d, 0" % S_WV)
            a("s_cbranch_scc1 %s" % l)
            srd(a, 8, P_DBG, 0, 64)
            a("v_readlane_b32 s3, v15, 0")
            a("s_nop 3")
            a("v_subrev_u32 v15, s3, v15")
            a("buffer_store_dword v15, v1, s[8:11], 0 offen offset:4")
            a.label(l)

    def local_stats(self, vals, cpair):
        a = self.a
        for i, src in enumerate(vals):
            acc = 24 + 4 * (i % 2)
            if i < 2:
                pk(a, "add", acc, [src, vals[i + 2]])
                pk(a, "mul", acc + 2, [src, src])
            else:
                if i >= 4:
                    pk(a, "add", acc, [acc, src])
                pk(a, "fma", acc + 2, [src, src, acc + 2])
        a("v_pk_add_f32 v[24:25], v[24:25], v[28:29]")
        a("v_pk_add_f32 v[26:27], v[26:27], v[30:31]")
        a("v_add_f32 v24, v24, v25")
        a("v_add_f32 v25, v26, v27")
        dpp_reduce(a, [24, 25], 4)
        a("s_lshl_b32 s3, s%d, 5" % S_WV)
        a("s_add_u32 s3, s3, %d" % L_STAT)
        a("v_lshl_add_u32 v12, v9, 3, s3")
        a("ds_write_b64 v12, v[24:25]")
        a("s_waitcnt lgkmcnt(0)")

    def group_sync(self, csrc, s_own, s_grp, both=False, filler=None):
        a = self.a
        a("v_lshlrev_b32 v12, 4, v8")
        a("v_add_u32 v12, %d, v12" % L_STAT)
        a("ds_read_b128 v[24:27], v12")
        a("v_and_b32 v13, 31, v2")
        a("v_lshlrev_b32 v13, 7, v13")
        if both:
            a("s_xor_b32 s7, s%d, 0x4000" % s_grp)
            a("s_sub_u32 s7, s7, s%d" % s_grp)
            a("v_lshrrev_b32 v14, 5, v2")
            a("v_mul_lo_u32 v14, v14, s7")
            a("v_add_u32 v13, v13, v14")
            a("v_add_u32 v13, s%d, v13" % s_grp)
        a("v_mov_b32 v29, s%d" % S_TAG)
        a("v_mov_b32 v31, s%d" % S_TAG)
        a("v_mov_b32 v14, 0")
        a("s_waitcnt lgkmcnt(0)")
        a("v_add_f32 v24, v24, v26")
        a("v_add_f32 v25, v25, v27")
        dpp_reduce(a, [24, 25], 4)
        a("v_mul_f32 v26, %s, v24" % fx(1.0 / 16384))
        a("v_add_f32 v28, %s, v26" % csrc)
        a("v_fma_f32 v30, -v24, v26, v25")
        a("v_max_f32 v30, 0, v30")
        a("s_mov_b64 exec, 1")
        a("buffer_store_dwordx4 v[28:31], v14, s[%d:%d], s%d offen sc1" % (SRD_SY, SRD_SY + 3, s_own))
        a("s_mov_b64 exec, -1")
        self.stamp()
        if filler:
            filler()
        if self.cfg.get("presleep", 8):
            a("s_sleep %d" % self.cfg.get("presleep", 8))
        a("s_mov_b32 s5, 0")
        lp, ld = a.nl("poll"), a.nl("polld")
        a.label(lp)
        a("buffer_load_dwordx4 v[32:35], v13, s[%d:%d], %s offen sc1" % (SRD_SY, SRD_SY + 3, "0" if both else "s%d" % s_grp))
        a("s_waitcnt vmcnt(0)")
        a("v_cmp_ne_u32 vcc, s%d, v33" % S_TAG)
        a("v_cmp_ne_u32 s[6:7], s%d, v35" % S_TAG)
        a("s_or_b64 vcc, vcc, s[6:7]")
        a("s_cbranch_scc0 %s" % ld)
        a("s_add_u32 s5, s5, 1")
        a("s_cmp_lt_u32 s5, 0x10000")
        a("s_cbranch_scc0 %s" % ld)
        a("s_sleep 1")
        a("s_branch %s" % lp)
        a.label(ld)
        self.stamp()
        a("v_readfirstlane_b32 s6, v32")
        a("s_nop 1")
        a("v_subrev_f32 v36, s6, v32")
        a("v_mul_f32 v37, v36, v36")
        dpp_reduce(a, [36, 37, 34], 5)
        a("v_mul_f32 v41, %s, v36" % fx(1.0 / 32))
        a("v_fma_f32 v42, -v36, v41, v37")
        a("v_max_f32 v42, 0, v42")
        a("v_fmac_f32 v34, %s, v42" % fx(16384.0))
        a("v_mov_b32 v43, %s" % fx(1e-5))
        a("v_fmac_f32 v43, %s, v34" % fx(1.0 / 524288))
        a("v_add_f32 v42, s6, v41")
        a("v_rsq_f32 v43, v43")
        a("v_mov_b32 v12, %d" % L_BC)
        a("s_mov_b32 exec_lo, 0x80000000")
        a("s_mov_b32 exec_hi, 0")
        a("ds_write_b64 v12, v[42:43]")
        a("s_mov_b64 exec, -1")
        a("s_waitcnt lgkmcnt(0)")

    def granule_slot(self, area):
        a = self.a
        a("s_lshl_b32 s51, s%d, 2" % S_B)
        a("s_lshr_b32 s3, s%d, 1" % S_OCT)
        a("s_add_u32 s51, s51, s3")
        a("s_lshl_b32 s51, s51, 12")
        a("s_add_u32 s51, s51, %d" % area)
        a("s_and_b32 s50, s%d, 1" % S_OCT)
        a("s_lshl_b32 s50, s50, 4")
        a("s_add_u32 s50, s50, s%d" % S_RT)
        a("s_lshl_b32 s50, s50, 7")
        a("s_add_u32 s50, s50, s51")

    def flag_list(self, area, with_u):
        a = self.a
        a("v_lshrrev_b32 v12, 3, v2")
        a("v_min_u32 v12, 2, v12")
        a("v_add_u32 v12, s%d, v12" % S_RT)
        a("v_max_u32 v12, 1, v12")
        a("v_min_u32 v12, 16, v12")
        a("s_lshl_b32 s3, s%d, 4" % S_B)
        a("s_sub_u32 s3, s3, 1")
        a("v_add_u32 v12, s3, v12")
        a("v_and_b32 v13, 7, v2")
        a("v_lshl_add_u32 v12, v12, 3, v13")
        if with_u:
            a("v_subrev_u32 v13, 32, v2")
            a("v_lshlrev_b32 v13, 3, v13")
            a("v_add_u32 v13, s%d, v13" % S_OCT)
            a("v_cmp_gt_u32 vcc, 32, v2")
        a("s_lshl_b32 s50, s%d, 3" % S_PT)
        a("s_add_u32 s50, s50, s%d" % S_OCT)
        if with_u:
            a("v_cndmask_b32 v12, v13, v12, vcc")
        a("v_lshlrev_b32 v12, 7, v12")
        a("v_add_u32 v23, %d, v12" % area)
        a("s_lshl_b32 s50, s50, 7")
        a("s_add_u32 s50, s50, %d" % area)

    def flag_store(self, s_own):
        a = self.a
        a("s_mov_b64 exec, 1")
        a("buffer_store_dword v22, v14, s[%d:%d], s%d offen sc1" % (SRD_SY, SRD_SY + 3, s_own))
        a("s_mov_b64 exec, -1")
        self.stamp()

    def flag_poll(self, v_list):
        a = self.a
        if self.cfg.get("presleep2", 6):
            a("s_sleep %d" % self.cfg.get("presleep2", 6))
        a("s_mov_b32 s5, 0")
        lp, ld = a.nl("poll"), a.nl("polld")
        a.label(lp)
        a("buffer_load_dword v25, v%d, s[%d:%d], 0 offen sc1" % (v_list, SRD_SY, SRD_SY + 3))
        a("s_waitcnt vmcnt(0)")
        a("v_cmp_ne_u32 vcc, s%d, v25" % S_TAG)
        a("s_cmp_eq_u64 vcc, 0")
        a("s_cbranch_scc1 %s" % ld)
        a("s_add_u32 s5, s5, 1")
        a("s_cmp_lt_u32 s5, 0x10000")
        a("s_cbranch_scc0 %s" % ld)
        a("s_sleep 1")
        a("s_branch %s" % lp)
        a.label(ld)
        self.stamp()

    def w_dma(self, ptr, s_ob, s_cc, s_lds):
        a = self.a
        srd(a, 12, ptr, 0, W_BYTES)
        a("v_lshlrev_b32 v10, 3, v9")
        a("v_bfe_u32 v11, v2, 2, 2")
        a("v_add_u32 v10, v10, v11")
        a("v_mul_u32_u24 v10, 9216, v10")
        a("v_and_b32 v11, 3, v2")
        a("v_lshl_add_u32 v10, v11, 4, v10")
        a("s_lshr_b32 s3, s%d, 1" % s_ob)
        a("s_lshl_b32 s3, s3, 5")
        a("s_and_b32 s4, s%d, 1" % s_ob)
        a("s_lshl_b32 s4, s4, 2")
        a("s_add_u32 s3, s3, s4")
        a("s_mul_i32 s3, s3, 9216")
        a("s_mul_i32 s4, s%d, 576" % s_cc)
        a("s_add_u32 s3, s3, s4")
        for i in range(9):
            a("s_add_u32 m0, s%d, %d" % (s_lds, i * 960))
            a("s_nop 0")
            a("buffer_load_dwordx4 v10, s[12:15], s3 offen offset:%d%s lds" % (i * 64, self.cfg.get("wf", " nt")))

    def w_pack_part(self, ws_off, s_ob, s_cp, lds_base, R, s_u=None, defer=False):
        a = self.a
        T = R + 36
        O = T + 10
        if s_u is None:
            a("s_lshr_b32 s5, s%d, 2" % S_WV)
        else:
            a("s_mov_b32 s5, s%d" % s_u)
        a("s_mul_i32 s3, s5, 9216")
        a("s_add_u32 s3, s3, %d" % lds_base)
        a("v_mul_u32_u24 v%d, 9, v9" % T)
        a("v_lshl_add_u32 v%d, v8, 6, s3" % (T + 1))
        for i in range(4):
            a("v_add_u32 v%d, %d, v%d" % (T + 2, i, T))
            a("v_lshrrev_b32 v%d, 2, v%d" % (T + 3, T + 2))
            a("v_and_b32 v%d, 3, v%d" % (T + 2, T + 2))
            a("v_lshl_add_u32 v%d, v%d, 10, v%d" % (T + 3, T + 3, T + 1))
            a("v_lshl_add_u32 v%d, v%d, 4, v%d" % (10 + i, T + 2, T + 3))
        for i in range(9):
            a("ds_read_b128 v[%d:%d], v%d offset:%d" % (R + 4 * i, R + 4 * i + 3, 10 + i % 4, (i // 4) * 1024))
        a("s_lshr_b32 s3, s%d, 2" % s_ob)
        a("s_mul_i32 s3, s3, %d" % (4 * 48 * 4096))
        a("s_and_b32 s4, s%d, 3" % s_ob)
        a("s_lshl_b32 s4, s4, 10")
        a("s_add_u32 s3, s3, s4")
        a("s_lshl_b32 s4, s%d, 1" % s_cp)
        a("s_add_u32 s4, s4, s5")
        a("s_mul_i32 s4, s4, 3")
        a("s_and_b32 s5, s%d, 3" % S_WV)
        a("s_add_u32 s4, s4, s5")
        a("s_sub_u32 s4, s4, 1")
        a("s_lshl_b32 s4, s4, 12")
        a("s_add_u32 s39, s3, s4")
        a("s_mov_b32 s6, 0x07060100")
        a("s_mov_b32 s7, 0x05040302")
        ls = [a.nl("wp") for _ in range(4)]
        a("s_waitcnt lgkmcnt(0)")
        a("s_cmp_eq_u32 s5, 2")
        a("s_cbranch_scc1 %s" % ls[1])
        a("s_cmp_eq_u32 s5, 3")
        a("s_cbranch_scc1 %s" % ls[2])
        for dx in range(3):
            a.label(ls[dx])
            for xi, t in ((0, dx), (3, 6 + dx)):
                o = O + 4 * xi
                for k in range(4):
                    e0 = 2 * k * 9 + t
                    e1 = e0 + 9
                    sel = 6 if e0 % 2 == 0 else 7
                    a("v_perm_b32 v%d, v%d, v%d, s%d" % (o + k, R + e1 // 2, R + e0 // 2, sel))
            for k in range(4):
                for h in range(2):
                    j = 2 * k + h
                    for dy in range(3):
                        e = j * 9 + dy * 3 + dx
                        d = T + h * 3 + dy
                        if e % 2 == 0:
                            a("v_lshlrev_b32 v%d, 16, v%d" % (d, R + e // 2))
                        else:
                            a("v_and_b32 v%d, 0xffff0000, v%d" % (d, R + e // 2))
                for h in range(2):
                    a("v_add_f32 v%d, v%d, v%d" % (T + h * 3, T + h * 3, T + 2 + h * 3))
                for h in range(2):
                    a("v_add_f32 v%d, v%d, v%d" % (T + 6 + h, T + h * 3, T + 1 + h * 3))
                    a("v_sub_f32 v%d, v%d, v%d" % (T + 8 + h, T + h * 3, T + 1 + h * 3))
                a("v_cvt_pk_bf16_f32 v%d, v%d, v%d" % (O + 4 + k, T + 6, T + 7))
                a("v_cvt_pk_bf16_f32 v%d, v%d, v%d" % (O + 8 + k, T + 8, T + 9))
            if dx < 2:
                a("s_branch %s" % ls[3])
        a.label(ls[3])
        if not defer:
            self.w_pack_store(ws_off, R)

    def w_pack_store(self, ws_off, R):
        a = self.a
        O = R + 46
        srd(a, 12, P_WS, ws_off, UP_BYTES)
        for xi in range(4):
            a("buffer_store_dwordx4 v[%d:%d], v6, s[12:15], s39 offen sc1" % (O + 4 * xi, O + 4 * xi + 3))
            a("s_add_u32 s39, s39, %d" % (48 * 4096))
        a("s_nop 1")

    def norm_coeffs(self, G, BT, SC, SH):
        a = self.a
        for j in range(4):
            unpack(a, SC + 2 * j, SC + 2 * j + 1, G + j)
            unpack(a, SH + 2 * j, SH + 2 * j + 1, BT + j)
        a("s_waitcnt lgkmcnt(0)")
        a("v_sub_f32 v16, v16, v20")
        for j in range(4):
            pk(a, "mul", SC + 2 * j, [SC + 2 * j, vbc(17)])
        for j in range(4):
            pk(a, "fma", SH + 2 * j, [SC + 2 * j, vbc(16), SH + 2 * j], neg=[1, 0, 0])

    def build(self):
        a, cfg = self.a, self.cfg
        name = "standalone__adm_resblock__diffusion_kernel"
        a.raw(".globl %s" % name)
        a.raw(".p2align 8")
        a.raw(".type %s,@function" % name)
        a.label(name)
        a("s_cmp_ge_u32 s2, 256")
        a("s_cbranch_scc1 L_end")
        a("s_load_dwordx16 s[64:79], s[0:1], 0")
        a("s_load_dwordx8 s[80:87], s[0:1], 64")
        a("v_lshrrev_b32 v1, 6, v0")
        a("v_and_b32 v2, 63, v0")
        a("v_readfirstlane_b32 s%d, v1" % S_WV)
        a("v_lshlrev_b32 v6, 4, v2")
        a("v_and_b32 v8, 15, v2")
        a("v_lshrrev_b32 v9, 4, v2")
        a("v_mov_b32 v14, 0")
        if cfg.get("cpf", 1):
            a("s_getpc_b64 s[12:13]")
            a.label("L_pc")
            a("s_sub_u32 s12, s12, L_pc-%s" % name)
            a("s_subb_u32 s13, s13, 0")
            a("s_mov_b32 s14, L_codeend-%s" % name)
            a("s_mov_b32 s15, 0x20000")
            a("s_lshr_b32 s3, s2, 3")
            a("s_lshl_b32 s4, s%d, 4" % S_WV)
            a("s_add_u32 s3, s3, s4")
            a("s_and_b32 s3, s3, 31")
            a("s_lshl_b32 s3, s3, 10")
            a("s_cmp_lt_u32 s%d, 6" % S_WV)
            a("s_cbranch_scc1 L_nocpf")
            a("buffer_load_dwordx4 v[104:107], v6, s[12:15], s3 offen")
            a.label("L_nocpf")
        a("s_and_b32 s3, s2, 1")
        a("s_lshl_b32 s3, s3, 2")
        a("s_bfe_u32 s4, s2, 0x20003")
        a("s_add_u32 s%d, s3, s4" % S_OCT)
        a("s_bfe_u32 s3, s2, 0x20001")
        a("s_lshl_b32 s3, s3, 3")
        a("s_lshr_b32 s4, s2, 5")
        a("s_add_u32 s%d, s3, s4" % S_PT)
        a("s_lshr_b32 s%d, s%d, 4" % (S_B, S_PT))
        a("s_and_b32 s%d, s%d, 15" % (S_RT, S_PT))
        a("v_and_b32 v3, 3, v2")
        a("v_lshrrev_b32 v4, 2, v2")
        a("v_lshlrev_b32 v5, 16, v3")
        a("v_lshl_add_u32 v5, v4, 3, v5")
        a("s_lshl_b32 s47, s%d, 22" % S_B)
        a("s_lshl_b32 s3, s%d, 19" % S_OCT)
        a("s_add_u32 s47, s47, s3")
        a("s_lshl_b32 s3, s%d, 9" % S_RT)
        a("s_add_u32 s47, s47, s3")
        a("s_lshr_b32 s45, s%d, 2" % S_WV)
        a("s_and_b32 s46, s%d, 3" % S_WV)
        if cfg.get("stamp"):
            a("s_mov_b32 s98, 0")
            a("v_mov_b32 v15, 0")
        self.stamp()
        a("s_memrealtime s[4:5]")
        a("s_waitcnt lgkmcnt(0)")
        a("s_lshl_b32 s3, s2, 3")
        a("s_add_u32 s3, s3, s%d" % S_WV)
        a("s_cmp_lg_u32 s3, 7")
        a("s_cbranch_scc1 L_nononce")
        srd(a, 32, P_DBG, 0, 256)
        a("s_or_b32 s4, s4, 1")
        a("v_mov_b32 v13, s4")
        a("s_mov_b64 exec, 1")
        a("buffer_store_dword v13, v14, s[32:35], 0 offen sc1")
        a("s_mov_b64 exec, -1")
        a.label("L_nononce")
        srd(a, 8, P_X, 0, IMG_BYTES)
        a("s_lshl_b32 s3, s45, 18")
        a("s_lshl_b32 s4, s46, 7")
        a("s_add_u32 s3, s3, s4")
        a("s_add_u32 s3, s3, s47")
        XR = 48
        for j in range(8):
            a("buffer_load_dwordx2 v[%d:%d], v5, s[8:11], s3 offen%s" % (XR + 2 * j, XR + 2 * j + 1, cfg.get("xf", " nt")))
            if j < 7:
                a("s_add_u32 s3, s3, 8192")
        a("s_add_u32 s6, s%d, s47" % P_X)
        a("s_addc_u32 s7, s%d, 0" % (P_X + 1))
        a("s_load_dword s48, s[6:7], 0")
        srd(a, 24, P_G1, 0, 1024)
        srd(a, 28, P_BE1, 0, 1024)
        a("s_lshl_b32 s3, s%d, 7" % S_OCT)
        a("s_lshl_b32 s4, s45, 6")
        a("s_add_u32 s3, s3, s4")
        a("v_lshlrev_b32 v10, 4, v3")
        a("buffer_load_dwordx4 v[64:67], v10, s[24:27], s3 offen")
        a("buffer_load_dwordx4 v[68:71], v10, s[28:31], s3 offen")
        srd(a, SRD_SY, P_WS, WS_SYNC, 0x20000)
        a("s_mov_b32 s%d, %s" % (S_NL2E, fx(-LOG2E)))
        a("s_mov_b32 s%d, 0" % S_PHASE)
        a("s_mov_b32 s%d, 0" % S_TAG)
        RR = 112
        a("s_barrier")
        a("s_lshl_b32 s36, s%d, 2" % S_OCT)
        a("s_lshr_b32 s3, s%d, 3" % S_PT)
        a("s_add_u32 s36, s36, s3")
        a("s_and_b32 s37, s%d, 7" % S_PT)
        a("s_cmp_eq_u32 s%d, 0" % S_WV)
        a("s_cbranch_scc1 L_r0")
        a("s_cmp_eq_u32 s%d, 1" % S_WV)
        a("s_cbranch_scc1 L_r1")
        a("s_cmp_lt_u32 s%d, 4" % S_WV)
        a("s_cbranch_scc1 L_rw")
        if cfg.get("w2p0", 2) == 2:
            a("s_cmp_gt_u32 s%d, 5" % S_WV)
            a("s_cbranch_scc1 L_rw2")
        a("s_cmp_lg_u32 s%d, 4" % S_WV)
        a("s_cbranch_scc1 L_rnone")
        a("s_bitcmp1_b32 s%d, 0" % S_PT)
        a("s_cbranch_scc1 L_rnone")
        a("s_lshr_b32 s49, s%d, 1" % S_PT)
        a("s_mul_i32 s3, s49, 48")
        a("v_lshrrev_b32 v10, 3, v2")
        a("v_mul_u32_u24 v10, 6, v10")
        a("v_add_u32 v10, s3, v10")
        a("v_lshlrev_b32 v11, 1, v10")
        a("v_lshlrev_b32 v10, 10, v10")
        a("v_and_b32 v12, 7, v2")
        a("v_lshl_add_u32 v10, v12, 4, v10")
        a("v_add_u32 v12, 4096, v10")
        a("s_lshl_b32 s3, s%d, 7" % S_OCT)
        srd(a, 12, P_TEMB, 0, 2 * 768 * 2)
        srd(a, 16, P_WEMB, 0, 768 * 512 * 2)
        a("buffer_load_dwordx3 v[%d:%d], v11, s[12:15], 0 offen" % (RR, RR + 2))
        a("buffer_load_dwordx3 v[%d:%d], v11, s[12:15], 0 offen offset:1536" % (RR + 4, RR + 6))
        for i in range(6):
            a("buffer_load_dwordx4 v[%d:%d], v%d, s[16:19], s3 offen offset:%d nt" %
              (RR + 8 + 4 * i, RR + 11 + 4 * i, 10 if i < 4 else 12, (i % 4) * 1024))
        a("s_waitcnt vmcnt(8)")
        a("s_branch L_rdone")
        a.label("L_rw")
        a("s_sub_u32 s51, s%d, 2" % S_WV)
        a("s_lshl_b32 s50, s37, 1")
        a("s_add_u32 s50, s50, s51")
        a("s_mul_i32 s51, s51, 9216")
        a("s_add_u32 s51, s51, %d" % L_W1)
        self.w_dma(P_W1, 36, 50, 51)
        a("s_waitcnt vmcnt(9)")
        a("s_branch L_rdone")
        if cfg.get("w2p0", 2) == 2:
            a.label("L_rw2")
            a("s_sub_u32 s51, s%d, 6" % S_WV)
            a("s_lshl_b32 s50, s37, 1")
            a("s_add_u32 s50, s50, s51")
            a("s_mul_i32 s51, s51, 9216")
            a("s_add_u32 s51, s51, %d" % L_W2)
            a("s_waitcnt vmcnt(%d)" % cfg.get("w2wait", 10))
            self.w_dma(P_W2, 36, 50, 51)
            a("s_waitcnt vmcnt(9)")
            a("s_branch L_rdone")
        a.label("L_r1")
        srd(a, 12, P_G2, 0, 1024)
        srd(a, 16, P_BE2, 0, 1024)
        a("buffer_load_dwordx4 v[%d:%d], v6, s[24:27], 0 offen" % (RR, RR + 3))
        a("buffer_load_dwordx4 v[%d:%d], v6, s[28:31], 0 offen" % (RR + 4, RR + 7))
        a("buffer_load_dwordx4 v[%d:%d], v6, s[12:15], 0 offen" % (RR + 8, RR + 11))
        a("buffer_load_dwordx4 v[%d:%d], v6, s[16:19], 0 offen" % (RR + 12, RR + 15))
        a("s_waitcnt vmcnt(4)")
        a("s_branch L_rdone")
        a.label("L_r0")
        srd(a, 32, P_DBG, 0, 256)
        a("s_waitcnt vmcnt(%d)" % cfg.get("nwait", 8))
        a("buffer_load_dword v%d, v14, s[32:35], 0 offen sc1" % RR)
        a("s_waitcnt vmcnt(1)")
        a("s_branch L_rdone")
        a.label("L_rnone")
        a("s_waitcnt vmcnt(0)")
        a.label("L_rdone")
        self.stamp()
        XF = 72

        def stash_write():
            a("s_mul_i32 s3, s45, %d" % (4 * 4224))
            a("s_lshl_b32 s4, s46, 7")
            a("s_add_u32 s3, s3, s4")
            a("s_add_u32 s3, s3, %d" % L_XS)
            a("v_mul_u32_u24 v10, 4224, v3")
            a("v_lshl_add_u32 v10, v4, 3, v10")
            a("v_add_u32 v10, s3, v10")
            for j in range(8):
                a("ds_write_b64 v10, v[%d:%d] offset:%d" % (XR + 2 * j, XR + 2 * j + 1, j * 512))

        for j in range(8):
            for d in range(2):
                unpack(a, XF + 4 * j + 2 * d, XF + 4 * j + 2 * d + 1, XR + 2 * j + d)
        a("s_waitcnt lgkmcnt(0)")
        a("s_lshl_b32 s48, s48, 16")
        a("s_mov_b32 s49, s48") if False else None
        a("v_mov_b32 v20, s48")
        for i in range(16):
            pk(a, "add", XF + 2 * i, [XF + 2 * i, sbc(48)], neg=[0, 1])
        self.local_stats([XF + 2 * i for i in range(16)], "v[20:21]")
        a("s_and_b32 s3, s%d, 6" % S_WV)
        a("s_cmp_lg_u32 s3, 2")
        a("s_cbranch_scc1 L_nww")
        a("s_waitcnt vmcnt(0)")
        a.label("L_nww")
        a("s_barrier")
        a("s_cmp_eq_u32 s%d, 0" % S_WV)
        a("s_cbranch_scc1 L_s0")
        stash_write()
        a("s_cmp_eq_u32 s%d, 4" % S_WV)
        a("s_cbranch_scc1 L_semb")
        self.w_pack_part(WS_W1, 36, 37, L_W1, 144, defer=True)
        a("s_cmp_eq_u32 s%d, 1" % S_WV)
        a("s_cbranch_scc1 L_s1")
        a("s_branch L_sdone")
        a.label("L_semb")
        a("s_waitcnt vmcnt(0) lgkmcnt(0)")
        a("s_bitcmp1_b32 s%d, 0" % S_PT)
        a("s_cbranch_scc1 L_sdone")
        E = 148
        for b in range(2):
            for d in range(3):
                unpack(a, E + 6 * b + 2 * d, E + 6 * b + 2 * d + 1, RR + 4 * b + d)
        silu_group(a, list(range(E, E + 12)), list(range(E + 12, E + 24)))
        EA = E + 24
        for i in range(6):
            for k in range(4):
                unpack(a, E + 12, E + 13, RR + 8 + 4 * i + k)
                for h in range(2):
                    j = 2 * k + h
                    for b in range(2):
                        if i == 0:
                            a("v_mul_f32 v%d, v%d, v%d" % (EA + 8 * b + j, E + 12 + h, E + 6 * b + i))
                        else:
                            a("v_fmac_f32 v%d, v%d, v%d" % (EA + 8 * b + j, E + 12 + h, E + 6 * b + i))
        a("s_nop 1")
        for j in range(8):
            a("v_permlane32_swap_b32 v%d, v%d" % (EA + j, EA + 8 + j))
        for j in range(8):
            a("v_add_f32 v%d, v%d, v%d" % (EA + j, EA + j, EA + 8 + j))
        a("s_nop 1")
        for j in range(4):
            a("v_permlane16_swap_b32 v%d, v%d" % (EA + j, EA + 4 + j))
        for j in range(4):
            a("v_add_f32 v%d, v%d, v%d" % (EA + j, EA + j, EA + 4 + j))
        a("s_nop 1")
        for j in range(4):
            a("v_add_f32_dpp v%d, v%d, v%d row_ror:8 row_mask:0xf bank_mask:0xf" % (EA + j, EA + j, EA + j))
        srd(a, 12, P_WS, WS_EMB, 65536)
        a("v_lshrrev_b32 v10, 5, v2")
        a("v_lshlrev_b32 v10, 11, v10")
        a("v_and_b32 v11, 7, v2")
        a("v_lshl_add_u32 v10, v11, 5, v10")
        a("v_and_b32 v11, 16, v2")
        a("v_add_u32 v10, v10, v11")
        a("s_lshl_b32 s3, s49, 12")
        a("s_lshl_b32 s4, s%d, 8" % S_OCT)
        a("s_add_u32 s3, s3, s4")
        a("buffer_store_dwordx4 v[%d:%d], v10, s[12:15], s3 offen sc1" % (EA, EA + 3))
        a("s_branch L_sdone")
        a.label("L_s1")
        a("s_waitcnt vmcnt(0)")
        a("s_mov_b32 s3, 0x7fff7fff")
        for arr in range(4):
            r = RR + 4 * arr
            for k in range(4):
                a("v_and_b32 v%d, s3, v%d" % (r + k, r + k))
            a("v_pk_max_u16 v%d, v%d, v%d" % (r, r, r + 1))
            a("v_pk_max_u16 v%d, v%d, v%d" % (r + 2, r + 2, r + 3))
            a("v_pk_max_u16 v%d, v%d, v%d" % (r, r, r + 2))
            a("v_lshrrev_b32 v%d, 16, v%d" % (r + 1, r))
            a("v_and_b32 v%d, 0xffff, v%d" % (r, r))
            a("v_max_u32 v%d, v%d, v%d" % (r, r, r + 1))
        dpp_reduce(a, [RR, RR + 4, RR + 8, RR + 12], 6, "v_max_u32_dpp")
        for k in range(2):
            g, bt = RR + 8 * k, RR + 8 * k + 4
            a("v_lshrrev_b32 v%d, 7, v%d" % (g, g))
            a("v_lshrrev_b32 v%d, 7, v%d" % (bt, bt))
            a("v_add_u32 v%d, 10, v%d" % (g, g))
            a("v_max_u32 v%d, v%d, v%d" % (g, g, bt))
            a("v_max_u32 v%d, 14, v%d" % (g, g))
            a("v_min_u32 v%d, 0x10a, v%d" % (g, g))
            a("v_subrev_u32 v%d, 13, v%d" % (g, g))
            a("v_lshlrev_b32 v%d, 23, v%d" % (RR + 16 + k, g))
        a("v_mov_b32 v12, %d" % (L_BC + 8))
        a("s_mov_b32 exec_lo, 0")
        a("s_mov_b32 exec_hi, 0x80000000")
        a("ds_write_b64 v12, v[%d:%d]" % (RR + 16, RR + 17))
        a("s_mov_b64 exec, -1")
        a("s_waitcnt lgkmcnt(0)")
        a("s_branch L_sdone")
        a.label("L_s0")
        a("s_mov_b32 s5, 0")
        a.label("L_nonce")
        a("s_waitcnt vmcnt(0)")
        a("v_readfirstlane_b32 s%d, v%d" % (S_TAG, RR))
        a("s_nop 3")
        a("s_cmp_lg_u32 s%d, 0" % S_TAG)
        a("s_cbranch_scc1 L_nonced")
        a("s_add_u32 s5, s5, 1")
        a("s_cmp_lt_u32 s5, 0x10000")
        a("s_cbranch_scc0 L_nonced")
        a("s_sleep 4")
        srd(a, 32, P_DBG, 0, 256)
        a("buffer_load_dword v%d, v14, s[32:35], 0 offen sc1" % RR)
        a("s_branch L_nonce")
        a.label("L_nonced")
        a("v_mov_b32 v12, %d" % (L_BC + 16))
        a("v_mov_b32 v13, s%d" % S_TAG)
        a("ds_write_b32 v12, v13")
        self.granule_slot(SY_GA)
        self.group_sync("v20", 50, 51, filler=stash_write)
        a.label("L_sdone")
        if cfg.get("stamp") == 3:
            self.stamp()
        a("s_barrier")
        if cfg.get("stamp") == 3:
            self.stamp()
        a("v_mov_b32 v12, %d" % L_BC)
        a("ds_read_b128 v[16:19], v12")
        a("ds_read_b32 v22, v12 offset:16")
        a("s_cmp_eq_u32 s46, 0")
        a("s_cbranch_scc1 L_nop1")
        self.w_pack_store(WS_W1, 144)
        if cfg.get("w2p0", 2) == 1:
            a("s_branch L_nop1b")
        a.label("L_nop1")
        if cfg.get("w2p0", 2) == 1:
            a("s_lshl_b32 s50, s37, 1")
            a("s_add_u32 s50, s50, s45")
            a("s_mul_i32 s51, s45, 9216")
            a("s_add_u32 s51, s51, %d" % L_W2)
            self.w_dma(P_W2, 36, 50, 51)
            a.label("L_nop1b")
        srd(a, 8, P_WS, WS_A1, IMG_BYTES)
        a("v_bfe_u32 v10, v4, 2, 1")
        a("v_lshlrev_b32 v10, 1, v10")
        a("v_xor_b32 v10, v10, v3")
        a("v_lshlrev_b32 v10, 4, v10")
        a("v_lshl_add_u32 v10, v4, 6, v10")
        a("s_lshl_b32 s47, s%d, 4" % S_B)
        a("s_lshl_b32 s3, s%d, 1" % S_OCT)
        a("s_add_u32 s47, s47, s3")
        a("s_add_u32 s47, s47, s45")
        a("s_lshl_b32 s47, s47, 18")
        a("s_lshl_b32 s3, s%d, 14" % S_RT)
        a("s_add_u32 s47, s47, s3")
        a("s_lshl_b32 s3, s46, 12")
        a("s_add_u32 s47, s47, s3")
        self.norm_coeffs(64, 68, 24, 32)
        a("v_readfirstlane_b32 s%d, v18" % S_ISA)
        a("v_readfirstlane_b32 s%d, v19" % S_ISA2)
        a("v_readfirstlane_b32 s%d, v22" % S_TAG)
        for d in range(2):
            prs = [XF + 4 * j + 2 * d for j in range(8)]
            tm = [40 + 2 * j for j in range(8)]
            for j in range(8):
                pk(a, "fma", prs[j], [prs[j], vbc(24 + j), vbc(32 + j)])
            silu_pk(a, prs, tm)
            for h in range(2):
                i = 2 * d + h
                o = 56 + 4 * i
                for k in range(4):
                    a("v_cvt_pk_f16_f32 v%d, v%d, v%d" % (o + k, prs[2 * k] + h, prs[2 * k + 1] + h))
                a("buffer_store_dwordx4 v[%d:%d], v10, s[8:11], s47 offen offset:%d sc1" % (o, o + 3, i * 1024))
        if cfg.get("stamp") == 3:
            self.stamp()
        a("s_cmp_lt_u32 s%d, 4" % S_WV)
        a("s_cbranch_scc1 L_nores")
        a("s_bfe_u32 s3, s%d, 0x10001" % S_WV)
        a("s_lshl_b32 s3, s3, 11")
        a("s_and_b32 s4, s%d, 1" % S_WV)
        a("s_lshl_b32 s4, s4, 8")
        a("s_add_u32 s3, s3, s4")
        a("s_add_u32 s3, s3, %d" % L_XS)
        a("v_mul_u32_u24 v10, 4224, v9")
        a("v_lshl_add_u32 v10, v8, 3, v10")
        a("v_add_u32 v10, s3, v10")
        a("v_add_u32 v11, %d, v10" % (4 * 4224))
        for j in range(4):
            a("ds_read2_b64 v[%d:%d], v11 offset0:%d offset1:%d" % (208 + 4 * j, 211 + 4 * j, j * 64, j * 64 + 16))
            a("ds_read2_b64 v[%d:%d], v10 offset0:%d offset1:%d" % (224 + 4 * j, 227 + 4 * j, j * 64, j * 64 + 16))
        a("s_waitcnt lgkmcnt(0)")
        a.label("L_nores")
        self.flag_list(SY_FB, True)
        if cfg.get("stamp") == 3:
            self.stamp()

        a.label("L_conv")
        VV = [3, 4, 5]
        VFR, USET, ACC, EXT = 16, 64, 128, 96
        a("v_mov_b32 v22, s%d" % S_TAG)
        a("v_mov_b32 v14, 0")
        a("s_cmp_lg_u32 s%d, 4" % S_WV)
        a("s_waitcnt vmcnt(0)")
        if cfg.get("stamp"):
            self.stamp()
            a("s_cmp_lg_u32 s%d, 4" % S_WV)
        a("s_barrier")
        a("s_cbranch_scc1 L_noflag")
        self.flag_store(50)
        a.label("L_noflag")
        a("s_sub_u32 s%d, s%d, 0x800000" % (S_HISA, S_ISA))
        a("s_lshl_b32 s3, s%d, 23" % S_PHASE)
        a("s_cmp_ge_u32 s%d, 4" % S_WV)
        a("s_cbranch_scc1 L_prod")

        def ureg(st, blk):
            return USET + 16 * st + 4 * blk

        def vreg_(rp, k):
            return VFR + 4 * (rp * 6 + k)

        def areg(blk, i):
            return ACC + 4 * (blk * 8 + i)

        a("s_lshl_b32 s4, s%d, 2" % S_OCT)
        a("s_add_u32 s4, s4, s%d" % S_WV)
        a("s_mul_i32 s4, s4, %d" % (48 * 4096))
        a("s_add_u32 s3, s3, s4")
        a("s_add_u32 s3, s3, 0x%x" % WS_W1)
        a("s_add_u32 s16, s%d, s3" % P_WS)
        a("s_addc_u32 s17, s%d, 0" % (P_WS + 1))
        a("s_mov_b32 s18, 0x%x" % (48 * 4096))
        a("s_mov_b32 s19, 0x20000")
        a("s_mov_b32 s52, 0")
        a("s_mul_i32 s3, s%d, %d" % (S_WV, RS))
        for sh in range(3):
            a("v_add_u32 v11, %d, v8" % (15 + sh))
            a("v_bfe_u32 v12, v11, 2, 1")
            a("v_lshlrev_b32 v12, 1, v12")
            a("v_xor_b32 v12, v12, v9")
            a("v_lshlrev_b32 v12, 4, v12")
            a("v_lshl_add_u32 v12, v8, 6, v12")
            a("v_add_u32 v%d, s3, v12" % VV[sh])
        a("v_bfe_u32 v11, v2, 2, 3")
        a("v_mul_u32_u24 v11, %d, v11" % XPITCH)
        a("v_and_b32 v12, 3, v2")
        a("v_lshl_add_u32 v11, v12, 4, v11")
        a("v_add_u32 v11, s3, v11")
        for r in range(ACC, ACC + 128):
            a("v_mov_b32 v%d, 0" % r)
        a("ds_write_b128 v11, v[%d:%d] offset:1024" % (ACC, ACC + 3))
        a("v_add_u32 v7, s3, v6")
        a("s_waitcnt lgkmcnt(0)")
        a("s_cmp_lg_u32 s%d, 0" % S_PHASE)
        a("s_cbranch_scc1 L_uerly")
        a("s_barrier")
        a.label("L_uerly")

        def uload(st, blk):
            r = ureg(st, blk)
            return "buffer_load_dwordx4 v[%d:%d], v6, s[16:19], s52 offen offset:%d sc1" % (r, r + 3, blk * 1024)

        def vread(rp, k, buf):
            r = vreg_(rp, k)
            sh, off = {0: (0, POFF[3] - 64), 5: (2, POFF[0] + 64)}.get(k, (1, POFF[(k - 1) % 4]))
            return "ds_read_b128 v[%d:%d], v%d offset:%d" % (r, r + 3, VV[sh], buf * VB + rp * XPITCH + off)

        def mfma(st, blk, g, dx):
            rp, f = g % 2, g // 2
            d, u, x = areg(blk, rp * 4 + f), ureg(st, blk), vreg_(rp, f + dx)
            return "v_mfma_f32_16x16x32_bf16 v[%d:%d], v[%d:%d], v[%d:%d], v[%d:%d]" % (d, d + 3, u, u + 3, x, x + 3, d, d + 3)

        for st in range(4 if "u" in cfg.get("x", "") else 3):
            for blk in range(4):
                a(uload(st, blk))
            a("s_add_u32 s52, s52, 4096")
        a("s_cmp_eq_u32 s%d, 0" % S_PHASE)
        a("s_cbranch_scc1 L_ulate")
        a("s_barrier")
        a.label("L_ulate")
        a("s_barrier")
        self.stamp()
        for k in range(4):
            for rp in range(2):
                a(vread(rp, k, 0))
        a("s_mov_b32 s53, 0")
        a.raw(".p2align 6")
        a.label("L_loop")
        upos = cfg.get("upos", (0, 2, 4, 6))
        def dump(g, blk):
            i = (g % 2) * 4 + g // 2
            r = areg(blk, i)
            return "ds_write_b128 v7, v[%d:%d] offset:%d" % (r, r + 3, (blk * 8 + i) * FS)

        for s in range(12):
            st, dx, buf = s % 4, s % 3, s // 3
            nbuf = (buf + 1) % 4
            rd = {}
            if dx == 0:
                rd[(6, 0)] = vread(0, 4, buf)
                rd[(7, 0)] = vread(1, 4, buf)
            elif dx == 1:
                rd[(0, 0)] = vread(0, 5, buf)
                rd[(1, 0)] = vread(1, 5, buf)
            else:
                for g, k in ((1, 0), (2, 1), (3, 2), (5, 3)):
                    rd[(g, 0)] = vread(0, k, nbuf)
                    rd[(g, 2)] = vread(1, k, nbuf)
            if s == 11:
                a("s_cbranch_scc1 L_last")
            for g in range(8):
                if g == 0:
                    a("s_waitcnt vmcnt(8) lgkmcnt(4)" if dx == 0 else "s_waitcnt vmcnt(8)")
                if (dx == 0 and g == 4) or (dx == 1 and g == 6):
                    a("s_waitcnt lgkmcnt(0)")
                for blk in range(4):
                    a(mfma(st, blk, g, dx))
                    if (g, blk) in rd and "d" not in cfg.get("x", ""):
                        a(rd[(g, blk)])
                    if blk == 2 and g == 0 and dx == 2:
                        a("s_barrier")
                    if blk == 1 and g in upos and "u" not in cfg.get("x", ""):
                        a(uload((s + 3) % 4, upos.index(g)))
                    if blk == 2 and g == 7:
                        a("s_add_u32 s52, s52, 4096")
                    if blk == 2 and g == 7 and s == 10:
                        a("s_cmp_eq_u32 s53, 3")
                    if blk == 0 and g == 7 and s == 11:
                        a("s_add_u32 s53, s53, 1")
        a("s_branch L_loop")
        a.label("L_last")
        a("s_waitcnt vmcnt(8)")
        for g in range(8):
            for blk in range(4):
                a(mfma(3, blk, g, 2))
                if g >= 2:
                    a(dump(g - 2, blk))
        self.stamp()
        for blk in range(4):
            a(dump(6, blk))
        a("s_nop 3")
        for blk in range(4):
            a(dump(7, blk))
        a("s_waitcnt vmcnt(0)")
        self.epi_loads()
        a("s_waitcnt lgkmcnt(0)")
        a("s_branch L_epi")

        a.label("L_prod")
        D = 2
        RAW, TMP, OUT = 24, 72, 88
        a("s_lshl_b32 s4, s%d, 22" % S_B)
        a("s_add_u32 s3, s3, s4")
        a("s_add_u32 s16, s%d, s3" % P_WS)
        a("s_addc_u32 s17, s%d, 0" % (P_WS + 1))
        a("s_mov_b32 s18, 0x%x" % (IMG_BYTES // 2))
        a("s_mov_b32 s19, 0x20000")
        a("s_sub_u32 s4, s%d, 4" % S_WV)
        a("s_lshl_b32 s4, s4, 10")
        a("v_add_u32 v3, s4, v6")
        a("s_cmp_eq_u32 s%d, 7" % S_WV)
        a("s_cselect_b32 s4, 0, s4")
        a("s_add_u32 s4, s4, 1088")
        a("s_cmp_eq_u32 s%d, 4" % S_WV)
        a("s_cselect_b32 s4, 0, s4")
        a("v_add_u32 v4, s4, v6")
        a("v_add_u32 v5, %d, v4" % (2 * RS))
        a("s_lshl_b32 s3, s%d, 14" % S_RT)
        for r in range(6):
            a("s_add_u32 s%d, s3, 0x%x" % (52 + r, ((r - 1) * 4096) & 0xFFFFFFFF))
        a("s_cmp_eq_u32 s%d, 0" % S_RT)
        a("s_cselect_b32 s52, 0x40000000, s52")
        a("s_cmp_eq_u32 s%d, 15" % S_RT)
        a("s_cselect_b32 s57, 0x40000000, s57")
        a("s_cmp_lg_u32 s%d, 4" % S_WV)
        a("s_cbranch_scc1 L_nopoll")
        self.flag_poll(23)
        a.label("L_nopoll")
        a("s_barrier")

        def rawload(st):
            for r in range(6):
                d = RAW + 24 * st + 4 * r
                a("buffer_load_dwordx4 v[%d:%d], v3, s[16:19], s%d offen sc1" % (d, d + 3, 52 + r))
            a("v_add_u32 v3, 0x40000, v3")

        COMB = [(0, 2, -1), (1, 2, 1), (2, 1, -1), (1, 3, -1)]

        def produce(st, buf):
            if buf in (1, 2) and not cfg.get("w2p0", 2):
                l1, l2 = a.nl("pw"), a.nl("pw")
                a("s_cmp_lg_u32 s38, 0")
                a("s_cbranch_scc1 %s" % l1)
                a("s_waitcnt vmcnt(6)")
                a.label(l1)
                a("s_waitcnt vmcnt(15)")
            else:
                a("s_waitcnt vmcnt(6)")
            for rp in range(2):
                for xi in range(4):
                    ra, rb, sg = COMB[xi]
                    ra, rb = RAW + 24 * st + 4 * (ra + 2 * rp), RAW + 24 * st + 4 * (rb + 2 * rp)
                    o = OUT + 4 * (rp * 4 + xi)
                    t = TMP + 8 * (xi % 2)
                    X = cfg.get("x", "")
                    lsk = a.nl("xs")
                    if "v" in X:
                        a("s_cmp_lg_u32 s58, 0")
                        a("s_cbranch_scc1 %s" % lsk)
                    for d in range(4):
                        for h in range(2):
                            a("v_fma_mix_f32 v%d, v%d, 1.0, %sv%d op_sel:[%d,0,%d] op_sel_hi:[1,0,1]" %
                              (t + 2 * d + h, ra + d, "-" if sg < 0 else "", rb + d, h, h))
                    for d in range(4):
                        a("v_cvt_pk_bf16_f32 v%d, v%d, v%d" % (o + d, t + 2 * d, t + 2 * d + 1))
                    if "w" not in X:
                        a.label(lsk)
                    a("ds_write_b128 v%d, v[%d:%d] offset:%d" %
                      (4 if xi < 2 else 5, o, o + 3, (xi & 1) * RS + buf * VB + rp * XPITCH))
                    if "w" in X:
                        a.label(lsk)
            if "r" not in cfg.get("x", ""):
                rawload(st)
            if buf == 0 and not cfg.get("w2p0", 2):
                l1 = a.nl("pd")
                a("s_mov_b32 s38, 0")
                a("s_cmp_lg_u32 s58, s39")
                a("s_cbranch_scc1 %s" % l1)
                a("s_mov_b32 s38, 1")
                a("s_sub_u32 s51, s%d, 4" % S_WV)
                a("s_lshl_b32 s50, s37, 1")
                a("s_add_u32 s50, s50, s51")
                a("s_mul_i32 s51, s51, 9216")
                a("s_add_u32 s51, s51, %d" % L_W2)
                self.w_dma(P_W2, 36, 50, 51)
                a.label(l1)
            a("s_waitcnt lgkmcnt(0)")

        for st in range(D):
            rawload(st)
        a("s_mov_b32 s58, 0")
        a("s_cmp_lt_u32 s%d, 6" % S_WV)
        a("s_cselect_b32 s39, %d, 99" % cfg.get("w2it", 1))
        a("s_cmp_lg_u32 s%d, 0" % S_PHASE)
        a("s_cselect_b32 s39, 99, s39")
        a.label("L_ploop")
        for j in range(4):
            produce(j % D, j)
            a("s_barrier")
        a("s_add_u32 s58, s58, 1")
        a("s_cmp_lt_u32 s58, 4")
        a("s_cbranch_scc1 L_ploop")
        a("s_waitcnt vmcnt(0)")
        a("s_cmp_eq_u32 s%d, 0" % S_PHASE)
        a("s_cbranch_scc1 L_pph0")
        a("s_lshl_b32 s3, s%d, 12" % S_WV)
        a("s_add_u32 s3, s3, %d" % (L_W2 - 4 * 4096))
        a("v_add_u32 v10, s3, v6")
        for k in range(4):
            a("ds_write_b128 v10, v[%d:%d] offset:%d" % (224 + 4 * k, 227 + 4 * k, k * 1024))
        a("s_waitcnt lgkmcnt(0)")
        a("s_branch L_pextra_done")
        a.label("L_pph0")
        a("s_cmp_eq_u32 s%d, 4" % S_WV)
        a("s_cbranch_scc1 L_pemb")
        a("s_mov_b32 s38, 0")
        if cfg.get("nou2"):
            a("s_branch L_pextra_done")
        a.label("L_pu2")
        self.w_pack_part(WS_W2, 36, 37, L_W2, 24, 38)
        a("s_add_u32 s38, s38, 1")
        a("s_cmp_lt_u32 s38, 2")
        a("s_cbranch_scc1 L_pu2")
        a("s_branch L_pextra_done")
        a.label("L_pemb")
        srd(a, 12, P_WS, WS_EMB, 65536)
        a("s_lshl_b32 s3, s%d, 11" % S_B)
        a("s_lshl_b32 s4, s%d, 8" % S_OCT)
        a("s_add_u32 s3, s3, s4")
        a("v_lshlrev_b32 v10, 2, v2")
        for er in range(16):
            a("buffer_load_dword v%d, v10, s[12:15], s3 offen sc1" % (24 + er))
            if er < 15:
                a("s_add_u32 s3, s3, 4096")
        a("s_waitcnt vmcnt(0)")
        for k in range(8):
            a("v_add_f32 v%d, v%d, v%d" % (24 + k, 24 + k, 32 + k))
        for k in range(4):
            a("v_add_f32 v%d, v%d, v%d" % (24 + k, 24 + k, 28 + k))
        a("v_add_f32 v24, v24, v26")
        a("v_add_f32 v25, v25, v27")
        a("v_add_f32 v24, v24, v25")
        a("v_add_u32 v10, %d, v10" % L_EMB)
        a("ds_write_b32 v10, v24")
        a("s_waitcnt lgkmcnt(0)")
        a.label("L_pextra_done")
        self.epi_loads(warm=True)

        a.label("L_epi")
        a("s_barrier")
        self.stamp()
        M, Y = 112, 176
        a("s_cmp_lg_u32 s%d, 0" % S_PHASE)
        a("s_cbranch_scc1 L_epi2")
        a("s_and_b32 s59, s%d, 1" % S_WV)
        a("s_lshr_b32 s3, s%d, 1" % S_WV)
        a("s_lshl_b32 s4, s59, 4")
        a("s_lshl_b32 s3, s3, 1")
        a("s_add_u32 s4, s4, s3")
        a("s_mul_i32 s4, s4, %d" % FS)
        a("v_add_u32 v10, s4, v6")
        a("v_add_u32 v11, %d, v10" % (2 * RS))
        a("v_mov_b32 v12, 0")
        a("ds_read_b32 v16, v12")
        a("ds_read_b32 v17, v12 offset:%d" % RS)
        a("v_mov_b32 v12, %d" % (2 * RS))
        a("ds_read_b32 v18, v12")
        a("s_lshl_b32 s3, s59, 7")
        a("s_add_u32 s3, s3, %d" % L_EMB)
        a("v_lshl_add_u32 v12, v9, 5, s3")
        a("ds_read_b128 v[48:51], v12")
        a("ds_read_b128 v[52:55], v12 offset:16")
        for u in range(2):
            for xi in range(4):
                for h in range(2):
                    r = M + 4 * ((u * 4 + xi) * 2 + h)
                    a("ds_read_b128 v[%d:%d], v%d offset:%d" %
                      (r, r + 3, 10 if xi < 2 else 11, (xi & 1) * RS + (h * 8 + u) * FS))
        a("s_waitcnt lgkmcnt(8)")
        a("v_add_f32 v17, v17, v18")
        a("v_fma_f32 v20, v17, 0.5, v16")
        a("v_mul_f32 v20, s%d, v20" % S_ISA)
        for j in range(4):
            pk(a, "add", 48 + 2 * j, [48 + 2 * j, vbc(20)], neg=[0, 1])
        for u in range(2):
            if u == 1:
                a("s_waitcnt lgkmcnt(0)")
            for j in range(0, 8, 2):
                m = [M + 4 * ((u * 4 + xi) * 2 + j // 4) + j % 4 for xi in range(4)]
                ye, yo = Y + u * 16 + j, Y + u * 16 + 8 + j
                pk(a, "add", ye, [m[1], m[2]])
                pk(a, "add", yo, [m[1], m[2]], neg=[0, 1])
                pk(a, "fma", m[0], [m[0], sbc(S_ISA), 48 + j])
                pk(a, "fma", m[3], [m[3], sbc(S_ISA), 48 + j], neg=[1, 0, 0])
                pk(a, "fma", ye, [ye, sbc(S_HISA), m[0]])
                pk(a, "fma", yo, [yo, sbc(S_HISA), m[3]])
        self.local_stats([Y + 2 * i for i in range(16)], "v[20:21]")
        a("s_waitcnt vmcnt(0)")
        a("s_barrier")
        a("s_cmp_lg_u32 s%d, 0" % S_WV)
        a("s_cbranch_scc1 L_edone")
        a.label("L_e0")
        self.granule_slot(SY_GC)
        self.group_sync("v20", 50, 51, both=True)
        a.label("L_edone")
        srd(a, 8, P_WS, WS_A2, IMG_BYTES)
        a("s_lshl_b32 s56, s%d, 4" % S_B)
        a("s_lshl_b32 s57, s%d, 1" % S_OCT)
        a("s_add_u32 s56, s56, s57")
        a("s_add_u32 s56, s56, s59")
        a("s_lshl_b32 s56, s56, 18")
        a("s_lshl_b32 s57, s%d, 14" % S_RT)
        a("s_add_u32 s56, s56, s57")
        a("s_lshr_b32 s57, s%d, 2" % S_WV)
        a("s_lshl_b32 s57, s57, 13")
        a("s_add_u32 s56, s56, s57")
        a("s_bfe_u32 s57, s%d, 0x10001" % S_WV)
        a("s_lshl_b32 s57, s57, 11")
        a("s_add_u32 s56, s56, s57")
        a("s_add_u32 s57, s56, 4096")
        a("v_bfe_u32 v11, v8, 2, 1")
        a("v_lshlrev_b32 v11, 1, v11")
        a("v_xor_b32 v11, v11, v9")
        a("v_lshlrev_b32 v11, 4, v11")
        a("v_lshl_add_u32 v11, v8, 6, v11")
        self.flag_list(SY_FD, False)
        a("v_mov_b32 v12, %d" % L_BC)
        a("s_barrier")
        a("ds_read_b64 v[16:17], v12")
        a("s_mov_b32 s%d, s%d" % (S_ISA, S_ISA2))
        a("s_mov_b32 s%d, 1" % S_PHASE)
        self.norm_coeffs(EXT + 8, EXT + 12, 24, 32)
        for u in range(2):
            prs = [Y + u * 16 + 2 * j for j in range(8)]
            tm = [40 + 2 * j for j in range(8)]
            for j in range(8):
                pk(a, "fma", prs[j], [prs[j], 24 + 2 * (j % 4), 32 + 2 * (j % 4)])
            silu_pk(a, prs, tm)
            for e in range(2):
                o = 56 + 4 * (u * 2 + e)
                for k in range(4):
                    a("v_cvt_pk_f16_f32 v%d, v%d, v%d" % (o + k, prs[e * 4 + k], prs[e * 4 + k] + 1))
                a("buffer_store_dwordx4 v[%d:%d], v11, s[8:11], s%d offen offset:%d sc1" % (o, o + 3, 56 + e, u * 1024))
        a("s_branch L_conv")

        a.label("L_epi2")
        a("s_cmp_ge_u32 s%d, 4" % S_WV)
        a("s_cbranch_scc1 L_haveres")
        a("s_lshl_b32 s3, s%d, 12" % S_WV)
        a("s_add_u32 s3, s3, %d" % L_W2)
        a("v_add_u32 v10, s3, v6")
        for k in range(4):
            a("ds_read_b128 v[%d:%d], v10 offset:%d" % (208 + 4 * k, 211 + 4 * k, k * 1024))
        a.label("L_haveres")
        a("s_lshl_b32 s3, s%d, 2" % S_WV)
        a("s_mul_i32 s3, s3, %d" % FS)
        a("v_add_u32 v10, s3, v6")
        a("v_add_u32 v11, %d, v10" % (2 * RS))
        for k in range(4):
            for xi in range(4):
                r = M + 4 * (k * 4 + xi)
                a("ds_read_b128 v[%d:%d], v%d offset:%d" % (r, r + 3, 10 if xi < 2 else 11, (xi & 1) * RS + k * FS))
        a("s_waitcnt lgkmcnt(15)")
        for j in range(4):
            for e in range(2):
                for d in range(2):
                    unpack(a, 48 + ((2 * d) * 2 + e) * 4 + j, 48 + ((2 * d + 1) * 2 + e) * 4 + j, 208 + (j * 2 + e) * 2 + d)
        for k in range(4):
            a("s_waitcnt lgkmcnt(%d)" % (12 - 4 * k))
            for j in range(0, 4, 2):
                m = [M + 4 * (k * 4 + xi) + j for xi in range(4)]
                ye, yo = Y + (k * 2) * 4 + j, Y + (k * 2 + 1) * 4 + j
                xe, xo = 48 + (k * 2) * 4 + j, 48 + (k * 2 + 1) * 4 + j
                pk(a, "add", ye, [m[1], m[2]])
                pk(a, "add", yo, [m[1], m[2]], neg=[0, 1])
                pk(a, "fma", m[0], [m[0], sbc(S_ISA), xe])
                pk(a, "fma", m[3], [m[3], sbc(S_ISA), xo], neg=[1, 0, 0])
                pk(a, "fma", ye, [ye, sbc(S_HISA), m[0]])
                pk(a, "fma", yo, [yo, sbc(S_HISA), m[3]])
        srd(a, 8, P_OUT, 0, IMG_BYTES)
        for j in range(4):
            for e in range(2):
                o = 16 + 2 * (j * 2 + e)
                for d in range(2):
                    a("v_cvt_pk_bf16_f32 v%d, v%d, v%d" % (o + d, Y + ((2 * d) * 2 + e) * 4 + j, Y + ((2 * d + 1) * 2 + e) * 4 + j))
                a("buffer_store_dwordx2 v[%d:%d], v13, s[8:11], s%d offen offset:%d%s" % (o, o + 1, 60 + j, e * 128, cfg.get("of", " nt")))
        if cfg.get("stamp"):
            a("s_waitcnt vmcnt(0)")
        self.stamp()
        self.stamp_flush()
        a.label("L_end")
        a("s_endpgm")
        a.label("L_codeend")
        return name

    def epi_loads(self, warm=False):
        a = self.a
        EXT = 96
        l1, l2 = a.nl("el"), a.nl("eld")
        a("s_cmp_lg_u32 s%d, 0" % S_PHASE)
        a("s_cbranch_scc1 %s" % l1)
        srd(a, 24, P_G2, 0, 1024)
        srd(a, 28, P_BE2, 0, 1024)
        a("s_and_b32 s4, s%d, 1" % S_WV)
        a("s_lshl_b32 s4, s4, 6")
        a("s_lshl_b32 s3, s%d, 7" % S_OCT)
        a("s_add_u32 s3, s3, s4")
        a("v_lshlrev_b32 v13, 4, v9")
        a("buffer_load_dwordx4 v[%d:%d], v13, s[24:27], s3 offen" % (EXT + 8, EXT + 11))
        a("buffer_load_dwordx4 v[%d:%d], v13, s[28:31], s3 offen" % (EXT + 12, EXT + 15))
        a("s_branch %s" % l2)
        a.label(l1)
        a("s_lshl_b32 s3, s%d, 22" % S_B)
        a("s_lshl_b32 s4, s%d, 19" % S_OCT)
        a("s_add_u32 s3, s3, s4")
        a("s_lshr_b32 s4, s%d, 2" % S_WV)
        a("s_lshl_b32 s4, s4, 18")
        a("s_add_u32 s3, s3, s4")
        a("s_bfe_u32 s4, s%d, 0x10001" % S_WV)
        a("s_lshl_b32 s4, s4, 15")
        a("s_add_u32 s3, s3, s4")
        a("s_lshl_b32 s4, s%d, 9" % S_RT)
        a("s_add_u32 s3, s3, s4")
        a("s_and_b32 s4, s%d, 1" % S_WV)
        a("s_lshl_b32 s4, s4, 8")
        a("s_add_u32 s60, s3, s4")
        a("s_add_u32 s61, s60, 8192")
        a("s_add_u32 s62, s60, 16384")
        a("s_add_u32 s63, s60, 24576")
        a("v_lshlrev_b32 v13, 16, v9")
        a("v_lshl_add_u32 v13, v8, 3, v13")
        a.label(l2)


def build(cfg):
    ref = open("standalone__adm_resblock__diffusion.s.ref").read()
    head = []
    for l in ref.splitlines():
        if "@launch" in l:
            break
        head.append(l)
    g = Gen(cfg)
    name = g.build()
    out = list(head)
    if cfg.get("aslist"):
        out.append("; @launch kernel=%s grid=(256,1,1) block=(512,1,1) lds=%d" % (name, LDS_BYTES))
    else:
        out.append("; @launch grid=(256,1,1) block=(512,1,1) lds=%d" % LDS_BYTES)
    out.append('.amdgcn_target "amdgcn-amd-amdhsa--gfx950"')
    out.append(".text")
    s = "\n".join(out) + "\n" + g.a.text()
    s += """.section .rodata,"a"
.p2align 6
.amdhsa_kernel %s
  .amdhsa_next_free_vgpr 256
  .amdhsa_next_free_sgpr 102
  .amdhsa_accum_offset 256
  .amdhsa_group_segment_fixed_size 0
  .amdhsa_kernarg_size 96
  .amdhsa_user_sgpr_count 2
  .amdhsa_user_sgpr_kernarg_segment_ptr 1
  .amdhsa_system_sgpr_workgroup_id_x 1
  .amdhsa_float_denorm_mode_32 3
  .amdhsa_float_denorm_mode_16_64 3
.end_amdhsa_kernel
""" % name
    return s


if __name__ == "__main__":
    cfg = {}
    outp = "standalone__adm_resblock__diffusion.s"
    for arg in sys.argv[1:]:
        k, v = arg.split("=", 1)
        if k == "out":
            outp = v
        else:
            cfg[k] = eval(v)
    open(outp, "w").write(build(cfg))
    print("wrote", outp)
```

```python
import struct
import sys

WS_A1 = 0x0000000
WS_A2 = 0x0800000
WS_W1 = 0x1000000
WS_W2 = 0x1800000
WS_SYNC = 0x2000000
WS_EMB = 0x2020000
WS_DBG = 0x3000000
IMG_BYTES = 8 << 20
W_BYTES = 512 * 4608 * 2
UP_BYTES = 32 * 48 * 4096
SY_GA, SY_FB, SY_GC, SY_FD = 0, 0x8000, 0x10000, 0x18000

XPITCH = 4160
POFF = [0, 2112, 3136, 1088]
VB = 2 * XPITCH
RS = 4 * VB
FS = 1040
L_STAT = 4 * RS
L_BC = L_STAT + 256
L_WF = L_BC + 32
L_EMB = L_BC + 64
L_W1 = 0
L_XS = 20480
L_W2 = L_EMB + 256
LDS_BYTES = L_W2 + 2 * 9216

LOG2E = 1.4426950408889634

P_X, P_TEMB, P_G1, P_BE1, P_W1, P_WEMB, P_G2, P_BE2, P_W2, P_OUT, P_DBG, P_WS = [64 + 2 * i for i in range(12)]
S_OCT, S_B, S_RT, S_WV, S_PT = 40, 41, 42, 43, 44
S_TAG, S_PHASE, S_ISA, S_HISA, S_ISA2, S_NL2E, S_ISAO = 88, 89, 90, 91, 92, 93, 94
S_ST = 96
SRD_SY = 20


def f2u(f):
    return struct.unpack("<I", struct.pack("<f", f))[0]


def fx(f):
    return "0x%08x" % f2u(f)


class Asm:
    def __init__(self):
        self.lines = []
        self.uid = 0

    def __call__(self, s):
        for l in s.strip("\n").split("\n"):
            self.lines.append("    " + l.strip())

    def label(self, l):
        self.lines.append(l + ":")

    def raw(self, s):
        self.lines.append(s)

    def nl(self, base):
        self.uid += 1
        return "L_%s_%d" % (base, self.uid)

    def text(self):
        return "\n".join(self.lines) + "\n"


def srd(a, d, ptr, off, nbytes):
    if off:
        a("s_add_u32 s%d, s%d, 0x%x" % (d, ptr, off))
        a("s_addc_u32 s%d, s%d, 0" % (d + 1, ptr + 1))
    else:
        a("s_mov_b32 s%d, s%d" % (d, ptr))
        a("s_mov_b32 s%d, s%d" % (d + 1, ptr + 1))
    a("s_mov_b32 s%d, 0x%x" % (d + 2, nbytes))
    a("s_mov_b32 s%d, 0x20000" % (d + 3))


DPP_STEPS = [
    "quad_perm:[1,0,3,2] row_mask:0xf bank_mask:0xf",
    "quad_perm:[2,3,0,1] row_mask:0xf bank_mask:0xf",
    "row_half_mirror row_mask:0xf bank_mask:0xf",
    "row_mirror row_mask:0xf bank_mask:0xf",
    "row_bcast:15 row_mask:0xa bank_mask:0xf",
    "row_bcast:31 row_mask:0xc bank_mask:0xf",
]


def dpp_reduce(a, regs, nsteps, op="v_add_f32_dpp"):
    n = len(regs)
    a("s_nop 1")
    for st in DPP_STEPS[:nsteps]:
        for r in regs:
            a("%s v%d, v%d, v%d %s" % (op, r, r, r, st))
        if n == 1:
            a("s_nop 1")
        elif n == 2:
            a("s_nop 0")


def unpack(a, dst_lo, dst_hi, src):
    a("v_lshlrev_b32 v%d, 16, v%d" % (dst_lo, src))
    a("v_and_b32 v%d, 0xffff0000, v%d" % (dst_hi, src))


def silu_group(a, vals, tmps, s_isa=None):
    for v, t in zip(vals, tmps):
        a("v_mul_f32 v%d, s%d, v%d" % (t, S_NL2E, v))
    for v, t in zip(vals, tmps):
        a("v_exp_f32 v%d, v%d" % (t, t))
    for v, t in zip(vals, tmps):
        if s_isa is None:
            a("v_add_f32 v%d, 1.0, v%d" % (t, t))
        else:
            a("v_fma_f32 v%d, v%d, s%d, s%d" % (t, t, s_isa, s_isa))
    for v, t in zip(vals, tmps):
        a("v_rcp_f32 v%d, v%d" % (t, t))
    for v, t in zip(vals, tmps):
        a("v_mul_f32 v%d, v%d, v%d" % (v, v, t))


def pr(r):
    assert r % 2 == 0, r
    return "v[%d:%d]" % (r, r + 1)


def sbc(sreg):
    e = sreg & ~1
    return "s[%d:%d]" % (e, e + 1), sreg & 1


def vbc(vreg):
    e = vreg & ~1
    return "v[%d:%d]" % (e, e + 1), vreg & 1


def pk(a, op, dst, srcs, neg=None):
    txt, lo, hi = [], [], []
    for x in srcs:
        if isinstance(x, tuple):
            txt.append(x[0]); lo.append(x[1]); hi.append(x[1])
        else:
            txt.append(pr(x)); lo.append(0); hi.append(1)
    m = ""
    if any(lo):
        m += " op_sel:[%s]" % ",".join(map(str, lo))
    if not all(hi):
        m += " op_sel_hi:[%s]" % ",".join(map(str, hi))
    if neg and any(neg):
        n = ",".join(map(str, neg))
        m += " neg_lo:[%s] neg_hi:[%s]" % (n, n)
    a("v_pk_%s_f32 %s, %s%s" % (op, pr(dst), ", ".join(txt), m))


def silu_pk(a, pairs, tmps):
    for v, t in zip(pairs, tmps):
        pk(a, "mul", t, [v, sbc(S_NL2E)])
    for v, t in zip(pairs, tmps):
        a("v_exp_f32 v%d, v%d" % (t, t))
        a("v_exp_f32 v%d, v%d" % (t + 1, t + 1))
    for v, t in zip(pairs, tmps):
        pk(a, "fma", t, [t, sbc(S_ISA), sbc(S_ISA)])
    for v, t in zip(pairs, tmps):
        a("v_rcp_f32 v%d, v%d" % (t, t))
        a("v_rcp_f32 v%d, v%d" % (t + 1, t + 1))
    for v, t in zip(pairs, tmps):
        pk(a, "mul", v, [v, t])


class Gen:
    def __init__(self, cfg):
        self.cfg = cfg
        self.a = Asm()

    def stamp(self, real=True):
        if not self.cfg.get("stamp"):
            return
        a = self.a
        a("%s s[96:97]" % ("s_memrealtime" if real else "s_memtime"))
        a("s_waitcnt lgkmcnt(0)")
        a("s_mov_b32 m0, s98")
        a("s_nop 0")
        a("v_writelane_b32 v15, s96, m0")
        a("s_add_u32 s98, s98, 1")

    def stamp_flush(self):
        if not self.cfg.get("stamp"):
            return
        a = self.a
        a("s_mov_b64 exec, -1")
        srd(a, 8, P_WS, WS_DBG, 0x100000)
        a("s_lshl_b32 s3, s2, 11")
        a("s_lshl_b32 s4, s%d, 8" % S_WV)
        a("s_add_u32 s3, s3, s4")
        a("v_lshlrev_b32 v1, 2, v2")
        a("buffer_store_dword v15, v1, s[8:11], s3 offen")
        if self.cfg.get("stamp") == 2:
            l = a.nl("sd")
            a("s_cmp_lg_u32 s2, 5")
            a("s_cbranch_scc1 %s" % l)
            a("s_cmp_lg_u32 s%d, 0" % S_WV)
            a("s_cbranch_scc1 %s" % l)
            srd(a, 8, P_DBG, 0, 64)
            a("v_readlane_b32 s3, v15, 0")
            a("s_nop 3")
            a("v_subrev_u32 v15, s3, v15")
            a("buffer_store_dword v15, v1, s[8:11], 0 offen offset:4")
            a.label(l)

    def local_stats(self, vals, cpair):
        a = self.a
        for i, src in enumerate(vals):
            acc = 24 + 4 * (i % 2)
            if i < 2:
                pk(a, "add", acc, [src, vals[i + 2]])
                pk(a, "mul", acc + 2, [src, src])
            else:
                if i >= 4:
                    pk(a, "add", acc, [acc, src])
                pk(a, "fma", acc + 2, [src, src, acc + 2])
        a("v_pk_add_f32 v[24:25], v[24:25], v[28:29]")
        a("v_pk_add_f32 v[26:27], v[26:27], v[30:31]")
        a("v_add_f32 v24, v24, v25")
        a("v_add_f32 v25, v26, v27")
        dpp_reduce(a, [24, 25], 4)
        a("s_lshl_b32 s3, s%d, 5" % S_WV)
        a("s_add_u32 s3, s3, %d" % L_STAT)
        a("v_lshl_add_u32 v12, v9, 3, s3")
        a("ds_write_b64 v12, v[24:25]")
        a("s_waitcnt lgkmcnt(0)")

    def group_sync(self, csrc, s_own, s_grp, both=False, filler=None):
        a = self.a
        a("v_lshlrev_b32 v12, 4, v8")
        a("v_add_u32 v12, %d, v12" % L_STAT)
        a("ds_read_b128 v[24:27], v12")
        a("v_and_b32 v13, 31, v2")
        a("v_lshlrev_b32 v13, 7, v13")
        if both:
            a("s_xor_b32 s7, s%d, 0x4000" % s_grp)
            a("s_sub_u32 s7, s7, s%d" % s_grp)
            a("v_lshrrev_b32 v14, 5, v2")
            a("v_mul_lo_u32 v14, v14, s7")
            a("v_add_u32 v13, v13, v14")
            a("v_add_u32 v13, s%d, v13" % s_grp)
        a("v_mov_b32 v29, s%d" % S_TAG)
        a("v_mov_b32 v31, s%d" % S_TAG)
        a("v_mov_b32 v14, 0")
        a("s_waitcnt lgkmcnt(0)")
        a("v_add_f32 v24, v24, v26")
        a("v_add_f32 v25, v25, v27")
        dpp_reduce(a, [24, 25], 4)
        a("v_mul_f32 v26, %s, v24" % fx(1.0 / 16384))
        a("v_add_f32 v28, %s, v26" % csrc)
        a("v_fma_f32 v30, -v24, v26, v25")
        a("v_max_f32 v30, 0, v30")
        a("s_mov_b64 exec, 1")
        a("buffer_store_dwordx4 v[28:31], v14, s[%d:%d], s%d offen sc1" % (SRD_SY, SRD_SY + 3, s_own))
        a("s_mov_b64 exec, -1")
        self.stamp()
        if filler:
            filler()
        if self.cfg.get("presleep", 8):
            a("s_sleep %d" % self.cfg.get("presleep", 8))
        a("s_mov_b32 s5, 0")
        lp, ld = a.nl("poll"), a.nl("polld")
        a.label(lp)
        a("buffer_load_dwordx4 v[32:35], v13, s[%d:%d], %s offen sc1" % (SRD_SY, SRD_SY + 3, "0" if both else "s%d" % s_grp))
        a("s_waitcnt vmcnt(0)")
        a("v_cmp_ne_u32 vcc, s%d, v33" % S_TAG)
        a("v_cmp_ne_u32 s[6:7], s%d, v35" % S_TAG)
        a("s_or_b64 vcc, vcc, s[6:7]")
        a("s_cbranch_scc0 %s" % ld)
        a("s_add_u32 s5, s5, 1")
        a("s_cmp_lt_u32 s5, 0x10000")
        a("s_cbranch_scc0 %s" % ld)
        a("s_sleep 1")
        a("s_branch %s" % lp)
        a.label(ld)
        self.stamp()
        a("v_readfirstlane_b32 s6, v32")
        a("s_nop 1")
        a("v_subrev_f32 v36, s6, v32")
        a("v_mul_f32 v37, v36, v36")
        dpp_reduce(a, [36, 37, 34], 5)
        a("v_mul_f32 v41, %s, v36" % fx(1.0 / 32))
        a("v_fma_f32 v42, -v36, v41, v37")
        a("v_max_f32 v42, 0, v42")
        a("v_fmac_f32 v34, %s, v42" % fx(16384.0))
        a("v_mov_b32 v43, %s" % fx(1e-5))
        a("v_fmac_f32 v43, %s, v34" % fx(1.0 / 524288))
        a("v_add_f32 v42, s6, v41")
        a("v_rsq_f32 v43, v43")
        a("v_mov_b32 v12, %d" % L_BC)
        a("s_mov_b32 exec_lo, 0x80000000")
        a("s_mov_b32 exec_hi, 0")
        a("ds_write_b64 v12, v[42:43]")
        a("s_mov_b64 exec, -1")
        a("s_waitcnt lgkmcnt(0)")

    def granule_slot(self, area):
        a = self.a
        a("s_lshl_b32 s51, s%d, 2" % S_B)
        a("s_lshr_b32 s3, s%d, 1" % S_OCT)
        a("s_add_u32 s51, s51, s3")
        a("s_lshl_b32 s51, s51, 12")
        a("s_add_u32 s51, s51, %d" % area)
        a("s_and_b32 s50, s%d, 1" % S_OCT)
        a("s_lshl_b32 s50, s50, 4")
        a("s_add_u32 s50, s50, s%d" % S_RT)
        a("s_lshl_b32 s50, s50, 7")
        a("s_add_u32 s50, s50, s51")

    def flag_list(self, area, with_u):
        a = self.a
        a("v_lshrrev_b32 v12, 3, v2")
        a("v_min_u32 v12, 2, v12")
        a("v_add_u32 v12, s%d, v12" % S_RT)
        a("v_max_u32 v12, 1, v12")
        a("v_min_u32 v12, 16, v12")
        a("s_lshl_b32 s3, s%d, 4" % S_B)
        a("s_sub_u32 s3, s3, 1")
        a("v_add_u32 v12, s3, v12")
        a("v_and_b32 v13, 7, v2")
        a("v_lshl_add_u32 v12, v12, 3, v13")
        if with_u:
            a("v_subrev_u32 v13, 32, v2")
            a("v_lshlrev_b32 v13, 3, v13")
            a("v_add_u32 v13, s%d, v13" % S_OCT)
            a("v_cmp_gt_u32 vcc, 32, v2")
        a("s_lshl_b32 s50, s%d, 3" % S_PT)
        a("s_add_u32 s50, s50, s%d" % S_OCT)
        if with_u:
            a("v_cndmask_b32 v12, v13, v12, vcc")
        a("v_lshlrev_b32 v12, 7, v12")
        a("v_add_u32 v23, %d, v12" % area)
        a("s_lshl_b32 s50, s50, 7")
        a("s_add_u32 s50, s50, %d" % area)

    def flag_store(self, s_own):
        a = self.a
        a("s_mov_b64 exec, 1")
        a("buffer_store_dword v22, v14, s[%d:%d], s%d offen sc1" % (SRD_SY, SRD_SY + 3, s_own))
        a("s_mov_b64 exec, -1")
        self.stamp()

    def flag_poll(self, v_list):
        a = self.a
        if self.cfg.get("presleep2", 6):
            a("s_sleep %d" % self.cfg.get("presleep2", 6))
        a("s_mov_b32 s5, 0")
        lp, ld = a.nl("poll"), a.nl("polld")
        a.label(lp)
        a("buffer_load_dword v25, v%d, s[%d:%d], 0 offen sc1" % (v_list, SRD_SY, SRD_SY + 3))
        a("s_waitcnt vmcnt(0)")
        a("v_cmp_ne_u32 vcc, s%d, v25" % S_TAG)
        a("s_cmp_eq_u64 vcc, 0")
        a("s_cbranch_scc1 %s" % ld)
        a("s_add_u32 s5, s5, 1")
        a("s_cmp_lt_u32 s5, 0x10000")
        a("s_cbranch_scc0 %s" % ld)
        a("s_sleep 1")
        a("s_branch %s" % lp)
        a.label(ld)
        self.stamp()

    def w_dma(self, ptr, s_ob, s_cc, s_lds):
        a = self.a
        srd(a, 12, ptr, 0, W_BYTES)
        a("v_lshlrev_b32 v10, 3, v9")
        a("v_bfe_u32 v11, v2, 2, 2")
        a("v_add_u32 v10, v10, v11")
        a("v_mul_u32_u24 v10, 9216, v10")
        a("v_and_b32 v11, 3, v2")
        a("v_lshl_add_u32 v10, v11, 4, v10")
        a("s_lshr_b32 s3, s%d, 1" % s_ob)
        a("s_lshl_b32 s3, s3, 5")
        a("s_and_b32 s4, s%d, 1" % s_ob)
        a("s_lshl_b32 s4, s4, 2")
        a("s_add_u32 s3, s3, s4")
        a("s_mul_i32 s3, s3, 9216")
        a("s_mul_i32 s4, s%d, 576" % s_cc)
        a("s_add_u32 s3, s3, s4")
        for i in range(9):
            a("s_add_u32 m0, s%d, %d" % (s_lds, i * 960))
            a("s_nop 0")
            a("buffer_load_dwordx4 v10, s[12:15], s3 offen offset:%d%s lds" % (i * 64, self.cfg.get("wf", " nt")))

    def w_pack_part(self, ws_off, s_ob, s_cp, lds_base, R, s_u=None, defer=False):
        a = self.a
        T = R + 36
        O = T + 10
        if s_u is None:
            a("s_lshr_b32 s5, s%d, 2" % S_WV)
        else:
            a("s_mov_b32 s5, s%d" % s_u)
        a("s_mul_i32 s3, s5, 9216")
        a("s_add_u32 s3, s3, %d" % lds_base)
        a("v_mul_u32_u24 v%d, 9, v9" % T)
        a("v_lshl_add_u32 v%d, v8, 6, s3" % (T + 1))
        for i in range(4):
            a("v_add_u32 v%d, %d, v%d" % (T + 2, i, T))
            a("v_lshrrev_b32 v%d, 2, v%d" % (T + 3, T + 2))
            a("v_and_b32 v%d, 3, v%d" % (T + 2, T + 2))
            a("v_lshl_add_u32 v%d, v%d, 10, v%d" % (T + 3, T + 3, T + 1))
            a("v_lshl_add_u32 v%d, v%d, 4, v%d" % (10 + i, T + 2, T + 3))
        for i in range(9):
            a("ds_read_b128 v[%d:%d], v%d offset:%d" % (R + 4 * i, R + 4 * i + 3, 10 + i % 4, (i // 4) * 1024))
        a("s_lshr_b32 s3, s%d, 2" % s_ob)
        a("s_mul_i32 s3, s3, %d" % (4 * 48 * 4096))
        a("s_lshl_b32 s4, s%d, 1" % s_cp)
        a("s_add_u32 s4, s4, s5")
        a("s_lshl_b32 s4, s4, 2")
        a("s_and_b32 s5, s%d, 3" % s_ob)
        a("s_add_u32 s4, s4, s5")
        a("s_mul_i32 s4, s4, 3")
        a("s_and_b32 s5, s%d, 3" % S_WV)
        a("s_add_u32 s4, s4, s5")
        a("s_sub_u32 s4, s4, 1")
        a("s_lshl_b32 s4, s4, 10")
        a("s_add_u32 s39, s3, s4")
        a("s_mov_b32 s6, 0x07060100")
        a("s_mov_b32 s7, 0x05040302")
        ls = [a.nl("wp") for _ in range(4)]
        a("s_waitcnt lgkmcnt(0)")
        a("s_cmp_eq_u32 s5, 2")
        a("s_cbranch_scc1 %s" % ls[1])
        a("s_cmp_eq_u32 s5, 3")
        a("s_cbranch_scc1 %s" % ls[2])
        for dx in range(3):
            a.label(ls[dx])
            for xi, t in ((0, dx), (3, 6 + dx)):
                o = O + 4 * xi
                for k in range(4):
                    e0 = 2 * k * 9 + t
                    e1 = e0 + 9
                    sel = 6 if e0 % 2 == 0 else 7
                    a("v_perm_b32 v%d, v%d, v%d, s%d" % (o + k, R + e1 // 2, R + e0 // 2, sel))
            for k in range(4):
                for h in range(2):
                    j = 2 * k + h
                    for dy in range(3):
                        e = j * 9 + dy * 3 + dx
                        d = T + h * 3 + dy
                        if e % 2 == 0:
                            a("v_lshlrev_b32 v%d, 16, v%d" % (d, R + e // 2))
                        else:
                            a("v_and_b32 v%d, 0xffff0000, v%d" % (d, R + e // 2))
                for h in range(2):
                    a("v_add_f32 v%d, v%d, v%d" % (T + h * 3, T + h * 3, T + 2 + h * 3))
                for h in range(2):
                    a("v_add_f32 v%d, v%d, v%d" % (T + 6 + h, T + h * 3, T + 1 + h * 3))
                    a("v_sub_f32 v%d, v%d, v%d" % (T + 8 + h, T + h * 3, T + 1 + h * 3))
                a("v_cvt_pk_bf16_f32 v%d, v%d, v%d" % (O + 4 + k, T + 6, T + 7))
                a("v_cvt_pk_bf16_f32 v%d, v%d, v%d" % (O + 8 + k, T + 8, T + 9))
            if dx < 2:
                a("s_branch %s" % ls[3])
        a.label(ls[3])
        if not defer:
            self.w_pack_store(ws_off, R)

    def w_pack_store(self, ws_off, R):
        a = self.a
        O = R + 46
        srd(a, 12, P_WS, ws_off, UP_BYTES)
        for xi in range(4):
            a("buffer_store_dwordx4 v[%d:%d], v6, s[12:15], s39 offen sc1" % (O + 4 * xi, O + 4 * xi + 3))
            a("s_add_u32 s39, s39, %d" % (48 * 4096))
        a("s_nop 1")

    def norm_coeffs(self, G, BT, SC, SH):
        a = self.a
        for j in range(4):
            unpack(a, SC + 2 * j, SC + 2 * j + 1, G + j)
            unpack(a, SH + 2 * j, SH + 2 * j + 1, BT + j)
        a("s_waitcnt lgkmcnt(0)")
        a("v_sub_f32 v16, v16, v20")
        for j in range(4):
            pk(a, "mul", SC + 2 * j, [SC + 2 * j, vbc(17)])
        for j in range(4):
            pk(a, "fma", SH + 2 * j, [SC + 2 * j, vbc(16), SH + 2 * j], neg=[1, 0, 0])

    def build(self):
        a, cfg = self.a, self.cfg
        name = "standalone__adm_resblock__diffusion_kernel"
        a.raw(".globl %s" % name)
        a.raw(".p2align 8")
        a.raw(".type %s,@function" % name)
        a.label(name)
        a("s_cmp_ge_u32 s2, 256")
        a("s_cbranch_scc1 L_end")
        a("s_load_dwordx16 s[64:79], s[0:1], 0")
        a("s_load_dwordx8 s[80:87], s[0:1], 64")
        a("v_lshrrev_b32 v1, 6, v0")
        a("v_and_b32 v2, 63, v0")
        a("v_readfirstlane_b32 s%d, v1" % S_WV)
        a("v_lshlrev_b32 v6, 4, v2")
        a("v_and_b32 v8, 15, v2")
        a("v_lshrrev_b32 v9, 4, v2")
        a("v_mov_b32 v14, 0")
        if cfg.get("cpf", 1):
            a("s_getpc_b64 s[12:13]")
            a.label("L_pc")
            a("s_sub_u32 s12, s12, L_pc-%s" % name)
            a("s_subb_u32 s13, s13, 0")
            a("s_mov_b32 s14, L_codeend-%s" % name)
            a("s_mov_b32 s15, 0x20000")
            a("s_lshr_b32 s3, s2, 3")
            a("s_lshl_b32 s4, s%d, 4" % S_WV)
            a("s_add_u32 s3, s3, s4")
            a("s_and_b32 s3, s3, 31")
            a("s_lshl_b32 s3, s3, 10")
            a("s_cmp_lt_u32 s%d, 6" % S_WV)
            a("s_cbranch_scc1 L_nocpf")
            a("buffer_load_dwordx4 v[104:107], v6, s[12:15], s3 offen")
            a.label("L_nocpf")
        a("s_and_b32 s3, s2, 1")
        a("s_lshl_b32 s3, s3, 2")
        a("s_bfe_u32 s4, s2, 0x20003")
        a("s_add_u32 s%d, s3, s4" % S_OCT)
        a("s_bfe_u32 s3, s2, 0x20001")
        a("s_lshl_b32 s3, s3, 3")
        a("s_lshr_b32 s4, s2, 5")
        a("s_add_u32 s%d, s3, s4" % S_PT)
        a("s_lshr_b32 s%d, s%d, 4" % (S_B, S_PT))
        a("s_and_b32 s%d, s%d, 15" % (S_RT, S_PT))
        a("v_and_b32 v3, 3, v2")
        a("v_lshrrev_b32 v4, 2, v2")
        a("v_lshlrev_b32 v5, 16, v3")
        a("v_lshl_add_u32 v5, v4, 3, v5")
        a("s_lshl_b32 s47, s%d, 22" % S_B)
        a("s_lshl_b32 s3, s%d, 19" % S_OCT)
        a("s_add_u32 s47, s47, s3")
        a("s_lshl_b32 s3, s%d, 9" % S_RT)
        a("s_add_u32 s47, s47, s3")
        a("s_lshr_b32 s45, s%d, 2" % S_WV)
        a("s_and_b32 s46, s%d, 3" % S_WV)
        if cfg.get("stamp"):
            a("s_mov_b32 s98, 0")
            a("v_mov_b32 v15, 0")
        self.stamp()
        a("s_memrealtime s[4:5]")
        a("s_waitcnt lgkmcnt(0)")
        if cfg.get("trip"):
            a("s_mov_b32 s99, s4")
            a("s_mov_b32 s100, 0")
        a("s_lshl_b32 s3, s2, 3")
        a("s_add_u32 s3, s3, s%d" % S_WV)
        a("s_cmp_lg_u32 s3, 7")
        a("s_cbranch_scc1 L_nononce")
        srd(a, 32, P_DBG, 0, 256)
        a("s_or_b32 s4, s4, 1")
        a("v_mov_b32 v13, s4")
        a("s_mov_b64 exec, 1")
        a("buffer_store_dword v13, v14, s[32:35], 0 offen sc1")
        a("s_mov_b64 exec, -1")
        a.label("L_nononce")
        srd(a, 8, P_X, 0, IMG_BYTES)
        a("s_lshl_b32 s3, s45, 18")
        a("s_lshl_b32 s4, s46, 7")
        a("s_add_u32 s3, s3, s4")
        a("s_add_u32 s3, s3, s47")
        XR = 48
        for j in range(8):
            a("buffer_load_dwordx2 v[%d:%d], v5, s[8:11], s3 offen%s" % (XR + 2 * j, XR + 2 * j + 1, cfg.get("xf", " nt")))
            if j < 7:
                a("s_add_u32 s3, s3, 8192")
        a("s_add_u32 s6, s%d, s47" % P_X)
        a("s_addc_u32 s7, s%d, 0" % (P_X + 1))
        a("s_load_dword s48, s[6:7], 0")
        srd(a, 24, P_G1, 0, 1024)
        srd(a, 28, P_BE1, 0, 1024)
        a("s_lshl_b32 s3, s%d, 7" % S_OCT)
        a("s_lshl_b32 s4, s45, 6")
        a("s_add_u32 s3, s3, s4")
        a("v_lshlrev_b32 v10, 4, v3")
        a("buffer_load_dwordx4 v[64:67], v10, s[24:27], s3 offen")
        a("buffer_load_dwordx4 v[68:71], v10, s[28:31], s3 offen")
        srd(a, SRD_SY, P_WS, WS_SYNC, 0x20000)
        a("s_mov_b32 s%d, %s" % (S_NL2E, fx(-LOG2E)))
        a("s_mov_b32 s%d, 0" % S_PHASE)
        a("s_mov_b32 s%d, 0" % S_TAG)
        RR = 112
        if cfg.get("wflag", 1):
            a("v_mov_b32 v10, %d" % L_WF)
            a("v_mov_b32 v12, 0")
            a("v_mov_b32 v13, 0")
            a("ds_write_b64 v10, v[12:13]")
            a("s_waitcnt lgkmcnt(0)")
        a("s_barrier")
        a("s_lshl_b32 s36, s%d, 2" % S_OCT)
        a("s_lshr_b32 s3, s%d, 3" % S_PT)
        a("s_add_u32 s36, s36, s3")
        a("s_and_b32 s37, s%d, 7" % S_PT)
        a("s_cmp_eq_u32 s%d, 0" % S_WV)
        a("s_cbranch_scc1 L_r0")
        a("s_cmp_eq_u32 s%d, 1" % S_WV)
        a("s_cbranch_scc1 L_r1")
        a("s_cmp_lt_u32 s%d, 4" % S_WV)
        a("s_cbranch_scc1 L_rw")
        if cfg.get("w2p0", 2) == 2:
            a("s_cmp_gt_u32 s%d, 5" % S_WV)
            a("s_cbranch_scc1 L_rw2")
        a("s_cmp_lg_u32 s%d, 4" % S_WV)
        a("s_cbranch_scc1 L_rnone")
        a("s_bitcmp1_b32 s%d, 0" % S_PT)
        a("s_cbranch_scc1 L_rnone")
        a("s_lshr_b32 s49, s%d, 1" % S_PT)
        a("s_mul_i32 s3, s49, 48")
        a("v_lshrrev_b32 v10, 3, v2")
        a("v_mul_u32_u24 v10, 6, v10")
        a("v_add_u32 v10, s3, v10")
        a("v_lshlrev_b32 v11, 1, v10")
        a("v_lshlrev_b32 v10, 10, v10")
        a("v_and_b32 v12, 7, v2")
        a("v_lshl_add_u32 v10, v12, 4, v10")
        a("v_add_u32 v12, 4096, v10")
        a("s_lshl_b32 s3, s%d, 7" % S_OCT)
        srd(a, 12, P_TEMB, 0, 2 * 768 * 2)
        srd(a, 16, P_WEMB, 0, 768 * 512 * 2)
        a("buffer_load_dwordx3 v[%d:%d], v11, s[12:15], 0 offen" % (RR, RR + 2))
        a("buffer_load_dwordx3 v[%d:%d], v11, s[12:15], 0 offen offset:1536" % (RR + 4, RR + 6))
        for i in range(6):
            a("buffer_load_dwordx4 v[%d:%d], v%d, s[16:19], s3 offen offset:%d nt" %
              (RR + 8 + 4 * i, RR + 11 + 4 * i, 10 if i < 4 else 12, (i % 4) * 1024))
        a("s_waitcnt vmcnt(8)")
        a("s_branch L_rdone")
        a.label("L_rw")
        a("s_sub_u32 s51, s%d, 2" % S_WV)
        a("s_lshl_b32 s50, s37, 1")
        a("s_add_u32 s50, s50, s51")
        a("s_mul_i32 s51, s51, 9216")
        a("s_add_u32 s51, s51, %d" % L_W1)
        self.w_dma(P_W1, 36, 50, 51)
        a("s_waitcnt vmcnt(9)")
        a("s_branch L_rdone")
        if cfg.get("w2p0", 2) == 2:
            a.label("L_rw2")
            a("s_sub_u32 s51, s%d, 6" % S_WV)
            a("s_lshl_b32 s50, s37, 1")
            a("s_add_u32 s50, s50, s51")
            a("s_mul_i32 s51, s51, 9216")
            a("s_add_u32 s51, s51, %d" % L_W2)
            a("s_waitcnt vmcnt(%d)" % cfg.get("w2wait", 10))
            self.w_dma(P_W2, 36, 50, 51)
            a("s_waitcnt vmcnt(9)")
            a("s_branch L_rdone")
        a.label("L_r1")
        srd(a, 12, P_G2, 0, 1024)
        srd(a, 16, P_BE2, 0, 1024)
        a("buffer_load_dwordx4 v[%d:%d], v6, s[24:27], 0 offen" % (RR, RR + 3))
        a("buffer_load_dwordx4 v[%d:%d], v6, s[28:31], 0 offen" % (RR + 4, RR + 7))
        a("buffer_load_dwordx4 v[%d:%d], v6, s[12:15], 0 offen" % (RR + 8, RR + 11))
        a("buffer_load_dwordx4 v[%d:%d], v6, s[16:19], 0 offen" % (RR + 12, RR + 15))
        a("s_waitcnt vmcnt(4)")
        a("s_branch L_rdone")
        a.label("L_r0")
        srd(a, 32, P_DBG, 0, 256)
        a("s_waitcnt vmcnt(%d)" % cfg.get("nwait", 8))
        a("buffer_load_dword v%d, v14, s[32:35], 0 offen sc1" % RR)
        a("s_waitcnt vmcnt(1)")
        a("s_branch L_rdone")
        a.label("L_rnone")
        a("s_waitcnt vmcnt(0)")
        a.label("L_rdone")
        self.stamp()
        XF = 72

        def stash_write():
            a("s_mul_i32 s3, s45, %d" % (4 * 4224))
            a("s_lshl_b32 s4, s46, 7")
            a("s_add_u32 s3, s3, s4")
            a("s_add_u32 s3, s3, %d" % L_XS)
            a("v_mul_u32_u24 v10, 4224, v3")
            a("v_lshl_add_u32 v10, v4, 3, v10")
            a("v_add_u32 v10, s3, v10")
            for j in range(8):
                a("ds_write_b64 v10, v[%d:%d] offset:%d" % (XR + 2 * j, XR + 2 * j + 1, j * 512))

        for j in range(8):
            for d in range(2):
                unpack(a, XF + 4 * j + 2 * d, XF + 4 * j + 2 * d + 1, XR + 2 * j + d)
        a("s_waitcnt lgkmcnt(0)")
        a("s_lshl_b32 s48, s48, 16")
        a("s_mov_b32 s49, s48") if False else None
        a("v_mov_b32 v20, s48")
        for i in range(16):
            pk(a, "add", XF + 2 * i, [XF + 2 * i, sbc(48)], neg=[0, 1])
        self.local_stats([XF + 2 * i for i in range(16)], "v[20:21]")
        if not cfg.get("wflag", 1):
            a("s_and_b32 s3, s%d, 6" % S_WV)
            a("s_cmp_lg_u32 s3, 2")
            a("s_cbranch_scc1 L_nww")
            a("s_waitcnt vmcnt(0)")
            a.label("L_nww")
        a("s_barrier")
        a("s_cmp_eq_u32 s%d, 0" % S_WV)
        a("s_cbranch_scc1 L_s0")
        stash_write()
        a("s_cmp_eq_u32 s%d, 4" % S_WV)
        a("s_cbranch_scc1 L_semb")
        if cfg.get("wflag", 1):
            a("s_and_b32 s3, s%d, 6" % S_WV)
            a("s_cmp_lg_u32 s3, 2")
            a("s_cbranch_scc1 L_nww")
            a("s_lshl_b32 s3, s%d, 2" % S_WV)
            a("s_add_u32 s3, s3, %d" % (L_WF - 8))
            a("v_mov_b32 v10, s3")
            a("v_mov_b32 v11, 1")
            a("s_waitcnt vmcnt(0)")
            a("ds_write_b32 v10, v11")
            a.label("L_nww")
            a("s_lshl_b32 s3, s45, 2")
            a("s_add_u32 s3, s3, %d" % L_WF)
            a("v_mov_b32 v10, s3")
            a.label("L_wspin")
            a("ds_read_b32 v11, v10")
            a("s_waitcnt lgkmcnt(0)")
            a("v_readfirstlane_b32 s3, v11")
            a("s_nop 3")
            a("s_cmp_lg_u32 s3, 0")
            a("s_cbranch_scc1 L_wok")
            a("s_sleep 1")
            a("s_branch L_wspin")
            a.label("L_wok")
        self.w_pack_part(WS_W1, 36, 37, L_W1, 144, defer=True)
        a("s_cmp_eq_u32 s%d, 1" % S_WV)
        a("s_cbranch_scc1 L_s1")
        a("s_branch L_sdone")
        a.label("L_semb")
        a("s_waitcnt vmcnt(0) lgkmcnt(0)")
        a("s_bitcmp1_b32 s%d, 0" % S_PT)
        a("s_cbranch_scc1 L_sdone")
        E = 148
        for b in range(2):
            for d in range(3):
                unpack(a, E + 6 * b + 2 * d, E + 6 * b + 2 * d + 1, RR + 4 * b + d)
        silu_group(a, list(range(E, E + 12)), list(range(E + 12, E + 24)))
        EA = E + 24
        for i in range(6):
            for k in range(4):
                unpack(a, E + 12, E + 13, RR + 8 + 4 * i + k)
                for h in range(2):
                    j = 2 * k + h
                    for b in range(2):
                        if i == 0:
                            a("v_mul_f32 v%d, v%d, v%d" % (EA + 8 * b + j, E + 12 + h, E + 6 * b + i))
                        else:
                            a("v_fmac_f32 v%d, v%d, v%d" % (EA + 8 * b + j, E + 12 + h, E + 6 * b + i))
        a("s_nop 1")
        for j in range(8):
            a("v_permlane32_swap_b32 v%d, v%d" % (EA + j, EA + 8 + j))
        for j in range(8):
            a("v_add_f32 v%d, v%d, v%d" % (EA + j, EA + j, EA + 8 + j))
        a("s_nop 1")
        for j in range(4):
            a("v_permlane16_swap_b32 v%d, v%d" % (EA + j, EA + 4 + j))
        for j in range(4):
            a("v_add_f32 v%d, v%d, v%d" % (EA + j, EA + j, EA + 4 + j))
        a("s_nop 1")
        for j in range(4):
            a("v_add_f32_dpp v%d, v%d, v%d row_ror:8 row_mask:0xf bank_mask:0xf" % (EA + j, EA + j, EA + j))
        srd(a, 12, P_WS, WS_EMB, 65536)
        a("v_lshrrev_b32 v10, 5, v2")
        a("v_lshlrev_b32 v10, 11, v10")
        a("v_and_b32 v11, 7, v2")
        a("v_lshl_add_u32 v10, v11, 5, v10")
        a("v_and_b32 v11, 16, v2")
        a("v_add_u32 v10, v10, v11")
        a("s_lshl_b32 s3, s49, 12")
        a("s_lshl_b32 s4, s%d, 8" % S_OCT)
        a("s_add_u32 s3, s3, s4")
        a("buffer_store_dwordx4 v[%d:%d], v10, s[12:15], s3 offen sc1" % (EA, EA + 3))
        a("s_branch L_sdone")
        a.label("L_s1")
        a("s_waitcnt vmcnt(0)")
        a("s_mov_b32 s3, 0x7fff7fff")
        for arr in range(4):
            r = RR + 4 * arr
            for k in range(4):
                a("v_and_b32 v%d, s3, v%d" % (r + k, r + k))
            a("v_pk_max_u16 v%d, v%d, v%d" % (r, r, r + 1))
            a("v_pk_max_u16 v%d, v%d, v%d" % (r + 2, r + 2, r + 3))
            a("v_pk_max_u16 v%d, v%d, v%d" % (r, r, r + 2))
            a("v_lshrrev_b32 v%d, 16, v%d" % (r + 1, r))
            a("v_and_b32 v%d, 0xffff, v%d" % (r, r))
            a("v_max_u32 v%d, v%d, v%d" % (r, r, r + 1))
        dpp_reduce(a, [RR, RR + 4, RR + 8, RR + 12], 6, "v_max_u32_dpp")
        for k in range(2):
            g, bt = RR + 8 * k, RR + 8 * k + 4
            a("v_lshrrev_b32 v%d, 7, v%d" % (g, g))
            a("v_lshrrev_b32 v%d, 7, v%d" % (bt, bt))
            a("v_add_u32 v%d, 10, v%d" % (g, g))
            a("v_max_u32 v%d, v%d, v%d" % (g, g, bt))
            a("v_max_u32 v%d, 14, v%d" % (g, g))
            a("v_min_u32 v%d, 0x10a, v%d" % (g, g))
            a("v_subrev_u32 v%d, 13, v%d" % (g, g))
            a("v_lshlrev_b32 v%d, 23, v%d" % (RR + 16 + k, g))
        a("v_mov_b32 v12, %d" % (L_BC + 8))
        a("s_mov_b32 exec_lo, 0")
        a("s_mov_b32 exec_hi, 0x80000000")
        a("ds_write_b64 v12, v[%d:%d]" % (RR + 16, RR + 17))
        a("s_mov_b64 exec, -1")
        a("s_waitcnt lgkmcnt(0)")
        a("s_branch L_sdone")
        a.label("L_s0")
        a("s_mov_b32 s5, 0")
        a.label("L_nonce")
        a("s_waitcnt vmcnt(0)")
        a("v_readfirstlane_b32 s%d, v%d" % (S_TAG, RR))
        a("s_nop 3")
        a("s_cmp_lg_u32 s%d, 0" % S_TAG)
        a("s_cbranch_scc1 L_nonced")
        a("s_add_u32 s5, s5, 1")
        a("s_cmp_lt_u32 s5, 0x10000")
        a("s_cbranch_scc0 L_nonced")
        a("s_sleep 4")
        srd(a, 32, P_DBG, 0, 256)
        a("buffer_load_dword v%d, v14, s[32:35], 0 offen sc1" % RR)
        a("s_branch L_nonce")
        a.label("L_nonced")
        a("v_mov_b32 v12, %d" % (L_BC + 16))
        a("v_mov_b32 v13, s%d" % S_TAG)
        a("ds_write_b32 v12, v13")
        self.granule_slot(SY_GA)
        self.group_sync("v20", 50, 51, filler=stash_write)
        a.label("L_sdone")
        if cfg.get("stamp") == 3:
            self.stamp()
        a("s_barrier")
        if cfg.get("stamp") == 3:
            self.stamp()
        a("v_mov_b32 v12, %d" % L_BC)
        a("ds_read_b128 v[16:19], v12")
        a("ds_read_b32 v22, v12 offset:16")
        a("s_cmp_eq_u32 s46, 0")
        a("s_cbranch_scc1 L_nop1")
        self.w_pack_store(WS_W1, 144)
        if cfg.get("w2p0", 2) == 1:
            a("s_branch L_nop1b")
        a.label("L_nop1")
        if cfg.get("w2p0", 2) == 1:
            a("s_lshl_b32 s50, s37, 1")
            a("s_add_u32 s50, s50, s45")
            a("s_mul_i32 s51, s45, 9216")
            a("s_add_u32 s51, s51, %d" % L_W2)
            self.w_dma(P_W2, 36, 50, 51)
            a.label("L_nop1b")
        srd(a, 8, P_WS, WS_A1, IMG_BYTES)
        a("v_bfe_u32 v10, v4, 2, 1")
        a("v_lshlrev_b32 v10, 1, v10")
        a("v_xor_b32 v10, v10, v3")
        a("v_lshlrev_b32 v10, 4, v10")
        a("v_lshl_add_u32 v10, v4, 6, v10")
        a("s_lshl_b32 s47, s%d, 4" % S_B)
        a("s_lshl_b32 s3, s%d, 1" % S_OCT)
        a("s_add_u32 s47, s47, s3")
        a("s_add_u32 s47, s47, s45")
        a("s_lshl_b32 s47, s47, 18")
        a("s_lshl_b32 s3, s%d, 14" % S_RT)
        a("s_add_u32 s47, s47, s3")
        a("s_lshl_b32 s3, s46, 12")
        a("s_add_u32 s47, s47, s3")
        self.norm_coeffs(64, 68, 24, 32)
        a("v_readfirstlane_b32 s%d, v18" % S_ISA)
        a("v_readfirstlane_b32 s%d, v19" % S_ISA2)
        a("v_readfirstlane_b32 s%d, v22" % S_TAG)
        for d in range(2):
            prs = [XF + 4 * j + 2 * d for j in range(8)]
            tm = [40 + 2 * j for j in range(8)]
            for j in range(8):
                pk(a, "fma", prs[j], [prs[j], vbc(24 + j), vbc(32 + j)])
            silu_pk(a, prs, tm)
            for h in range(2):
                i = 2 * d + h
                o = 56 + 4 * i
                for k in range(4):
                    a("v_cvt_pk_f16_f32 v%d, v%d, v%d" % (o + k, prs[2 * k] + h, prs[2 * k + 1] + h))
                a("buffer_store_dwordx4 v[%d:%d], v10, s[8:11], s47 offen offset:%d sc1" % (o, o + 3, i * 1024))
        if cfg.get("stamp") == 3:
            self.stamp()
        a("s_cmp_lt_u32 s%d, 4" % S_WV)
        a("s_cbranch_scc1 L_nores")
        a("s_bfe_u32 s3, s%d, 0x10001" % S_WV)
        a("s_lshl_b32 s3, s3, 11")
        a("s_and_b32 s4, s%d, 1" % S_WV)
        a("s_lshl_b32 s4, s4, 8")
        a("s_add_u32 s3, s3, s4")
        a("s_add_u32 s3, s3, %d" % L_XS)
        a("v_mul_u32_u24 v10, 4224, v9")
        a("v_lshl_add_u32 v10, v8, 3, v10")
        a("v_add_u32 v10, s3, v10")
        a("v_add_u32 v11, %d, v10" % (4 * 4224))
        for j in range(4):
            a("ds_read2_b64 v[%d:%d], v11 offset0:%d offset1:%d" % (208 + 4 * j, 211 + 4 * j, j * 64, j * 64 + 16))
            a("ds_read2_b64 v[%d:%d], v10 offset0:%d offset1:%d" % (224 + 4 * j, 227 + 4 * j, j * 64, j * 64 + 16))
        a("s_waitcnt lgkmcnt(0)")
        a.label("L_nores")
        self.flag_list(SY_FB, True)
        if cfg.get("stamp") == 3:
            self.stamp()

        a.label("L_conv")
        VV = [3, 4, 5]
        VFR, USET, ACC, EXT = 16, 64, 128, 96
        a("v_mov_b32 v22, s%d" % S_TAG)
        a("v_mov_b32 v14, 0")
        a("s_cmp_lg_u32 s%d, 4" % S_WV)
        a("s_waitcnt vmcnt(0)")
        if cfg.get("stamp"):
            self.stamp()
            a("s_cmp_lg_u32 s%d, 4" % S_WV)
        a("s_barrier")
        a("s_cbranch_scc1 L_noflag")
        self.flag_store(50)
        a.label("L_noflag")
        a("s_sub_u32 s%d, s%d, 0x800000" % (S_HISA, S_ISA))
        a("s_lshl_b32 s3, s%d, 23" % S_PHASE)
        a("s_cmp_ge_u32 s%d, 4" % S_WV)
        a("s_cbranch_scc1 L_prod")

        def ureg(st, blk):
            return USET + 16 * st + 4 * blk

        def vreg_(rp, k):
            return VFR + 4 * (rp * 6 + k)

        def areg(blk, i):
            return ACC + 4 * (blk * 8 + i)

        a("s_lshl_b32 s4, s%d, 2" % S_OCT)
        a("s_add_u32 s4, s4, s%d" % S_WV)
        a("s_mul_i32 s4, s4, %d" % (48 * 4096))
        a("s_add_u32 s3, s3, s4")
        a("s_add_u32 s3, s3, 0x%x" % WS_W1)
        a("s_add_u32 s16, s%d, s3" % P_WS)
        a("s_addc_u32 s17, s%d, 0" % (P_WS + 1))
        a("s_mov_b32 s18, 0x%x" % (48 * 4096))
        a("s_mov_b32 s19, 0x20000")
        a("s_mov_b32 s52, 0")
        a("s_mul_i32 s3, s%d, %d" % (S_WV, RS))
        for sh in range(3):
            a("v_add_u32 v11, %d, v8" % (15 + sh))
            a("v_bfe_u32 v12, v11, 2, 1")
            a("v_lshlrev_b32 v12, 1, v12")
            a("v_xor_b32 v12, v12, v9")
            a("v_lshlrev_b32 v12, 4, v12")
            a("v_lshl_add_u32 v12, v8, 6, v12")
            a("v_add_u32 v%d, s3, v12" % VV[sh])
        a("v_bfe_u32 v11, v2, 2, 3")
        a("v_mul_u32_u24 v11, %d, v11" % XPITCH)
        a("v_and_b32 v12, 3, v2")
        a("v_lshl_add_u32 v11, v12, 4, v11")
        a("v_add_u32 v11, s3, v11")
        for r in range(ACC, ACC + 128):
            a("v_mov_b32 v%d, 0" % r)
        a("ds_write_b128 v11, v[%d:%d] offset:1024" % (ACC, ACC + 3))
        a("v_add_u32 v7, s3, v6")
        a("s_waitcnt lgkmcnt(0)")
        a("s_cmp_lg_u32 s%d, 0" % S_PHASE)
        a("s_cbranch_scc1 L_uerly")
        a("s_barrier")
        a.label("L_uerly")

        def uload(j, off):
            r = USET + 4 * (j % 16)
            return "buffer_load_dwordx4 v[%d:%d], v6, s[16:19], s52 offen offset:%d sc1" % (r, r + 3, off)

        def vread(rp, k, buf):
            r = vreg_(rp, k)
            sh, off = {0: (0, POFF[3] - 64), 5: (2, POFF[0] + 64)}.get(k, (1, POFF[(k - 1) % 4]))
            return "ds_read_b128 v[%d:%d], v%d offset:%d" % (r, r + 3, VV[sh], buf * VB + rp * XPITCH + off)

        def mfma(t, m):
            blk, rp, f, dx = t % 4, m // 12, (m % 12) // 3, m % 3
            d, u, x = areg(blk, rp * 4 + f), USET + 4 * ((3 * t + dx) % 16), vreg_(rp, f + dx)
            return "v_mfma_f32_16x16x32_bf16 v[%d:%d], v[%d:%d], v[%d:%d], v[%d:%d]" % (d, d + 3, u, u + 3, x, x + 3, d, d + 3)

        def dump(blk, i):
            r = areg(blk, i)
            return "ds_write_b128 v7, v[%d:%d] offset:%d" % (r, r + 3, (blk * 8 + i) * FS)

        ufirst = cfg.get("ufirst", 13)
        for j in range(ufirst):
            a(uload(j, (j % 4) * 1024))
            if j % 4 == 3:
                a("s_add_u32 s52, s52, 4096")
        a("s_cmp_eq_u32 s%d, 0" % S_PHASE)
        a("s_cbranch_scc1 L_ulate")
        a("s_barrier")
        a.label("L_ulate")
        a("s_barrier")
        if cfg.get("trip") and cfg.get("tripat") == "b0":
            a("s_memrealtime s[96:97]")
            a("s_waitcnt lgkmcnt(0)")
            a("s_sub_u32 s96, s96, s99")
            a("s_cmp_eq_u32 s%d, 0" % S_PHASE)
            a("s_cselect_b32 s100, s96, s100")
        self.stamp()
        if cfg.get("stamp") == 4:
            self.stamp(False)
        for k in range(6):
            a(vread(0, k, 0))
        for k in range(3):
            a(vread(1, k, 0))
        for j in range(ufirst, 13):
            a(uload(j, (j % 4) * 1024))
            if j % 4 == 3:
                a("s_add_u32 s52, s52, 4096")
        a("s_add_u32 s52, s52, 1024")
        a("s_mov_b32 s53, 0")
        a.raw(".p2align 6")
        a.label("L_loop")
        upos = cfg.get("upos", (4, 10, 16))
        for t in range(16):
            blk, buf = t % 4, t // 4
            nbuf = (buf + 1) % 4
            after, before = {}, {}
            if blk == 0:
                for k in range(3):
                    after[k] = [vread(1, 3 + k, buf)]
                before[0] = "s_waitcnt vmcnt(10) lgkmcnt(6)"
                before[3] = "s_waitcnt lgkmcnt(6)"
                before[12] = "s_waitcnt lgkmcnt(3)"
                before[15] = "s_waitcnt lgkmcnt(0)"
            else:
                before[0] = "s_waitcnt vmcnt(10)"
            if blk == 3:
                after[1] = ["s_barrier"]
                for m, rp, k in ((3, 0, 0), (6, 0, 1), (9, 0, 2), (12, 0, 3), (13, 0, 4), (14, 0, 5), (15, 1, 0), (18, 1, 1), (21, 1, 2)):
                    after[m] = [vread(rp, k, nbuf)]
            for i, m in enumerate(upos):
                after.setdefault(m, []).append(uload(3 * t + 13 + i, i * 1024))
            after.setdefault(20, []).append("s_add_u32 s52, s52, 3072")
            if t == 12:
                after.setdefault(22, []).append("s_cmp_eq_u32 s53, 3")
            if t == 15:
                after.setdefault(22, []).append("s_add_u32 s53, s53, 1")
            if t == 13:
                a("s_cbranch_scc1 L_last")
            for m in range(24):
                if m in before:
                    a(before[m])
                a(mfma(t, m))
                for x in after.get(m, []):
                    a(x)
        a("s_branch L_loop")
        a.label("L_last")
        for t in range(13, 16):
            a("s_waitcnt vmcnt(%d)" % (10 - 3 * (t - 13)))
            for m in range(24):
                a(mfma(t, m))
                if m % 3 == 2:
                    a(dump(t % 4 - 1, m // 3))
                if t == 15 and m >= 12 and m % 3 == 0:
                    a(dump(3, (m - 12) // 3))
        if cfg.get("stamp") == 4:
            self.stamp(False)
        self.stamp()
        a(dump(3, 4))
        a(dump(3, 5))
        a("s_nop 3")
        a(dump(3, 6))
        a("s_nop 1")
        a(dump(3, 7))
        a("s_waitcnt vmcnt(0)")
        self.epi_loads()
        a("s_waitcnt lgkmcnt(0)")
        a("s_branch L_epi")

        a.label("L_prod")
        D = 2
        RAW, TMP, OUT = 24, 72, 88
        a("s_lshl_b32 s4, s%d, 22" % S_B)
        a("s_add_u32 s3, s3, s4")
        a("s_add_u32 s16, s%d, s3" % P_WS)
        a("s_addc_u32 s17, s%d, 0" % (P_WS + 1))
        a("s_mov_b32 s18, 0x%x" % (IMG_BYTES // 2))
        a("s_mov_b32 s19, 0x20000")
        a("s_sub_u32 s4, s%d, 4" % S_WV)
        a("s_lshl_b32 s4, s4, 10")
        a("v_add_u32 v3, s4, v6")
        a("s_cmp_eq_u32 s%d, 7" % S_WV)
        a("s_cselect_b32 s4, 0, s4")
        a("s_add_u32 s4, s4, 1088")
        a("s_cmp_eq_u32 s%d, 4" % S_WV)
        a("s_cselect_b32 s4, 0, s4")
        a("v_add_u32 v4, s4, v6")
        a("v_add_u32 v5, %d, v4" % (2 * RS))
        a("s_lshl_b32 s3, s%d, 14" % S_RT)
        for r in range(6):
            a("s_add_u32 s%d, s3, 0x%x" % (52 + r, ((r - 1) * 4096) & 0xFFFFFFFF))
        a("s_cmp_eq_u32 s%d, 0" % S_RT)
        a("s_cselect_b32 s52, 0x40000000, s52")
        a("s_cmp_eq_u32 s%d, 15" % S_RT)
        a("s_cselect_b32 s57, 0x40000000, s57")
        a("s_cmp_lg_u32 s%d, 4" % S_WV)
        a("s_cbranch_scc1 L_u2c")
        self.flag_poll(23)
        a("s_branch L_nopoll")
        a.label("L_u2c")
        a("s_cmp_lg_u32 s%d, 0" % S_PHASE)
        a("s_cbranch_scc1 L_nopoll")
        a("s_mov_b32 s38, 0")
        a.label("L_pu2")
        self.w_pack_part(WS_W2, 36, 37, L_W2, 96, 38, defer=True)
        a("s_cmp_lg_u32 s38, 0")
        a("s_cbranch_scc1 L_pu2d")
        a("s_mov_b32 s60, s39")
        for k in range(16):
            a("v_mov_b32 v%d, v%d" % (160 + k, 142 + k))
        a("s_mov_b32 s38, 1")
        a("s_branch L_pu2")
        a.label("L_pu2d")
        a("s_mov_b32 s61, s39")
        a.label("L_nopoll")
        a("s_barrier")

        SPREAD = cfg.get("spread", 1)
        if SPREAD:
            RAW, TMP, OUT, NO, NS = 24, 176, 120, 4, 4
        else:
            NO, NS = 8, 2

        def rawrow(st, r):
            d = RAW + 24 * st + 4 * r
            a("buffer_load_dwordx4 v[%d:%d], v3, s[16:19], s%d offen sc1" % (d, d + 3, 52 + r))

        def rawload(st):
            for r in range(6):
                rawrow(st, r)
            a("v_add_u32 v3, 0x40000, v3")

        COMB = [(0, 2, -1), (1, 2, 1), (2, 1, -1), (1, 3, -1)]
        lpos = cfg.get("lpos", (0, 1, 2, 4, 5, 6))

        def produce(j):
            st, buf = j % NS, j
            a("s_waitcnt vmcnt(6)")
            for rp in range(2):
                for xi in range(4):
                    n = rp * 4 + xi
                    ra, rb, sg = COMB[xi]
                    ra, rb = RAW + 24 * st + 4 * (ra + 2 * rp), RAW + 24 * st + 4 * (rb + 2 * rp)
                    o = OUT + 4 * (n % NO)
                    t = TMP + 8 * (xi % 2)
                    for d in range(4):
                        for h in range(2):
                            a("v_fma_mix_f32 v%d, v%d, 1.0, %sv%d op_sel:[%d,0,%d] op_sel_hi:[1,0,1]" %
                              (t + 2 * d + h, ra + d, "-" if sg < 0 else "", rb + d, h, h))
                        if SPREAD and d == 1 and n in lpos:
                            rawrow((j + 2) % NS, lpos.index(n))
                    for d in range(4):
                        a("v_cvt_pk_bf16_f32 v%d, v%d, v%d" % (o + d, t + 2 * d, t + 2 * d + 1))
                    a("ds_write_b128 v%d, v[%d:%d] offset:%d" %
                      (4 if xi < 2 else 5, o, o + 3, (xi & 1) * RS + buf * VB + rp * XPITCH))
                    if cfg.get("pgap"):
                        a("s_nop %d" % cfg["pgap"])
            if SPREAD:
                a("v_add_u32 v3, 0x40000, v3")
            else:
                rawload(st)
            a("s_waitcnt lgkmcnt(0)")

        for st in range(2):
            rawload(st)
        a("s_mov_b32 s58, 0")
        a.label("L_ploop")
        for j in range(4):
            if cfg.get("stamp") == 4 and j < 2:
                self.stamp(False)
            produce(j)
            if cfg.get("stamp") == 4 and j < 2:
                self.stamp(False)
            a("s_barrier")
        a("s_add_u32 s58, s58, 1")
        a("s_cmp_lt_u32 s58, 4")
        a("s_cbranch_scc1 L_ploop")
        a("s_waitcnt vmcnt(0)")
        a("s_cmp_eq_u32 s%d, 0" % S_PHASE)
        a("s_cbranch_scc1 L_pph0")
        a("s_lshl_b32 s3, s%d, 12" % S_WV)
        a("s_add_u32 s3, s3, %d" % (L_W2 - 4 * 4096))
        a("v_add_u32 v10, s3, v6")
        for k in range(4):
            a("ds_write_b128 v10, v[%d:%d] offset:%d" % (224 + 4 * k, 227 + 4 * k, k * 1024))
        a("s_waitcnt lgkmcnt(0)")
        a("s_branch L_pextra_done")
        a.label("L_pph0")
        a("s_cmp_eq_u32 s%d, 4" % S_WV)
        a("s_cbranch_scc1 L_pemb")
        a("s_mov_b32 s39, s60")
        self.w_pack_store(WS_W2, 160 - 46)
        a("s_mov_b32 s39, s61")
        self.w_pack_store(WS_W2, 96)
        a("s_branch L_pextra_done")
        a.label("L_pemb")
        srd(a, 12, P_WS, WS_EMB, 65536)
        a("s_lshl_b32 s3, s%d, 11" % S_B)
        a("s_lshl_b32 s4, s%d, 8" % S_OCT)
        a("s_add_u32 s3, s3, s4")
        a("v_lshlrev_b32 v10, 2, v2")
        for er in range(16):
            a("buffer_load_dword v%d, v10, s[12:15], s3 offen sc1" % (24 + er))
            if er < 15:
                a("s_add_u32 s3, s3, 4096")
        a("s_waitcnt vmcnt(0)")
        for k in range(8):
            a("v_add_f32 v%d, v%d, v%d" % (24 + k, 24 + k, 32 + k))
        for k in range(4):
            a("v_add_f32 v%d, v%d, v%d" % (24 + k, 24 + k, 28 + k))
        a("v_add_f32 v24, v24, v26")
        a("v_add_f32 v25, v25, v27")
        a("v_add_f32 v24, v24, v25")
        a("v_add_u32 v10, %d, v10" % L_EMB)
        a("ds_write_b32 v10, v24")
        a("s_waitcnt lgkmcnt(0)")
        a.label("L_pextra_done")
        self.epi_loads(warm=True)

        a.label("L_epi")
        a("s_barrier")
        self.stamp()
        M, Y = 112, 176
        a("s_cmp_lg_u32 s%d, 0" % S_PHASE)
        a("s_cbranch_scc1 L_epi2")
        a("s_and_b32 s59, s%d, 1" % S_WV)
        a("s_lshr_b32 s3, s%d, 1" % S_WV)
        a("s_lshl_b32 s4, s59, 4")
        a("s_lshl_b32 s3, s3, 1")
        a("s_add_u32 s4, s4, s3")
        a("s_mul_i32 s4, s4, %d" % FS)
        a("v_add_u32 v10, s4, v6")
        a("v_add_u32 v11, %d, v10" % (2 * RS))
        a("v_mov_b32 v12, 0")
        a("ds_read_b32 v16, v12")
        a("ds_read_b32 v17, v12 offset:%d" % RS)
        a("v_mov_b32 v12, %d" % (2 * RS))
        a("ds_read_b32 v18, v12")
        a("s_lshl_b32 s3, s59, 7")
        a("s_add_u32 s3, s3, %d" % L_EMB)
        a("v_lshl_add_u32 v12, v9, 5, s3")
        a("ds_read_b128 v[48:51], v12")
        a("ds_read_b128 v[52:55], v12 offset:16")
        for u in range(2):
            for xi in range(4):
                for h in range(2):
                    r = M + 4 * ((u * 4 + xi) * 2 + h)
                    a("ds_read_b128 v[%d:%d], v%d offset:%d" %
                      (r, r + 3, 10 if xi < 2 else 11, (xi & 1) * RS + (h * 8 + u) * FS))
        a("s_waitcnt lgkmcnt(8)")
        a("v_add_f32 v17, v17, v18")
        a("v_fma_f32 v20, v17, 0.5, v16")
        a("v_mul_f32 v20, s%d, v20" % S_ISA)
        for j in range(4):
            pk(a, "add", 48 + 2 * j, [48 + 2 * j, vbc(20)], neg=[0, 1])
        for u in range(2):
            if u == 1:
                a("s_waitcnt lgkmcnt(0)")
            for j in range(0, 8, 2):
                m = [M + 4 * ((u * 4 + xi) * 2 + j // 4) + j % 4 for xi in range(4)]
                ye, yo = Y + u * 16 + j, Y + u * 16 + 8 + j
                pk(a, "add", ye, [m[1], m[2]])
                pk(a, "add", yo, [m[1], m[2]], neg=[0, 1])
                pk(a, "fma", m[0], [m[0], sbc(S_ISA), 48 + j])
                pk(a, "fma", m[3], [m[3], sbc(S_ISA), 48 + j], neg=[1, 0, 0])
                pk(a, "fma", ye, [ye, sbc(S_HISA), m[0]])
                pk(a, "fma", yo, [yo, sbc(S_HISA), m[3]])
        self.local_stats([Y + 2 * i for i in range(16)], "v[20:21]")
        a("s_waitcnt vmcnt(0)")
        a("s_barrier")
        a("s_cmp_lg_u32 s%d, 0" % S_WV)
        a("s_cbranch_scc1 L_edone")
        a.label("L_e0")
        self.granule_slot(SY_GC)
        self.group_sync("v20", 50, 51, both=True)
        a.label("L_edone")
        srd(a, 8, P_WS, WS_A2, IMG_BYTES)
        a("s_lshl_b32 s56, s%d, 4" % S_B)
        a("s_lshl_b32 s57, s%d, 1" % S_OCT)
        a("s_add_u32 s56, s56, s57")
        a("s_add_u32 s56, s56, s59")
        a("s_lshl_b32 s56, s56, 18")
        a("s_lshl_b32 s57, s%d, 14" % S_RT)
        a("s_add_u32 s56, s56, s57")
        a("s_lshr_b32 s57, s%d, 2" % S_WV)
        a("s_lshl_b32 s57, s57, 13")
        a("s_add_u32 s56, s56, s57")
        a("s_bfe_u32 s57, s%d, 0x10001" % S_WV)
        a("s_lshl_b32 s57, s57, 11")
        a("s_add_u32 s56, s56, s57")
        a("s_add_u32 s57, s56, 4096")
        a("v_bfe_u32 v11, v8, 2, 1")
        a("v_lshlrev_b32 v11, 1, v11")
        a("v_xor_b32 v11, v11, v9")
        a("v_lshlrev_b32 v11, 4, v11")
        a("v_lshl_add_u32 v11, v8, 6, v11")
        self.flag_list(SY_FD, False)
        a("v_mov_b32 v12, %d" % L_BC)
        a("s_barrier")
        a("ds_read_b64 v[16:17], v12")
        a("s_mov_b32 s%d, s%d" % (S_ISA, S_ISA2))
        a("s_mov_b32 s%d, 1" % S_PHASE)
        self.norm_coeffs(EXT + 8, EXT + 12, 24, 32)
        for u in range(2):
            prs = [Y + u * 16 + 2 * j for j in range(8)]
            tm = [40 + 2 * j for j in range(8)]
            for j in range(8):
                pk(a, "fma", prs[j], [prs[j], 24 + 2 * (j % 4), 32 + 2 * (j % 4)])
            silu_pk(a, prs, tm)
            for e in range(2):
                o = 56 + 4 * (u * 2 + e)
                for k in range(4):
                    a("v_cvt_pk_f16_f32 v%d, v%d, v%d" % (o + k, prs[e * 4 + k], prs[e * 4 + k] + 1))
                a("buffer_store_dwordx4 v[%d:%d], v11, s[8:11], s%d offen offset:%d sc1" % (o, o + 3, 56 + e, u * 1024))
        a("s_branch L_conv")

        a.label("L_epi2")
        a("s_cmp_ge_u32 s%d, 4" % S_WV)
        a("s_cbranch_scc1 L_haveres")
        a("s_lshl_b32 s3, s%d, 12" % S_WV)
        a("s_add_u32 s3, s3, %d" % L_W2)
        a("v_add_u32 v10, s3, v6")
        for k in range(4):
            a("ds_read_b128 v[%d:%d], v10 offset:%d" % (208 + 4 * k, 211 + 4 * k, k * 1024))
        a.label("L_haveres")
        a("s_lshl_b32 s3, s%d, 2" % S_WV)
        a("s_mul_i32 s3, s3, %d" % FS)
        a("v_add_u32 v10, s3, v6")
        a("v_add_u32 v11, %d, v10" % (2 * RS))
        for k in range(4):
            for xi in range(4):
                r = M + 4 * (k * 4 + xi)
                a("ds_read_b128 v[%d:%d], v%d offset:%d" % (r, r + 3, 10 if xi < 2 else 11, (xi & 1) * RS + k * FS))
        a("s_waitcnt lgkmcnt(15)")
        for j in range(4):
            for e in range(2):
                for d in range(2):
                    unpack(a, 48 + ((2 * d) * 2 + e) * 4 + j, 48 + ((2 * d + 1) * 2 + e) * 4 + j, 208 + (j * 2 + e) * 2 + d)
        for k in range(4):
            a("s_waitcnt lgkmcnt(%d)" % (12 - 4 * k))
            for j in range(0, 4, 2):
                m = [M + 4 * (k * 4 + xi) + j for xi in range(4)]
                ye, yo = Y + (k * 2) * 4 + j, Y + (k * 2 + 1) * 4 + j
                xe, xo = 48 + (k * 2) * 4 + j, 48 + (k * 2 + 1) * 4 + j
                pk(a, "add", ye, [m[1], m[2]])
                pk(a, "add", yo, [m[1], m[2]], neg=[0, 1])
                pk(a, "fma", m[0], [m[0], sbc(S_ISA), xe])
                pk(a, "fma", m[3], [m[3], sbc(S_ISA), xo], neg=[1, 0, 0])
                pk(a, "fma", ye, [ye, sbc(S_HISA), m[0]])
                pk(a, "fma", yo, [yo, sbc(S_HISA), m[3]])
        srd(a, 8, P_OUT, 0, IMG_BYTES)
        if cfg.get("trip"):
            if cfg.get("tripat") != "b0":
                a("s_memrealtime s[96:97]")
                a("s_waitcnt lgkmcnt(0)")
                a("s_sub_u32 s100, s96, s99")
            a("s_cmp_gt_u32 s100, %d" % int(cfg["trip"] * 100))
            a("s_cselect_b32 s96, 1.0, 0")
            a("v_add_f32 v%d, s96, v%d" % (Y, Y))
        for j in range(4):
            for e in range(2):
                o = 16 + 2 * (j * 2 + e)
                for d in range(2):
                    a("v_cvt_pk_bf16_f32 v%d, v%d, v%d" % (o + d, Y + ((2 * d) * 2 + e) * 4 + j, Y + ((2 * d + 1) * 2 + e) * 4 + j))
                a("buffer_store_dwordx2 v[%d:%d], v13, s[8:11], s%d offen offset:%d%s" % (o, o + 1, 60 + j, e * 128, cfg.get("of", " nt")))
        if cfg.get("stamp"):
            a("s_waitcnt vmcnt(0)")
        self.stamp()
        self.stamp_flush()
        a.label("L_end")
        a("s_endpgm")
        a.label("L_codeend")
        return name

    def epi_loads(self, warm=False):
        a = self.a
        EXT = 96
        l1, l2 = a.nl("el"), a.nl("eld")
        a("s_cmp_lg_u32 s%d, 0" % S_PHASE)
        a("s_cbranch_scc1 %s" % l1)
        srd(a, 24, P_G2, 0, 1024)
        srd(a, 28, P_BE2, 0, 1024)
        a("s_and_b32 s4, s%d, 1" % S_WV)
        a("s_lshl_b32 s4, s4, 6")
        a("s_lshl_b32 s3, s%d, 7" % S_OCT)
        a("s_add_u32 s3, s3, s4")
        a("v_lshlrev_b32 v13, 4, v9")
        a("buffer_load_dwordx4 v[%d:%d], v13, s[24:27], s3 offen" % (EXT + 8, EXT + 11))
        a("buffer_load_dwordx4 v[%d:%d], v13, s[28:31], s3 offen" % (EXT + 12, EXT + 15))
        a("s_branch %s" % l2)
        a.label(l1)
        a("s_lshl_b32 s3, s%d, 22" % S_B)
        a("s_lshl_b32 s4, s%d, 19" % S_OCT)
        a("s_add_u32 s3, s3, s4")
        a("s_lshr_b32 s4, s%d, 2" % S_WV)
        a("s_lshl_b32 s4, s4, 18")
        a("s_add_u32 s3, s3, s4")
        a("s_bfe_u32 s4, s%d, 0x10001" % S_WV)
        a("s_lshl_b32 s4, s4, 15")
        a("s_add_u32 s3, s3, s4")
        a("s_lshl_b32 s4, s%d, 9" % S_RT)
        a("s_add_u32 s3, s3, s4")
        a("s_and_b32 s4, s%d, 1" % S_WV)
        a("s_lshl_b32 s4, s4, 8")
        a("s_add_u32 s60, s3, s4")
        a("s_add_u32 s61, s60, 8192")
        a("s_add_u32 s62, s60, 16384")
        a("s_add_u32 s63, s60, 24576")
        a("v_lshlrev_b32 v13, 16, v9")
        a("v_lshl_add_u32 v13, v8, 3, v13")
        a.label(l2)


def build(cfg):
    ref = open("standalone__adm_resblock__diffusion.s.ref").read()
    head = []
    for l in ref.splitlines():
        if "@launch" in l:
            break
        head.append(l)
    g = Gen(cfg)
    name = g.build()
    out = list(head)
    if cfg.get("aslist"):
        out.append("; @launch kernel=%s grid=(256,1,1) block=(512,1,1) lds=%d" % (name, LDS_BYTES))
    else:
        out.append("; @launch grid=(256,1,1) block=(512,1,1) lds=%d" % LDS_BYTES)
    out.append('.amdgcn_target "amdgcn-amd-amdhsa--gfx950"')
    out.append(".text")
    s = "\n".join(out) + "\n" + g.a.text()
    s += """.section .rodata,"a"
.p2align 6
.amdhsa_kernel %s
  .amdhsa_next_free_vgpr 256
  .amdhsa_next_free_sgpr 102
  .amdhsa_accum_offset 256
  .amdhsa_group_segment_fixed_size 0
  .amdhsa_kernarg_size 96
  .amdhsa_user_sgpr_count 2
  .amdhsa_user_sgpr_kernarg_segment_ptr 1
  .amdhsa_system_sgpr_workgroup_id_x 1
  .amdhsa_float_denorm_mode_32 3
  .amdhsa_float_denorm_mode_16_64 3
.end_amdhsa_kernel
""" % name
    return s


if __name__ == "__main__":
    cfg = {}
    outp = "standalone__adm_resblock__diffusion.s"
    for arg in sys.argv[1:]:
        k, v = arg.split("=", 1)
        if k == "out":
            outp = v
        else:
            cfg[k] = eval(v)
    open(outp, "w").write(build(cfg))
    print("wrote", outp)
```

```python
import struct
import sys

WS_A1 = 0x0000000
WS_A2 = 0x0800000
WS_W1 = 0x1000000
WS_W2 = 0x1800000
WS_SYNC = 0x2000000
WS_EMB = 0x2040000
WS_DBG = 0x3000000
IMG_BYTES = 8 << 20
W_BYTES = 512 * 4608 * 2
UP_BYTES = 32 * 48 * 4096
SY_GA, SY_FB, SY_GC, SY_FD, SY_FW = 0, 0x8000, 0x10000, 0x18000, 0x20000

XPITCH = 4160
POFF = [0, 2112, 3136, 1088]
VB = 2 * XPITCH
RS = 4 * VB
FS = 1040
L_STAT = 4 * RS
L_BC = L_STAT + 256
L_WF = L_BC + 32
L_EMB = L_BC + 64
L_W1 = 0
L_XS = 20480
L_W2 = L_EMB + 256
LDS_BYTES = L_W2 + 2 * 9216

LOG2E = 1.4426950408889634

P_X, P_TEMB, P_G1, P_BE1, P_W1, P_WEMB, P_G2, P_BE2, P_W2, P_OUT, P_DBG, P_WS = [64 + 2 * i for i in range(12)]
S_OCT, S_B, S_RT, S_WV, S_PT = 40, 41, 42, 43, 44
S_TAG, S_PHASE, S_ISA, S_HISA, S_ISA2, S_NL2E, S_ISAO = 88, 89, 90, 91, 92, 93, 94
S_ST = 96
SRD_SY = 20


def f2u(f):
    return struct.unpack("<I", struct.pack("<f", f))[0]


def fx(f):
    return "0x%08x" % f2u(f)


class Asm:
    def __init__(self):
        self.lines = []
        self.uid = 0

    def __call__(self, s):
        for l in s.strip("\n").split("\n"):
            self.lines.append("    " + l.strip())

    def label(self, l):
        self.lines.append(l + ":")

    def raw(self, s):
        self.lines.append(s)

    def nl(self, base):
        self.uid += 1
        return "L_%s_%d" % (base, self.uid)

    def text(self):
        return "\n".join(self.lines) + "\n"


def srd(a, d, ptr, off, nbytes):
    if off:
        a("s_add_u32 s%d, s%d, 0x%x" % (d, ptr, off))
        a("s_addc_u32 s%d, s%d, 0" % (d + 1, ptr + 1))
    else:
        a("s_mov_b32 s%d, s%d" % (d, ptr))
        a("s_mov_b32 s%d, s%d" % (d + 1, ptr + 1))
    a("s_mov_b32 s%d, 0x%x" % (d + 2, nbytes))
    a("s_mov_b32 s%d, 0x20000" % (d + 3))


DPP_STEPS = [
    "quad_perm:[1,0,3,2] row_mask:0xf bank_mask:0xf",
    "quad_perm:[2,3,0,1] row_mask:0xf bank_mask:0xf",
    "row_half_mirror row_mask:0xf bank_mask:0xf",
    "row_mirror row_mask:0xf bank_mask:0xf",
    "row_bcast:15 row_mask:0xa bank_mask:0xf",
    "row_bcast:31 row_mask:0xc bank_mask:0xf",
]


def dpp_reduce(a, regs, nsteps, op="v_add_f32_dpp"):
    n = len(regs)
    a("s_nop 1")
    for st in DPP_STEPS[:nsteps]:
        for r in regs:
            a("%s v%d, v%d, v%d %s" % (op, r, r, r, st))
        if n == 1:
            a("s_nop 1")
        elif n == 2:
            a("s_nop 0")


def unpack(a, dst_lo, dst_hi, src):
    a("v_lshlrev_b32 v%d, 16, v%d" % (dst_lo, src))
    a("v_and_b32 v%d, 0xffff0000, v%d" % (dst_hi, src))


def silu_group(a, vals, tmps, s_isa=None):
    for v, t in zip(vals, tmps):
        a("v_mul_f32 v%d, s%d, v%d" % (t, S_NL2E, v))
    for v, t in zip(vals, tmps):
        a("v_exp_f32 v%d, v%d" % (t, t))
    for v, t in zip(vals, tmps):
        if s_isa is None:
            a("v_add_f32 v%d, 1.0, v%d" % (t, t))
        else:
            a("v_fma_f32 v%d, v%d, s%d, s%d" % (t, t, s_isa, s_isa))
    for v, t in zip(vals, tmps):
        a("v_rcp_f32 v%d, v%d" % (t, t))
    for v, t in zip(vals, tmps):
        a("v_mul_f32 v%d, v%d, v%d" % (v, v, t))


def pr(r):
    assert r % 2 == 0, r
    return "v[%d:%d]" % (r, r + 1)


def sbc(sreg):
    e = sreg & ~1
    return "s[%d:%d]" % (e, e + 1), sreg & 1


def vbc(vreg):
    e = vreg & ~1
    return "v[%d:%d]" % (e, e + 1), vreg & 1


def pk(a, op, dst, srcs, neg=None):
    txt, lo, hi = [], [], []
    for x in srcs:
        if isinstance(x, tuple):
            txt.append(x[0]); lo.append(x[1]); hi.append(x[1])
        else:
            txt.append(pr(x)); lo.append(0); hi.append(1)
    m = ""
    if any(lo):
        m += " op_sel:[%s]" % ",".join(map(str, lo))
    if not all(hi):
        m += " op_sel_hi:[%s]" % ",".join(map(str, hi))
    if neg and any(neg):
        n = ",".join(map(str, neg))
        m += " neg_lo:[%s] neg_hi:[%s]" % (n, n)
    a("v_pk_%s_f32 %s, %s%s" % (op, pr(dst), ", ".join(txt), m))


def silu_pk(a, pairs, tmps):
    for v, t in zip(pairs, tmps):
        pk(a, "mul", t, [v, sbc(S_NL2E)])
    for v, t in zip(pairs, tmps):
        a("v_exp_f32 v%d, v%d" % (t, t))
        a("v_exp_f32 v%d, v%d" % (t + 1, t + 1))
    for v, t in zip(pairs, tmps):
        pk(a, "fma", t, [t, sbc(S_ISA), sbc(S_ISA)])
    for v, t in zip(pairs, tmps):
        a("v_rcp_f32 v%d, v%d" % (t, t))
        a("v_rcp_f32 v%d, v%d" % (t + 1, t + 1))
    for v, t in zip(pairs, tmps):
        pk(a, "mul", v, [v, t])


class Gen:
    def __init__(self, cfg):
        self.cfg = cfg
        self.a = Asm()

    def stamp(self, real=True):
        if not self.cfg.get("stamp"):
            return
        a = self.a
        a("%s s[96:97]" % ("s_memrealtime" if real else "s_memtime"))
        a("s_waitcnt lgkmcnt(0)")
        a("s_mov_b32 m0, s98")
        a("s_nop 0")
        a("v_writelane_b32 v15, s96, m0")
        a("s_add_u32 s98, s98, 1")

    def stamp_flush(self):
        if not self.cfg.get("stamp"):
            return
        a = self.a
        a("s_mov_b64 exec, -1")
        srd(a, 8, P_WS, WS_DBG, 0x100000)
        a("s_lshl_b32 s3, s2, 11")
        a("s_lshl_b32 s4, s%d, 8" % S_WV)
        a("s_add_u32 s3, s3, s4")
        a("v_lshlrev_b32 v1, 2, v2")
        a("buffer_store_dword v15, v1, s[8:11], s3 offen")
        if self.cfg.get("stamp") == 2:
            l = a.nl("sd")
            a("s_cmp_lg_u32 s2, 5")
            a("s_cbranch_scc1 %s" % l)
            a("s_cmp_lg_u32 s%d, 0" % S_WV)
            a("s_cbranch_scc1 %s" % l)
            srd(a, 8, P_DBG, 0, 64)
            a("v_readlane_b32 s3, v15, 0")
            a("s_nop 3")
            a("v_subrev_u32 v15, s3, v15")
            a("buffer_store_dword v15, v1, s[8:11], 0 offen offset:4")
            a.label(l)

    def local_stats(self, vals, cpair):
        a = self.a
        for i, src in enumerate(vals):
            acc = 24 + 4 * (i % 2)
            if i < 2:
                pk(a, "add", acc, [src, vals[i + 2]])
                pk(a, "mul", acc + 2, [src, src])
            else:
                if i >= 4:
                    pk(a, "add", acc, [acc, src])
                pk(a, "fma", acc + 2, [src, src, acc + 2])
        a("v_pk_add_f32 v[24:25], v[24:25], v[28:29]")
        a("v_pk_add_f32 v[26:27], v[26:27], v[30:31]")
        a("v_add_f32 v24, v24, v25")
        a("v_add_f32 v25, v26, v27")
        dpp_reduce(a, [24, 25], 4)
        a("s_lshl_b32 s3, s%d, 5" % S_WV)
        a("s_add_u32 s3, s3, %d" % L_STAT)
        a("v_lshl_add_u32 v12, v9, 3, s3")
        a("ds_write_b64 v12, v[24:25]")
        a("s_waitcnt lgkmcnt(0)")

    def group_sync(self, csrc, s_own, s_grp, both=False, filler=None):
        a = self.a
        a("v_lshlrev_b32 v12, 4, v8")
        a("v_add_u32 v12, %d, v12" % L_STAT)
        a("ds_read_b128 v[24:27], v12")
        a("v_and_b32 v13, 31, v2")
        a("v_lshlrev_b32 v13, 7, v13")
        if both:
            a("s_xor_b32 s7, s%d, 0x4000" % s_grp)
            a("s_sub_u32 s7, s7, s%d" % s_grp)
            a("v_lshrrev_b32 v14, 5, v2")
            a("v_mul_lo_u32 v14, v14, s7")
            a("v_add_u32 v13, v13, v14")
            a("v_add_u32 v13, s%d, v13" % s_grp)
        a("v_mov_b32 v29, s%d" % S_TAG)
        a("v_mov_b32 v31, s%d" % S_TAG)
        a("v_mov_b32 v14, 0")
        a("s_waitcnt lgkmcnt(0)")
        a("v_add_f32 v24, v24, v26")
        a("v_add_f32 v25, v25, v27")
        dpp_reduce(a, [24, 25], 4)
        a("v_mul_f32 v26, %s, v24" % fx(1.0 / 16384))
        a("v_add_f32 v28, %s, v26" % csrc)
        a("v_fma_f32 v30, -v24, v26, v25")
        a("v_max_f32 v30, 0, v30")
        a("s_mov_b64 exec, 1")
        a("buffer_store_dwordx4 v[28:31], v14, s[%d:%d], s%d offen sc1" % (SRD_SY, SRD_SY + 3, s_own))
        a("s_mov_b64 exec, -1")
        self.stamp()
        if filler:
            filler()
        if self.cfg.get("presleep", 8):
            a("s_sleep %d" % self.cfg.get("presleep", 8))
        a("s_mov_b32 s5, 0")
        lp, ld = a.nl("poll"), a.nl("polld")
        a.label(lp)
        a("buffer_load_dwordx4 v[32:35], v13, s[%d:%d], %s offen sc1" % (SRD_SY, SRD_SY + 3, "0" if both else "s%d" % s_grp))
        a("s_waitcnt vmcnt(0)")
        a("v_cmp_ne_u32 vcc, s%d, v33" % S_TAG)
        a("v_cmp_ne_u32 s[6:7], s%d, v35" % S_TAG)
        a("s_or_b64 vcc, vcc, s[6:7]")
        a("s_cbranch_scc0 %s" % ld)
        a("s_add_u32 s5, s5, 1")
        a("s_cmp_lt_u32 s5, 0x80000")
        a("s_cbranch_scc0 %s" % ld)
        a("s_sleep 1")
        a("s_branch %s" % lp)
        a.label(ld)
        self.stamp()
        a("v_readfirstlane_b32 s6, v32")
        a("s_nop 1")
        a("v_subrev_f32 v36, s6, v32")
        a("v_mul_f32 v37, v36, v36")
        dpp_reduce(a, [36, 37, 34], 5)
        a("v_mul_f32 v41, %s, v36" % fx(1.0 / 32))
        a("v_fma_f32 v42, -v36, v41, v37")
        a("v_max_f32 v42, 0, v42")
        a("v_fmac_f32 v34, %s, v42" % fx(16384.0))
        a("v_mov_b32 v43, %s" % fx(1e-5))
        a("v_fmac_f32 v43, %s, v34" % fx(1.0 / 524288))
        a("v_add_f32 v42, s6, v41")
        a("v_rsq_f32 v43, v43")
        a("v_mov_b32 v12, %d" % L_BC)
        a("s_mov_b32 exec_lo, 0x80000000")
        a("s_mov_b32 exec_hi, 0")
        a("ds_write_b64 v12, v[42:43]")
        a("s_mov_b64 exec, -1")
        a("s_waitcnt lgkmcnt(0)")

    def granule_slot(self, area):
        a = self.a
        a("s_lshl_b32 s51, s%d, 2" % S_B)
        a("s_lshr_b32 s3, s%d, 1" % S_OCT)
        a("s_add_u32 s51, s51, s3")
        a("s_lshl_b32 s51, s51, 12")
        a("s_add_u32 s51, s51, %d" % area)
        a("s_and_b32 s50, s%d, 1" % S_OCT)
        a("s_lshl_b32 s50, s50, 4")
        a("s_add_u32 s50, s50, s%d" % S_RT)
        a("s_lshl_b32 s50, s50, 7")
        a("s_add_u32 s50, s50, s51")

    def flag_list(self, area, with_u):
        a = self.a
        a("v_lshrrev_b32 v12, 3, v2")
        a("v_min_u32 v12, 2, v12")
        a("v_add_u32 v12, s%d, v12" % S_RT)
        a("v_max_u32 v12, 1, v12")
        a("v_min_u32 v12, 16, v12")
        a("s_lshl_b32 s3, s%d, 4" % S_B)
        a("s_sub_u32 s3, s3, 1")
        a("v_add_u32 v12, s3, v12")
        a("v_and_b32 v13, 7, v2")
        a("v_lshl_add_u32 v12, v12, 3, v13")
        if with_u:
            a("v_subrev_u32 v13, 32, v2")
            a("v_lshlrev_b32 v13, 3, v13")
            a("v_add_u32 v13, s%d, v13" % S_OCT)
            a("v_cmp_gt_u32 vcc, 32, v2")
        a("s_lshl_b32 s50, s%d, 3" % S_PT)
        a("s_add_u32 s50, s50, s%d" % S_OCT)
        if with_u:
            a("v_cndmask_b32 v12, v13, v12, vcc")
        a("v_lshlrev_b32 v12, 7, v12")
        a("v_add_u32 v23, %d, v12" % area)
        a("s_lshl_b32 s50, s50, 7")
        a("s_add_u32 s50, s50, %d" % area)

    def flag_store(self, s_own):
        a = self.a
        a("s_mov_b64 exec, 1")
        a("buffer_store_dword v22, v14, s[%d:%d], s%d offen sc1" % (SRD_SY, SRD_SY + 3, s_own))
        a("s_mov_b64 exec, -1")
        self.stamp()

    def flag_poll(self, v_list):
        a = self.a
        if self.cfg.get("presleep2", 6):
            a("s_sleep %d" % self.cfg.get("presleep2", 6))
        a("s_mov_b32 s5, 0")
        lp, ld = a.nl("poll"), a.nl("polld")
        a.label(lp)
        a("buffer_load_dword v25, v%d, s[%d:%d], 0 offen sc1" % (v_list, SRD_SY, SRD_SY + 3))
        a("s_waitcnt vmcnt(0)")
        a("v_cmp_ne_u32 vcc, s%d, v25" % S_TAG)
        a("s_cmp_eq_u64 vcc, 0")
        a("s_cbranch_scc1 %s" % ld)
        a("s_add_u32 s5, s5, 1")
        a("s_cmp_lt_u32 s5, 0x80000")
        a("s_cbranch_scc0 %s" % ld)
        a("s_sleep 1")
        a("s_branch %s" % lp)
        a.label(ld)
        self.stamp()

    def w_dma(self, ptr, s_ob, s_cc, s_lds):
        a = self.a
        srd(a, 12, ptr, 0, W_BYTES)
        a("v_lshlrev_b32 v10, 3, v9")
        a("v_bfe_u32 v11, v2, 2, 2")
        a("v_add_u32 v10, v10, v11")
        a("v_mul_u32_u24 v10, 9216, v10")
        a("v_and_b32 v11, 3, v2")
        a("v_lshl_add_u32 v10, v11, 4, v10")
        a("s_lshr_b32 s3, s%d, 1" % s_ob)
        a("s_lshl_b32 s3, s3, 5")
        a("s_and_b32 s4, s%d, 1" % s_ob)
        a("s_lshl_b32 s4, s4, 2")
        a("s_add_u32 s3, s3, s4")
        a("s_mul_i32 s3, s3, 9216")
        a("s_mul_i32 s4, s%d, 576" % s_cc)
        a("s_add_u32 s3, s3, s4")
        for i in range(9):
            a("s_add_u32 m0, s%d, %d" % (s_lds, i * 960))
            a("s_nop 0")
            a("buffer_load_dwordx4 v10, s[12:15], s3 offen offset:%d%s lds" % (i * 64, self.cfg.get("wf", " nt")))

    def w_pack_part(self, ws_off, s_ob, s_cp, lds_base, R, s_u=None, defer=False):
        a = self.a
        T = R + 36
        O = T + 10
        if s_u is None:
            a("s_lshr_b32 s5, s%d, 2" % S_WV)
        else:
            a("s_mov_b32 s5, s%d" % s_u)
        a("s_mul_i32 s3, s5, 9216")
        a("s_add_u32 s3, s3, %d" % lds_base)
        a("v_mul_u32_u24 v%d, 9, v9" % T)
        a("v_lshl_add_u32 v%d, v8, 6, s3" % (T + 1))
        for i in range(4):
            a("v_add_u32 v%d, %d, v%d" % (T + 2, i, T))
            a("v_lshrrev_b32 v%d, 2, v%d" % (T + 3, T + 2))
            a("v_and_b32 v%d, 3, v%d" % (T + 2, T + 2))
            a("v_lshl_add_u32 v%d, v%d, 10, v%d" % (T + 3, T + 3, T + 1))
            a("v_lshl_add_u32 v%d, v%d, 4, v%d" % (10 + i, T + 2, T + 3))
        for i in range(9):
            a("ds_read_b128 v[%d:%d], v%d offset:%d" % (R + 4 * i, R + 4 * i + 3, 10 + i % 4, (i // 4) * 1024))
        a("s_lshr_b32 s3, s%d, 2" % s_ob)
        a("s_mul_i32 s3, s3, %d" % (4 * 48 * 4096))
        a("s_lshl_b32 s4, s%d, 1" % s_cp)
        a("s_add_u32 s4, s4, s5")
        a("s_lshl_b32 s4, s4, 2")
        a("s_and_b32 s5, s%d, 3" % s_ob)
        a("s_add_u32 s4, s4, s5")
        a("s_mul_i32 s4, s4, 3")
        a("s_and_b32 s5, s%d, 3" % S_WV)
        a("s_add_u32 s4, s4, s5")
        a("s_sub_u32 s4, s4, 1")
        a("s_lshl_b32 s4, s4, 10")
        a("s_add_u32 s39, s3, s4")
        a("s_mov_b32 s6, 0x07060100")
        a("s_mov_b32 s7, 0x05040302")
        ls = [a.nl("wp") for _ in range(4)]
        a("s_waitcnt lgkmcnt(0)")
        a("s_cmp_eq_u32 s5, 2")
        a("s_cbranch_scc1 %s" % ls[1])
        a("s_cmp_eq_u32 s5, 3")
        a("s_cbranch_scc1 %s" % ls[2])
        for dx in range(3):
            a.label(ls[dx])
            for xi, t in ((0, dx), (3, 6 + dx)):
                o = O + 4 * xi
                for k in range(4):
                    e0 = 2 * k * 9 + t
                    e1 = e0 + 9
                    sel = 6 if e0 % 2 == 0 else 7
                    a("v_perm_b32 v%d, v%d, v%d, s%d" % (o + k, R + e1 // 2, R + e0 // 2, sel))
            for k in range(4):
                for h in range(2):
                    j = 2 * k + h
                    for dy in range(3):
                        e = j * 9 + dy * 3 + dx
                        d = T + h * 3 + dy
                        if e % 2 == 0:
                            a("v_lshlrev_b32 v%d, 16, v%d" % (d, R + e // 2))
                        else:
                            a("v_and_b32 v%d, 0xffff0000, v%d" % (d, R + e // 2))
                for h in range(2):
                    a("v_add_f32 v%d, v%d, v%d" % (T + h * 3, T + h * 3, T + 2 + h * 3))
                for h in range(2):
                    a("v_add_f32 v%d, v%d, v%d" % (T + 6 + h, T + h * 3, T + 1 + h * 3))
                    a("v_sub_f32 v%d, v%d, v%d" % (T + 8 + h, T + h * 3, T + 1 + h * 3))
                a("v_cvt_pk_bf16_f32 v%d, v%d, v%d" % (O + 4 + k, T + 6, T + 7))
                a("v_cvt_pk_bf16_f32 v%d, v%d, v%d" % (O + 8 + k, T + 8, T + 9))
            if dx < 2:
                a("s_branch %s" % ls[3])
        a.label(ls[3])
        if not defer:
            self.w_pack_store(ws_off, R)

    def w_pack_store(self, ws_off, R):
        a = self.a
        O = R + 46
        srd(a, 12, P_WS, ws_off, UP_BYTES)
        for xi in range(4):
            a("buffer_store_dwordx4 v[%d:%d], v6, s[12:15], s39 offen sc1" % (O + 4 * xi, O + 4 * xi + 3))
            a("s_add_u32 s39, s39, %d" % (48 * 4096))
        a("s_nop 1")

    def norm_coeffs(self, G, BT, SC, SH):
        a = self.a
        for j in range(4):
            unpack(a, SC + 2 * j, SC + 2 * j + 1, G + j)
            unpack(a, SH + 2 * j, SH + 2 * j + 1, BT + j)
        a("s_waitcnt lgkmcnt(0)")
        a("v_sub_f32 v16, v16, v20")
        for j in range(4):
            pk(a, "mul", SC + 2 * j, [SC + 2 * j, vbc(17)])
        for j in range(4):
            pk(a, "fma", SH + 2 * j, [SC + 2 * j, vbc(16), SH + 2 * j], neg=[1, 0, 0])

    def build(self):
        a, cfg = self.a, self.cfg
        name = "standalone__adm_resblock__diffusion_kernel"
        a.raw(".globl %s" % name)
        a.raw(".p2align 8")
        a.raw(".type %s,@function" % name)
        a.label(name)
        a("s_cmp_ge_u32 s2, 256")
        a("s_cbranch_scc1 L_end")
        a("s_load_dwordx16 s[64:79], s[0:1], 0")
        a("s_load_dwordx8 s[80:87], s[0:1], 64")
        a("v_lshrrev_b32 v1, 6, v0")
        a("v_and_b32 v2, 63, v0")
        a("v_readfirstlane_b32 s%d, v1" % S_WV)
        a("v_lshlrev_b32 v6, 4, v2")
        a("v_and_b32 v8, 15, v2")
        a("v_lshrrev_b32 v9, 4, v2")
        a("v_mov_b32 v14, 0")
        if cfg.get("cpf", 1):
            a("s_getpc_b64 s[12:13]")
            a.label("L_pc")
            a("s_sub_u32 s12, s12, L_pc-%s" % name)
            a("s_subb_u32 s13, s13, 0")
            a("s_mov_b32 s14, L_codeend-%s" % name)
            a("s_mov_b32 s15, 0x20000")
            a("s_lshr_b32 s3, s2, 3")
            a("s_lshl_b32 s4, s%d, 4" % S_WV)
            a("s_add_u32 s3, s3, s4")
            a("s_and_b32 s3, s3, 31")
            a("s_lshl_b32 s3, s3, 10")
            a("s_cmp_lt_u32 s%d, 6" % S_WV)
            a("s_cbranch_scc1 L_nocpf")
            a("buffer_load_dwordx4 v[104:107], v6, s[12:15], s3 offen")
            a.label("L_nocpf")
        a("s_and_b32 s3, s2, 1")
        a("s_lshl_b32 s3, s3, 2")
        a("s_bfe_u32 s4, s2, 0x20003")
        a("s_add_u32 s%d, s3, s4" % S_OCT)
        a("s_bfe_u32 s3, s2, 0x20001")
        a("s_lshl_b32 s3, s3, 3")
        a("s_lshr_b32 s4, s2, 5")
        a("s_add_u32 s%d, s3, s4" % S_PT)
        a("s_lshr_b32 s%d, s%d, 4" % (S_B, S_PT))
        a("s_and_b32 s%d, s%d, 15" % (S_RT, S_PT))
        a("v_and_b32 v3, 3, v2")
        a("v_lshrrev_b32 v4, 2, v2")
        a("v_lshlrev_b32 v5, 16, v3")
        a("v_lshl_add_u32 v5, v4, 3, v5")
        a("s_lshl_b32 s47, s%d, 22" % S_B)
        a("s_lshl_b32 s3, s%d, 19" % S_OCT)
        a("s_add_u32 s47, s47, s3")
        a("s_lshl_b32 s3, s%d, 9" % S_RT)
        a("s_add_u32 s47, s47, s3")
        a("s_lshr_b32 s45, s%d, 2" % S_WV)
        a("s_and_b32 s46, s%d, 3" % S_WV)
        if cfg.get("stamp"):
            a("s_mov_b32 s98, 0")
            a("v_mov_b32 v15, 0")
        self.stamp()
        a("s_memrealtime s[4:5]")
        a("s_waitcnt lgkmcnt(0)")
        if cfg.get("trip"):
            a("s_mov_b32 s99, s4")
            a("s_mov_b32 s100, 0")
            a("s_add_u32 s6, s%d, 0x3f00000" % P_WS)
            a("s_addc_u32 s7, s%d, 0" % (P_WS + 1))
            a("s_load_dword s101, s[6:7], 0")
        a("s_lshl_b32 s3, s2, 3")
        a("s_add_u32 s3, s3, s%d" % S_WV)
        a("s_cmp_lg_u32 s3, 7")
        a("s_cbranch_scc1 L_nononce")
        srd(a, 32, P_DBG, 0, 256)
        a("s_or_b32 s4, s4, 1")
        a("v_mov_b32 v13, s4")
        a("s_mov_b64 exec, 1")
        a("buffer_store_dword v13, v14, s[32:35], 0 offen sc1")
        a("s_mov_b64 exec, -1")
        a.label("L_nononce")
        if cfg.get("tlb", 0):
            a("s_cmp_lg_u32 s%d, 5" % S_WV)
            a("s_cbranch_scc1 L_notlb")
            srd(a, 12, P_WS, 0, 0x2100000)
            srd(a, 16, P_OUT, 0, IMG_BYTES)
            a("v_lshlrev_b32 v10, %d, v2" % cfg.get("tlbs", 20))
            a("buffer_load_dword v104, v10, s[12:15], 0 offen")
            a("buffer_load_dword v105, v10, s[16:19], 0 offen")
            a.label("L_notlb")
        srd(a, 8, P_X, 0, IMG_BYTES)
        a("s_lshl_b32 s3, s45, 18")
        a("s_lshl_b32 s4, s46, 7")
        a("s_add_u32 s3, s3, s4")
        a("s_add_u32 s3, s3, s47")
        XR = 48
        for j in range(8):
            a("buffer_load_dwordx2 v[%d:%d], v5, s[8:11], s3 offen%s" % (XR + 2 * j, XR + 2 * j + 1, cfg.get("xf", " nt")))
            if j < 7:
                a("s_add_u32 s3, s3, 8192")
        a("s_add_u32 s6, s%d, s47" % P_X)
        a("s_addc_u32 s7, s%d, 0" % (P_X + 1))
        a("s_load_dword s48, s[6:7], 0")
        srd(a, 24, P_G1, 0, 1024)
        srd(a, 28, P_BE1, 0, 1024)
        a("s_lshl_b32 s3, s%d, 7" % S_OCT)
        a("s_lshl_b32 s4, s45, 6")
        a("s_add_u32 s3, s3, s4")
        a("v_lshlrev_b32 v10, 4, v3")
        a("buffer_load_dwordx4 v[64:67], v10, s[24:27], s3 offen")
        a("buffer_load_dwordx4 v[68:71], v10, s[28:31], s3 offen")
        srd(a, SRD_SY, P_WS, WS_SYNC, 0x28000)
        a("s_mov_b32 s%d, %s" % (S_NL2E, fx(-LOG2E)))
        a("s_mov_b32 s%d, 0" % S_PHASE)
        a("s_mov_b32 s%d, 0" % S_TAG)
        RR = 112
        if cfg.get("wflag", 1):
            a("v_mov_b32 v10, %d" % L_WF)
            a("v_mov_b32 v12, 0")
            a("v_mov_b32 v13, 0")
            a("ds_write_b64 v10, v[12:13]")
            a("s_waitcnt lgkmcnt(0)")
        a("s_barrier")
        a("s_lshl_b32 s36, s%d, 2" % S_OCT)
        a("s_lshr_b32 s3, s%d, 3" % S_PT)
        a("s_add_u32 s36, s36, s3")
        a("s_and_b32 s37, s%d, 7" % S_PT)
        a("s_cmp_eq_u32 s%d, 0" % S_WV)
        a("s_cbranch_scc1 L_r0")
        a("s_cmp_eq_u32 s%d, 1" % S_WV)
        a("s_cbranch_scc1 L_r1")
        a("s_cmp_lt_u32 s%d, 4" % S_WV)
        a("s_cbranch_scc1 L_rw")
        if cfg.get("w2p0", 2) == 2:
            a("s_cmp_gt_u32 s%d, 5" % S_WV)
            a("s_cbranch_scc1 L_rw2")
        a("s_cmp_lg_u32 s%d, 4" % S_WV)
        a("s_cbranch_scc1 L_rnone")
        a("s_bitcmp1_b32 s%d, 0" % S_PT)
        a("s_cbranch_scc1 L_rnone")
        a("s_lshr_b32 s49, s%d, 1" % S_PT)
        a("s_mul_i32 s3, s49, 48")
        a("v_lshrrev_b32 v10, 3, v2")
        a("v_mul_u32_u24 v10, 6, v10")
        a("v_add_u32 v10, s3, v10")
        a("v_lshlrev_b32 v11, 1, v10")
        a("v_lshlrev_b32 v10, 10, v10")
        a("v_and_b32 v12, 7, v2")
        a("v_lshl_add_u32 v10, v12, 4, v10")
        a("v_add_u32 v12, 4096, v10")
        a("s_lshl_b32 s3, s%d, 7" % S_OCT)
        srd(a, 12, P_TEMB, 0, 2 * 768 * 2)
        srd(a, 16, P_WEMB, 0, 768 * 512 * 2)
        a("buffer_load_dwordx3 v[%d:%d], v11, s[12:15], 0 offen" % (RR, RR + 2))
        a("buffer_load_dwordx3 v[%d:%d], v11, s[12:15], 0 offen offset:1536" % (RR + 4, RR + 6))
        for i in range(6):
            a("buffer_load_dwordx4 v[%d:%d], v%d, s[16:19], s3 offen offset:%d nt" %
              (RR + 8 + 4 * i, RR + 11 + 4 * i, 10 if i < 4 else 12, (i % 4) * 1024))
        a("s_waitcnt vmcnt(8)")
        a("s_branch L_rdone")
        a.label("L_rw")
        a("s_sub_u32 s51, s%d, 2" % S_WV)
        a("s_lshl_b32 s50, s37, 1")
        a("s_add_u32 s50, s50, s51")
        a("s_mul_i32 s51, s51, 9216")
        a("s_add_u32 s51, s51, %d" % L_W1)
        self.w_dma(P_W1, 36, 50, 51)
        a("s_waitcnt vmcnt(9)")
        a("s_branch L_rdone")
        if cfg.get("w2p0", 2) == 2:
            a.label("L_rw2")
            a("s_sub_u32 s51, s%d, 6" % S_WV)
            a("s_lshl_b32 s50, s37, 1")
            a("s_add_u32 s50, s50, s51")
            a("s_mul_i32 s51, s51, 9216")
            a("s_add_u32 s51, s51, %d" % L_W2)
            a("s_waitcnt vmcnt(%d)" % cfg.get("w2wait", 10))
            self.w_dma(P_W2, 36, 50, 51)
            a("s_waitcnt vmcnt(9)")
            a("s_branch L_rdone")
        a.label("L_r1")
        srd(a, 12, P_G2, 0, 1024)
        srd(a, 16, P_BE2, 0, 1024)
        a("buffer_load_dwordx4 v[%d:%d], v6, s[24:27], 0 offen" % (RR, RR + 3))
        a("buffer_load_dwordx4 v[%d:%d], v6, s[28:31], 0 offen" % (RR + 4, RR + 7))
        a("buffer_load_dwordx4 v[%d:%d], v6, s[12:15], 0 offen" % (RR + 8, RR + 11))
        a("buffer_load_dwordx4 v[%d:%d], v6, s[16:19], 0 offen" % (RR + 12, RR + 15))
        a("s_waitcnt vmcnt(4)")
        a("s_branch L_rdone")
        a.label("L_r0")
        srd(a, 32, P_DBG, 0, 256)
        a("s_waitcnt vmcnt(%d)" % cfg.get("nwait", 8))
        a("buffer_load_dword v%d, v14, s[32:35], 0 offen sc1" % RR)
        a("s_waitcnt vmcnt(1)")
        a("s_branch L_rdone")
        a.label("L_rnone")
        a("s_waitcnt vmcnt(0)")
        a.label("L_rdone")
        self.stamp()
        XF = 72

        def stash_write():
            a("s_mul_i32 s3, s45, %d" % (4 * 4224))
            a("s_lshl_b32 s4, s46, 7")
            a("s_add_u32 s3, s3, s4")
            a("s_add_u32 s3, s3, %d" % L_XS)
            a("v_mul_u32_u24 v10, 4224, v3")
            a("v_lshl_add_u32 v10, v4, 3, v10")
            a("v_add_u32 v10, s3, v10")
            for j in range(8):
                a("ds_write_b64 v10, v[%d:%d] offset:%d" % (XR + 2 * j, XR + 2 * j + 1, j * 512))

        for j in range(8):
            for d in range(2):
                unpack(a, XF + 4 * j + 2 * d, XF + 4 * j + 2 * d + 1, XR + 2 * j + d)
        a("s_waitcnt lgkmcnt(0)")
        a("s_lshl_b32 s48, s48, 16")
        a("s_mov_b32 s49, s48") if False else None
        a("v_mov_b32 v20, s48")
        for i in range(16):
            pk(a, "add", XF + 2 * i, [XF + 2 * i, sbc(48)], neg=[0, 1])
        self.local_stats([XF + 2 * i for i in range(16)], "v[20:21]")
        if not cfg.get("wflag", 1):
            a("s_and_b32 s3, s%d, 6" % S_WV)
            a("s_cmp_lg_u32 s3, 2")
            a("s_cbranch_scc1 L_nww")
            a("s_waitcnt vmcnt(0)")
            a.label("L_nww")
        a("s_barrier")
        a("s_cmp_eq_u32 s%d, 0" % S_WV)
        a("s_cbranch_scc1 L_s0")
        stash_write()
        a("s_cmp_eq_u32 s%d, 4" % S_WV)
        a("s_cbranch_scc1 L_semb")
        if cfg.get("wflag", 1):
            a("s_and_b32 s3, s%d, 6" % S_WV)
            a("s_cmp_lg_u32 s3, 2")
            a("s_cbranch_scc1 L_nww")
            a("s_lshl_b32 s3, s%d, 2" % S_WV)
            a("s_add_u32 s3, s3, %d" % (L_WF - 8))
            a("v_mov_b32 v10, s3")
            a("v_mov_b32 v11, 1")
            a("s_waitcnt vmcnt(0)")
            a("ds_write_b32 v10, v11")
            a.label("L_nww")
            a("s_lshl_b32 s3, s45, 2")
            a("s_add_u32 s3, s3, %d" % L_WF)
            a("v_mov_b32 v10, s3")
            a.label("L_wspin")
            a("ds_read_b32 v11, v10")
            a("s_waitcnt lgkmcnt(0)")
            a("v_readfirstlane_b32 s3, v11")
            a("s_nop 3")
            a("s_cmp_lg_u32 s3, 0")
            a("s_cbranch_scc1 L_wok")
            a("s_sleep 1")
            a("s_branch L_wspin")
            a.label("L_wok")
        self.w_pack_part(WS_W1, 36, 37, L_W1, 144, defer=True)
        a("s_cmp_eq_u32 s%d, 1" % S_WV)
        a("s_cbranch_scc1 L_s1")
        a("s_branch L_sdone")
        a.label("L_semb")
        a("s_waitcnt vmcnt(0) lgkmcnt(0)")
        a("s_bitcmp1_b32 s%d, 0" % S_PT)
        a("s_cbranch_scc1 L_sdone")
        E = 148
        for b in range(2):
            for d in range(3):
                unpack(a, E + 6 * b + 2 * d, E + 6 * b + 2 * d + 1, RR + 4 * b + d)
        silu_group(a, list(range(E, E + 12)), list(range(E + 12, E + 24)))
        EA = E + 24
        for i in range(6):
            for k in range(4):
                unpack(a, E + 12, E + 13, RR + 8 + 4 * i + k)
                for h in range(2):
                    j = 2 * k + h
                    for b in range(2):
                        if i == 0:
                            a("v_mul_f32 v%d, v%d, v%d" % (EA + 8 * b + j, E + 12 + h, E + 6 * b + i))
                        else:
                            a("v_fmac_f32 v%d, v%d, v%d" % (EA + 8 * b + j, E + 12 + h, E + 6 * b + i))
        a("s_nop 1")
        for j in range(8):
            a("v_permlane32_swap_b32 v%d, v%d" % (EA + j, EA + 8 + j))
        for j in range(8):
            a("v_add_f32 v%d, v%d, v%d" % (EA + j, EA + j, EA + 8 + j))
        a("s_nop 1")
        for j in range(4):
            a("v_permlane16_swap_b32 v%d, v%d" % (EA + j, EA + 4 + j))
        for j in range(4):
            a("v_add_f32 v%d, v%d, v%d" % (EA + j, EA + j, EA + 4 + j))
        a("s_nop 1")
        for j in range(4):
            a("v_add_f32_dpp v%d, v%d, v%d row_ror:8 row_mask:0xf bank_mask:0xf" % (EA + j, EA + j, EA + j))
        srd(a, 12, P_WS, WS_EMB, 65536)
        a("v_lshrrev_b32 v10, 5, v2")
        a("v_lshlrev_b32 v10, 11, v10")
        a("v_and_b32 v11, 7, v2")
        a("v_lshl_add_u32 v10, v11, 5, v10")
        a("v_and_b32 v11, 16, v2")
        a("v_add_u32 v10, v10, v11")
        a("s_lshl_b32 s3, s49, 12")
        a("s_lshl_b32 s4, s%d, 8" % S_OCT)
        a("s_add_u32 s3, s3, s4")
        a("buffer_store_dwordx4 v[%d:%d], v10, s[12:15], s3 offen sc1" % (EA, EA + 3))
        a("s_branch L_sdone")
        a.label("L_s1")
        a("s_waitcnt vmcnt(0)")
        a("s_mov_b32 s3, 0x7fff7fff")
        for arr in range(4):
            r = RR + 4 * arr
            for k in range(4):
                a("v_and_b32 v%d, s3, v%d" % (r + k, r + k))
            a("v_pk_max_u16 v%d, v%d, v%d" % (r, r, r + 1))
            a("v_pk_max_u16 v%d, v%d, v%d" % (r + 2, r + 2, r + 3))
            a("v_pk_max_u16 v%d, v%d, v%d" % (r, r, r + 2))
            a("v_lshrrev_b32 v%d, 16, v%d" % (r + 1, r))
            a("v_and_b32 v%d, 0xffff, v%d" % (r, r))
            a("v_max_u32 v%d, v%d, v%d" % (r, r, r + 1))
        dpp_reduce(a, [RR, RR + 4, RR + 8, RR + 12], 6, "v_max_u32_dpp")
        for k in range(2):
            g, bt = RR + 8 * k, RR + 8 * k + 4
            a("v_lshrrev_b32 v%d, 7, v%d" % (g, g))
            a("v_lshrrev_b32 v%d, 7, v%d" % (bt, bt))
            a("v_add_u32 v%d, 10, v%d" % (g, g))
            a("v_max_u32 v%d, v%d, v%d" % (g, g, bt))
            a("v_max_u32 v%d, 14, v%d" % (g, g))
            a("v_min_u32 v%d, 0x10a, v%d" % (g, g))
            a("v_subrev_u32 v%d, 13, v%d" % (g, g))
            a("v_lshlrev_b32 v%d, 23, v%d" % (RR + 16 + k, g))
        a("v_mov_b32 v12, %d" % (L_BC + 8))
        a("s_mov_b32 exec_lo, 0")
        a("s_mov_b32 exec_hi, 0x80000000")
        a("ds_write_b64 v12, v[%d:%d]" % (RR + 16, RR + 17))
        a("s_mov_b64 exec, -1")
        a("s_waitcnt lgkmcnt(0)")
        a("s_branch L_sdone")
        a.label("L_s0")
        a("s_mov_b32 s5, 0")
        a.label("L_nonce")
        a("s_waitcnt vmcnt(0)")
        a("v_readfirstlane_b32 s%d, v%d" % (S_TAG, RR))
        a("s_nop 3")
        a("s_cmp_lg_u32 s%d, 0" % S_TAG)
        a("s_cbranch_scc1 L_nonced")
        a("s_add_u32 s5, s5, 1")
        a("s_cmp_lt_u32 s5, 0x80000")
        a("s_cbranch_scc0 L_nonced")
        a("s_sleep 4")
        srd(a, 32, P_DBG, 0, 256)
        a("buffer_load_dword v%d, v14, s[32:35], 0 offen sc1" % RR)
        a("s_branch L_nonce")
        a.label("L_nonced")
        a("v_mov_b32 v12, %d" % (L_BC + 16))
        a("v_mov_b32 v13, s%d" % S_TAG)
        a("ds_write_b32 v12, v13")
        self.granule_slot(SY_GA)
        self.group_sync("v20", 50, 51, filler=stash_write)
        a.label("L_sdone")
        if cfg.get("stamp") == 3:
            self.stamp()
        a("s_barrier")
        if cfg.get("stamp") == 3:
            self.stamp()
        a("v_mov_b32 v12, %d" % L_BC)
        a("ds_read_b128 v[16:19], v12")
        a("ds_read_b32 v22, v12 offset:16")
        a("s_cmp_eq_u32 s46, 0")
        a("s_cbranch_scc1 L_nop1")
        self.w_pack_store(WS_W1, 144)
        if cfg.get("w2p0", 2) == 1:
            a("s_branch L_nop1b")
        a.label("L_nop1")
        if cfg.get("w2p0", 2) == 1:
            a("s_lshl_b32 s50, s37, 1")
            a("s_add_u32 s50, s50, s45")
            a("s_mul_i32 s51, s45, 9216")
            a("s_add_u32 s51, s51, %d" % L_W2)
            self.w_dma(P_W2, 36, 50, 51)
            a.label("L_nop1b")
        srd(a, 8, P_WS, WS_A1, IMG_BYTES)
        a("v_bfe_u32 v10, v4, 2, 1")
        a("v_lshlrev_b32 v10, 1, v10")
        a("v_xor_b32 v10, v10, v3")
        a("v_lshlrev_b32 v10, 4, v10")
        a("v_lshl_add_u32 v10, v4, 6, v10")
        a("s_lshl_b32 s47, s%d, 4" % S_B)
        a("s_lshl_b32 s3, s%d, 1" % S_OCT)
        a("s_add_u32 s47, s47, s3")
        a("s_add_u32 s47, s47, s45")
        a("s_lshl_b32 s47, s47, 18")
        a("s_lshl_b32 s3, s%d, 14" % S_RT)
        a("s_add_u32 s47, s47, s3")
        a("s_lshl_b32 s3, s46, 12")
        a("s_add_u32 s47, s47, s3")
        self.norm_coeffs(64, 68, 24, 32)
        a("v_readfirstlane_b32 s%d, v18" % S_ISA)
        a("v_readfirstlane_b32 s%d, v19" % S_ISA2)
        a("v_readfirstlane_b32 s%d, v22" % S_TAG)
        for d in range(2):
            prs = [XF + 4 * j + 2 * d for j in range(8)]
            tm = [40 + 2 * j for j in range(8)]
            for j in range(8):
                pk(a, "fma", prs[j], [prs[j], vbc(24 + j), vbc(32 + j)])
            silu_pk(a, prs, tm)
            for h in range(2):
                i = 2 * d + h
                o = 56 + 4 * i
                for k in range(4):
                    a("v_cvt_pk_f16_f32 v%d, v%d, v%d" % (o + k, prs[2 * k] + h, prs[2 * k + 1] + h))
                a("buffer_store_dwordx4 v[%d:%d], v10, s[8:11], s47 offen offset:%d sc1" % (o, o + 3, i * 1024))
        if cfg.get("stamp") == 3:
            self.stamp()
        if cfg.get("fuw", 0):
            a("s_cmp_lg_u32 s37, 0")
            a("s_cbranch_scc1 L_nofw")
            a("s_cmp_eq_u32 s46, 0")
            a("s_cbranch_scc1 L_nofw")
            a("s_lshl_b32 s3, s36, 3")
            a("s_add_u32 s3, s3, s%d" % S_WV)
            a("s_lshl_b32 s3, s3, 7")
            a("s_add_u32 s3, s3, %d" % SY_FW)
            a("v_mov_b32 v14, 0")
            a("s_waitcnt vmcnt(4)")
            a("s_mov_b64 exec, 1")
            a("buffer_store_dword v22, v14, s[%d:%d], s3 offen sc1" % (SRD_SY, SRD_SY + 3))
            a("s_mov_b64 exec, -1")
            a.label("L_nofw")
        a("s_cmp_lt_u32 s%d, 4" % S_WV)
        a("s_cbranch_scc1 L_nores")
        a("s_bfe_u32 s3, s%d, 0x10001" % S_WV)
        a("s_lshl_b32 s3, s3, 11")
        a("s_and_b32 s4, s%d, 1" % S_WV)
        a("s_lshl_b32 s4, s4, 8")
        a("s_add_u32 s3, s3, s4")
        a("s_add_u32 s3, s3, %d" % L_XS)
        a("v_mul_u32_u24 v10, 4224, v9")
        a("v_lshl_add_u32 v10, v8, 3, v10")
        a("v_add_u32 v10, s3, v10")
        a("v_add_u32 v11, %d, v10" % (4 * 4224))
        for j in range(4):
            a("ds_read2_b64 v[%d:%d], v11 offset0:%d offset1:%d" % (208 + 4 * j, 211 + 4 * j, j * 64, j * 64 + 16))
            a("ds_read2_b64 v[%d:%d], v10 offset0:%d offset1:%d" % (224 + 4 * j, 227 + 4 * j, j * 64, j * 64 + 16))
        a("s_waitcnt lgkmcnt(0)")
        a.label("L_nores")
        self.flag_list(SY_FB, True)
        if cfg.get("stamp") == 3:
            self.stamp()

        a.label("L_conv")
        VV = [3, 4, 5]
        VFR, USET, ACC, EXT = 16, 64, 128, 96
        a("v_mov_b32 v22, s%d" % S_TAG)
        a("v_mov_b32 v14, 0")
        a("s_cmp_lg_u32 s%d, 4" % S_WV)
        a("s_waitcnt vmcnt(0)")
        if cfg.get("stamp"):
            self.stamp()
            a("s_cmp_lg_u32 s%d, 4" % S_WV)
        a("s_barrier")
        a("s_cbranch_scc1 L_noflag")
        self.flag_store(50)
        a.label("L_noflag")
        a("s_sub_u32 s%d, s%d, 0x800000" % (S_HISA, S_ISA))
        a("s_lshl_b32 s3, s%d, 23" % S_PHASE)
        a("s_cmp_ge_u32 s%d, 4" % S_WV)
        a("s_cbranch_scc1 L_prod")

        def ureg(st, blk):
            return USET + 16 * st + 4 * blk

        def vreg_(rp, k):
            return VFR + 4 * (rp * 6 + k)

        def areg(blk, i):
            return ACC + 4 * (blk * 8 + i)

        a("s_lshl_b32 s4, s%d, 2" % S_OCT)
        a("s_add_u32 s4, s4, s%d" % S_WV)
        a("s_mul_i32 s4, s4, %d" % (48 * 4096))
        a("s_add_u32 s3, s3, s4")
        a("s_add_u32 s3, s3, 0x%x" % WS_W1)
        a("s_add_u32 s16, s%d, s3" % P_WS)
        a("s_addc_u32 s17, s%d, 0" % (P_WS + 1))
        a("s_mov_b32 s18, 0x%x" % (48 * 4096))
        a("s_mov_b32 s19, 0x20000")
        a("s_mov_b32 s52, 0")
        a("s_mul_i32 s3, s%d, %d" % (S_WV, RS))
        for sh in range(3):
            a("v_add_u32 v11, %d, v8" % (15 + sh))
            a("v_bfe_u32 v12, v11, 2, 1")
            a("v_lshlrev_b32 v12, 1, v12")
            a("v_xor_b32 v12, v12, v9")
            a("v_lshlrev_b32 v12, 4, v12")
            a("v_lshl_add_u32 v12, v8, 6, v12")
            a("v_add_u32 v%d, s3, v12" % VV[sh])
        a("v_bfe_u32 v11, v2, 2, 3")
        a("v_mul_u32_u24 v11, %d, v11" % XPITCH)
        a("v_and_b32 v12, 3, v2")
        a("v_lshl_add_u32 v11, v12, 4, v11")
        a("v_add_u32 v11, s3, v11")
        for r in range(ACC, ACC + 128):
            a("v_mov_b32 v%d, 0" % r)
        a("ds_write_b128 v11, v[%d:%d] offset:1024" % (ACC, ACC + 3))
        a("v_add_u32 v7, s3, v6")
        a("s_waitcnt lgkmcnt(0)")
        a("s_cmp_lg_u32 s%d, 0" % S_PHASE)
        a("s_cbranch_scc1 L_uerly")
        if cfg.get("fuw", 0):
            a("v_and_b32 v12, 31, v2")
            a("v_and_b32 v13, 3, v2")
            a("v_max_u32 v13, 1, v13")
            a("v_and_b32 v12, 28, v12")
            a("v_or_b32 v12, v12, v13")
            a("s_lshl_b32 s3, s%d, 12" % S_OCT)
            a("s_add_u32 s3, s3, %d" % SY_FW)
            a("v_lshl_add_u32 v12, v12, 7, s3")
            sv = self.cfg.get("presleep2", 6)
            self.cfg["presleep2"] = 0
            st = self.cfg.get("stamp")
            self.cfg["stamp"] = 0
            self.flag_poll(12)
            self.cfg["presleep2"] = sv
            self.cfg["stamp"] = st
        else:
            a("s_barrier")
        a.label("L_uerly")

        def uload(j, off):
            r = USET + 4 * (j % 16)
            return "buffer_load_dwordx4 v[%d:%d], v6, s[16:19], s52 offen offset:%d%s" % (r, r + 3, off, cfg.get("uf", " sc1"))

        def vread(rp, k, buf):
            r = vreg_(rp, k)
            sh, off = {0: (0, POFF[3] - 64), 5: (2, POFF[0] + 64)}.get(k, (1, POFF[(k - 1) % 4]))
            return "ds_read_b128 v[%d:%d], v%d offset:%d" % (r, r + 3, VV[sh], buf * VB + rp * XPITCH + off)

        def mfma(t, m):
            blk, rp, f, dx = t % 4, m // 12, (m % 12) // 3, m % 3
            d, u, x = areg(blk, rp * 4 + f), USET + 4 * ((3 * t + dx) % 16), vreg_(rp, f + dx)
            return "v_mfma_f32_16x16x32_bf16 v[%d:%d], v[%d:%d], v[%d:%d], v[%d:%d]" % (d, d + 3, u, u + 3, x, x + 3, d, d + 3)

        def dump(blk, i):
            r = areg(blk, i)
            return "ds_write_b128 v7, v[%d:%d] offset:%d" % (r, r + 3, (blk * 8 + i) * FS)

        ufirst = cfg.get("ufirst", 13)
        for j in range(ufirst):
            a(uload(j, (j % 4) * 1024))
            if j % 4 == 3:
                a("s_add_u32 s52, s52, 4096")
        if not cfg.get("fuw", 0):
            a("s_cmp_eq_u32 s%d, 0" % S_PHASE)
            a("s_cbranch_scc1 L_ulate")
        a("s_barrier")
        a.label("L_ulate")
        a("s_barrier")
        if cfg.get("trip") and cfg.get("tripat") == "b0":
            a("s_memrealtime s[96:97]")
            a("s_waitcnt lgkmcnt(0)")
            a("s_sub_u32 s96, s96, s99")
            a("s_cmp_eq_u32 s%d, 0" % S_PHASE)
            a("s_cselect_b32 s100, s96, s100")
        self.stamp()
        if cfg.get("stamp") == 4:
            self.stamp(False)
        for k in range(6):
            a(vread(0, k, 0))
        for k in range(3):
            a(vread(1, k, 0))
        for j in range(ufirst, 13):
            a(uload(j, (j % 4) * 1024))
            if j % 4 == 3:
                a("s_add_u32 s52, s52, 4096")
        a("s_add_u32 s52, s52, 1024")
        a("s_mov_b32 s53, 0")
        if cfg.get("prio"):
            a("s_setprio %d" % cfg["prio"])
        a.raw(".p2align 6")
        a.label("L_loop")
        upos = cfg.get("upos", (4, 10, 16))
        for t in range(16):
            blk, buf = t % 4, t // 4
            nbuf = (buf + 1) % 4
            after, before = {}, {}
            if blk == 0:
                for k in range(3):
                    after[k] = [vread(1, 3 + k, buf)]
                before[0] = "s_waitcnt vmcnt(10) lgkmcnt(6)"
                before[3] = "s_waitcnt lgkmcnt(6)"
                before[12] = "s_waitcnt lgkmcnt(3)"
                before[15] = "s_waitcnt lgkmcnt(0)"
            else:
                before[0] = "s_waitcnt vmcnt(10)"
            if blk == 3:
                after[1] = ["s_barrier"]
                for m, rp, k in ((3, 0, 0), (6, 0, 1), (9, 0, 2), (12, 0, 3), (13, 0, 4), (14, 0, 5), (15, 1, 0), (18, 1, 1), (21, 1, 2)):
                    after[m] = [vread(rp, k, nbuf)]
            for i, m in enumerate(upos):
                after.setdefault(m, []).append(uload(3 * t + 13 + i, i * 1024))
            after.setdefault(20, []).append("s_add_u32 s52, s52, 3072")
            if t == 12:
                after.setdefault(22, []).append("s_cmp_eq_u32 s53, 3")
            if t == 15:
                after.setdefault(22, []).append("s_add_u32 s53, s53, 1")
            if t == 13:
                a("s_cbranch_scc1 L_last")
            for m in range(24):
                if m in before:
                    a(before[m])
                a(mfma(t, m))
                for x in after.get(m, []):
                    a(x)
        a("s_branch L_loop")
        a.label("L_last")
        for t in range(13, 16):
            a("s_waitcnt vmcnt(%d)" % (10 - 3 * (t - 13)))
            for m in range(24):
                a(mfma(t, m))
                if m % 3 == 2:
                    a(dump(t % 4 - 1, m // 3))
                if t == 15 and m >= 12 and m % 3 == 0:
                    a(dump(3, (m - 12) // 3))
        if cfg.get("stamp") == 4:
            self.stamp(False)
        self.stamp()
        if cfg.get("prio"):
            a("s_setprio 0")
        a(dump(3, 4))
        a(dump(3, 5))
        a("s_nop 3")
        a(dump(3, 6))
        a("s_nop 1")
        a(dump(3, 7))
        a("s_waitcnt vmcnt(0)")
        self.epi_loads()
        a("s_waitcnt lgkmcnt(0)")
        a("s_branch L_epi")

        a.label("L_prod")
        D = 2
        RAW, TMP, OUT = 24, 72, 88
        a("s_lshl_b32 s4, s%d, 22" % S_B)
        a("s_add_u32 s3, s3, s4")
        a("s_add_u32 s16, s%d, s3" % P_WS)
        a("s_addc_u32 s17, s%d, 0" % (P_WS + 1))
        a("s_mov_b32 s18, 0x%x" % (IMG_BYTES // 2))
        a("s_mov_b32 s19, 0x20000")
        a("s_sub_u32 s4, s%d, 4" % S_WV)
        a("s_lshl_b32 s4, s4, 10")
        a("v_add_u32 v3, s4, v6")
        a("s_cmp_eq_u32 s%d, 7" % S_WV)
        a("s_cselect_b32 s4, 0, s4")
        a("s_add_u32 s4, s4, 1088")
        a("s_cmp_eq_u32 s%d, 4" % S_WV)
        a("s_cselect_b32 s4, 0, s4")
        a("v_add_u32 v4, s4, v6")
        a("v_add_u32 v5, %d, v4" % (2 * RS))
        a("s_lshl_b32 s3, s%d, 14" % S_RT)
        for r in range(6):
            a("s_add_u32 s%d, s3, 0x%x" % (52 + r, ((r - 1) * 4096) & 0xFFFFFFFF))
        a("s_cmp_eq_u32 s%d, 0" % S_RT)
        a("s_cselect_b32 s52, 0x40000000, s52")
        a("s_cmp_eq_u32 s%d, 15" % S_RT)
        a("s_cselect_b32 s57, 0x40000000, s57")
        a("s_cmp_lg_u32 s%d, 4" % S_WV)
        a("s_cbranch_scc1 L_u2c")
        self.flag_poll(23)
        a("s_branch L_nopoll")
        a.label("L_u2c")
        a("s_cmp_lg_u32 s%d, 0" % S_PHASE)
        a("s_cbranch_scc1 L_nopoll")
        a("s_mov_b32 s38, 0")
        a.label("L_pu2")
        self.w_pack_part(WS_W2, 36, 37, L_W2, 96, 38, defer=True)
        a("s_cmp_lg_u32 s38, 0")
        a("s_cbranch_scc1 L_pu2d")
        a("s_mov_b32 s60, s39")
        for k in range(16):
            a("v_mov_b32 v%d, v%d" % (160 + k, 142 + k))
        a("s_mov_b32 s38, 1")
        a("s_branch L_pu2")
        a.label("L_pu2d")
        a("s_mov_b32 s61, s39")
        a.label("L_nopoll")
        a("s_barrier")

        SPREAD = cfg.get("spread", 1)
        if SPREAD:
            RAW, TMP, OUT, NO, NS = 24, 176, 120, 4, 4
        else:
            NO, NS = 8, 2

        def rawrow(st, r):
            d = RAW + 24 * st + 4 * r
            a("buffer_load_dwordx4 v[%d:%d], v3, s[16:19], s%d offen sc1" % (d, d + 3, 52 + r))

        def rawload(st):
            for r in range(6):
                rawrow(st, r)
            a("v_add_u32 v3, 0x40000, v3")

        COMB = [(0, 2, -1), (1, 2, 1), (2, 1, -1), (1, 3, -1)]
        lpos = cfg.get("lpos", (0, 1, 2, 4, 5, 6))

        def produce(j):
            st, buf = j % NS, j
            a("s_waitcnt vmcnt(6)")
            for rp in range(2):
                for xi in range(4):
                    n = rp * 4 + xi
                    ra, rb, sg = COMB[xi]
                    ra, rb = RAW + 24 * st + 4 * (ra + 2 * rp), RAW + 24 * st + 4 * (rb + 2 * rp)
                    o = OUT + 4 * (n % NO)
                    t = TMP + 8 * (xi % 2)
                    for d in range(4):
                        for h in range(2):
                            a("v_fma_mix_f32 v%d, v%d, 1.0, %sv%d op_sel:[%d,0,%d] op_sel_hi:[1,0,1]" %
                              (t + 2 * d + h, ra + d, "-" if sg < 0 else "", rb + d, h, h))
                        if SPREAD and d == 1 and n in lpos:
                            rawrow((j + 2) % NS, lpos.index(n))
                    for d in range(4):
                        a("v_cvt_pk_bf16_f32 v%d, v%d, v%d" % (o + d, t + 2 * d, t + 2 * d + 1))
                    a("ds_write_b128 v%d, v[%d:%d] offset:%d" %
                      (4 if xi < 2 else 5, o, o + 3, (xi & 1) * RS + buf * VB + rp * XPITCH))
                    if cfg.get("pgap"):
                        a("s_nop %d" % cfg["pgap"])
            if SPREAD:
                a("v_add_u32 v3, 0x40000, v3")
            else:
                rawload(st)
            a("s_waitcnt lgkmcnt(0)")

        for st in range(2):
            rawload(st)
        a("s_mov_b32 s58, 0")
        if cfg.get("palign"):
            a.raw(".p2align 6")
        a.label("L_ploop")
        for j in range(4):
            if cfg.get("stamp") == 4 and j < 2:
                self.stamp(False)
            produce(j)
            if cfg.get("stamp") == 4 and j < 2:
                self.stamp(False)
            a("s_barrier")
        a("s_add_u32 s58, s58, 1")
        a("s_cmp_lt_u32 s58, 4")
        a("s_cbranch_scc1 L_ploop")
        a("s_waitcnt vmcnt(0)")
        a("s_cmp_eq_u32 s%d, 0" % S_PHASE)
        a("s_cbranch_scc1 L_pph0")
        a("s_lshl_b32 s3, s%d, 12" % S_WV)
        a("s_add_u32 s3, s3, %d" % (L_W2 - 4 * 4096))
        a("v_add_u32 v10, s3, v6")
        for k in range(4):
            a("ds_write_b128 v10, v[%d:%d] offset:%d" % (224 + 4 * k, 227 + 4 * k, k * 1024))
        a("s_waitcnt lgkmcnt(0)")
        a("s_branch L_pextra_done")
        a.label("L_pph0")
        a("s_cmp_eq_u32 s%d, 4" % S_WV)
        a("s_cbranch_scc1 L_pemb")
        a("s_mov_b32 s39, s60")
        self.w_pack_store(WS_W2, 160 - 46)
        a("s_mov_b32 s39, s61")
        self.w_pack_store(WS_W2, 96)
        a("s_branch L_pextra_done")
        a.label("L_pemb")
        srd(a, 12, P_WS, WS_EMB, 65536)
        a("s_lshl_b32 s3, s%d, 11" % S_B)
        a("s_lshl_b32 s4, s%d, 8" % S_OCT)
        a("s_add_u32 s3, s3, s4")
        a("v_lshlrev_b32 v10, 2, v2")
        for er in range(16):
            a("buffer_load_dword v%d, v10, s[12:15], s3 offen sc1" % (24 + er))
            if er < 15:
                a("s_add_u32 s3, s3, 4096")
        a("s_waitcnt vmcnt(0)")
        for k in range(8):
            a("v_add_f32 v%d, v%d, v%d" % (24 + k, 24 + k, 32 + k))
        for k in range(4):
            a("v_add_f32 v%d, v%d, v%d" % (24 + k, 24 + k, 28 + k))
        a("v_add_f32 v24, v24, v26")
        a("v_add_f32 v25, v25, v27")
        a("v_add_f32 v24, v24, v25")
        a("v_add_u32 v10, %d, v10" % L_EMB)
        a("ds_write_b32 v10, v24")
        a("s_waitcnt lgkmcnt(0)")
        a.label("L_pextra_done")
        self.epi_loads(warm=True)

        a.label("L_epi")
        a("s_barrier")
        self.stamp()
        M, Y = 112, 176
        a("s_cmp_lg_u32 s%d, 0" % S_PHASE)
        a("s_cbranch_scc1 L_epi2")
        a("s_and_b32 s59, s%d, 1" % S_WV)
        a("s_lshr_b32 s3, s%d, 1" % S_WV)
        a("s_lshl_b32 s4, s59, 4")
        a("s_lshl_b32 s3, s3, 1")
        a("s_add_u32 s4, s4, s3")
        a("s_mul_i32 s4, s4, %d" % FS)
        a("v_add_u32 v10, s4, v6")
        a("v_add_u32 v11, %d, v10" % (2 * RS))
        a("v_mov_b32 v12, 0")
        a("ds_read_b32 v16, v12")
        a("ds_read_b32 v17, v12 offset:%d" % RS)
        a("v_mov_b32 v12, %d" % (2 * RS))
        a("ds_read_b32 v18, v12")
        a("s_lshl_b32 s3, s59, 7")
        a("s_add_u32 s3, s3, %d" % L_EMB)
        a("v_lshl_add_u32 v12, v9, 5, s3")
        a("ds_read_b128 v[48:51], v12")
        a("ds_read_b128 v[52:55], v12 offset:16")
        for u in range(2):
            for xi in range(4):
                for h in range(2):
                    r = M + 4 * ((u * 4 + xi) * 2 + h)
                    a("ds_read_b128 v[%d:%d], v%d offset:%d" %
                      (r, r + 3, 10 if xi < 2 else 11, (xi & 1) * RS + (h * 8 + u) * FS))
        a("s_waitcnt lgkmcnt(8)")
        a("v_add_f32 v17, v17, v18")
        a("v_fma_f32 v20, v17, 0.5, v16")
        a("v_mul_f32 v20, s%d, v20" % S_ISA)
        for j in range(4):
            pk(a, "add", 48 + 2 * j, [48 + 2 * j, vbc(20)], neg=[0, 1])
        for u in range(2):
            if u == 1:
                a("s_waitcnt lgkmcnt(0)")
            for j in range(0, 8, 2):
                m = [M + 4 * ((u * 4 + xi) * 2 + j // 4) + j % 4 for xi in range(4)]
                ye, yo = Y + u * 16 + j, Y + u * 16 + 8 + j
                pk(a, "add", ye, [m[1], m[2]])
                pk(a, "add", yo, [m[1], m[2]], neg=[0, 1])
                pk(a, "fma", m[0], [m[0], sbc(S_ISA), 48 + j])
                pk(a, "fma", m[3], [m[3], sbc(S_ISA), 48 + j], neg=[1, 0, 0])
                pk(a, "fma", ye, [ye, sbc(S_HISA), m[0]])
                pk(a, "fma", yo, [yo, sbc(S_HISA), m[3]])
        self.local_stats([Y + 2 * i for i in range(16)], "v[20:21]")
        a("s_waitcnt vmcnt(0)")
        a("s_barrier")
        a("s_cmp_lg_u32 s%d, 0" % S_WV)
        a("s_cbranch_scc1 L_edone")
        a.label("L_e0")
        self.granule_slot(SY_GC)
        self.group_sync("v20", 50, 51, both=True)
        a.label("L_edone")
        srd(a, 8, P_WS, WS_A2, IMG_BYTES)
        a("s_lshl_b32 s56, s%d, 4" % S_B)
        a("s_lshl_b32 s57, s%d, 1" % S_OCT)
        a("s_add_u32 s56, s56, s57")
        a("s_add_u32 s56, s56, s59")
        a("s_lshl_b32 s56, s56, 18")
        a("s_lshl_b32 s57, s%d, 14" % S_RT)
        a("s_add_u32 s56, s56, s57")
        a("s_lshr_b32 s57, s%d, 2" % S_WV)
        a("s_lshl_b32 s57, s57, 13")
        a("s_add_u32 s56, s56, s57")
        a("s_bfe_u32 s57, s%d, 0x10001" % S_WV)
        a("s_lshl_b32 s57, s57, 11")
        a("s_add_u32 s56, s56, s57")
        a("s_add_u32 s57, s56, 4096")
        a("v_bfe_u32 v11, v8, 2, 1")
        a("v_lshlrev_b32 v11, 1, v11")
        a("v_xor_b32 v11, v11, v9")
        a("v_lshlrev_b32 v11, 4, v11")
        a("v_lshl_add_u32 v11, v8, 6, v11")
        self.flag_list(SY_FD, False)
        a("v_mov_b32 v12, %d" % L_BC)
        a("s_barrier")
        a("ds_read_b64 v[16:17], v12")
        a("s_mov_b32 s%d, s%d" % (S_ISA, S_ISA2))
        a("s_mov_b32 s%d, 1" % S_PHASE)
        self.norm_coeffs(EXT + 8, EXT + 12, 24, 32)
        for u in range(2):
            prs = [Y + u * 16 + 2 * j for j in range(8)]
            tm = [40 + 2 * j for j in range(8)]
            for j in range(8):
                pk(a, "fma", prs[j], [prs[j], 24 + 2 * (j % 4), 32 + 2 * (j % 4)])
            silu_pk(a, prs, tm)
            for e in range(2):
                o = 56 + 4 * (u * 2 + e)
                for k in range(4):
                    a("v_cvt_pk_f16_f32 v%d, v%d, v%d" % (o + k, prs[e * 4 + k], prs[e * 4 + k] + 1))
                a("buffer_store_dwordx4 v[%d:%d], v11, s[8:11], s%d offen offset:%d sc1" % (o, o + 3, 56 + e, u * 1024))
        a("s_branch L_conv")

        a.label("L_epi2")
        a("s_cmp_ge_u32 s%d, 4" % S_WV)
        a("s_cbranch_scc1 L_haveres")
        a("s_lshl_b32 s3, s%d, 12" % S_WV)
        a("s_add_u32 s3, s3, %d" % L_W2)
        a("v_add_u32 v10, s3, v6")
        for k in range(4):
            a("ds_read_b128 v[%d:%d], v10 offset:%d" % (208 + 4 * k, 211 + 4 * k, k * 1024))
        a.label("L_haveres")
        a("s_lshl_b32 s3, s%d, 2" % S_WV)
        a("s_mul_i32 s3, s3, %d" % FS)
        a("v_add_u32 v10, s3, v6")
        a("v_add_u32 v11, %d, v10" % (2 * RS))
        for k in range(4):
            for xi in range(4):
                r = M + 4 * (k * 4 + xi)
                a("ds_read_b128 v[%d:%d], v%d offset:%d" % (r, r + 3, 10 if xi < 2 else 11, (xi & 1) * RS + k * FS))
        a("s_waitcnt lgkmcnt(15)")
        for j in range(4):
            for e in range(2):
                for d in range(2):
                    unpack(a, 48 + ((2 * d) * 2 + e) * 4 + j, 48 + ((2 * d + 1) * 2 + e) * 4 + j, 208 + (j * 2 + e) * 2 + d)
        for k in range(4):
            a("s_waitcnt lgkmcnt(%d)" % (12 - 4 * k))
            for j in range(0, 4, 2):
                m = [M + 4 * (k * 4 + xi) + j for xi in range(4)]
                ye, yo = Y + (k * 2) * 4 + j, Y + (k * 2 + 1) * 4 + j
                xe, xo = 48 + (k * 2) * 4 + j, 48 + (k * 2 + 1) * 4 + j
                pk(a, "add", ye, [m[1], m[2]])
                pk(a, "add", yo, [m[1], m[2]], neg=[0, 1])
                pk(a, "fma", m[0], [m[0], sbc(S_ISA), xe])
                pk(a, "fma", m[3], [m[3], sbc(S_ISA), xo], neg=[1, 0, 0])
                pk(a, "fma", ye, [ye, sbc(S_HISA), m[0]])
                pk(a, "fma", yo, [yo, sbc(S_HISA), m[3]])
        srd(a, 8, P_OUT, 0, IMG_BYTES)
        if cfg.get("trip"):
            if cfg.get("tripat") != "b0":
                a("s_memrealtime s[96:97]")
                a("s_waitcnt lgkmcnt(0)")
                a("s_sub_u32 s100, s96, s99")
            a("s_cmp_gt_u32 s100, %d" % int(cfg["trip"] * 100))
            a("s_cselect_b32 s96, 1.0, 0")
            a("s_cmp_eq_u32 s101, 0x13572468")
            a("s_cselect_b32 s96, 0, s96")
            srd(a, 12, P_WS, 0x3f00000, 64)
            a("v_mov_b32 v14, 0")
            a("v_mov_b32 v12, 0x13572468")
            a("buffer_store_dword v12, v14, s[12:15], 0 offen")
            a("v_add_f32 v%d, s96, v%d" % (Y, Y))
        for j in range(4):
            for e in range(2):
                o = 16 + 2 * (j * 2 + e)
                for d in range(2):
                    a("v_cvt_pk_bf16_f32 v%d, v%d, v%d" % (o + d, Y + ((2 * d) * 2 + e) * 4 + j, Y + ((2 * d + 1) * 2 + e) * 4 + j))
                a("buffer_store_dwordx2 v[%d:%d], v13, s[8:11], s%d offen offset:%d%s" % (o, o + 1, 60 + j, e * 128, cfg.get("of", " nt")))
        if cfg.get("stamp"):
            a("s_waitcnt vmcnt(0)")
        self.stamp()
        self.stamp_flush()
        a.label("L_end")
        a("s_endpgm")
        a.label("L_codeend")
        return name

    def epi_loads(self, warm=False):
        a = self.a
        EXT = 96
        l1, l2 = a.nl("el"), a.nl("eld")
        a("s_cmp_lg_u32 s%d, 0" % S_PHASE)
        a("s_cbranch_scc1 %s" % l1)
        srd(a, 24, P_G2, 0, 1024)
        srd(a, 28, P_BE2, 0, 1024)
        a("s_and_b32 s4, s%d, 1" % S_WV)
        a("s_lshl_b32 s4, s4, 6")
        a("s_lshl_b32 s3, s%d, 7" % S_OCT)
        a("s_add_u32 s3, s3, s4")
        a("v_lshlrev_b32 v13, 4, v9")
        a("buffer_load_dwordx4 v[%d:%d], v13, s[24:27], s3 offen" % (EXT + 8, EXT + 11))
        a("buffer_load_dwordx4 v[%d:%d], v13, s[28:31], s3 offen" % (EXT + 12, EXT + 15))
        a("s_branch %s" % l2)
        a.label(l1)
        a("s_lshl_b32 s3, s%d, 22" % S_B)
        a("s_lshl_b32 s4, s%d, 19" % S_OCT)
        a("s_add_u32 s3, s3, s4")
        a("s_lshr_b32 s4, s%d, 2" % S_WV)
        a("s_lshl_b32 s4, s4, 18")
        a("s_add_u32 s3, s3, s4")
        a("s_bfe_u32 s4, s%d, 0x10001" % S_WV)
        a("s_lshl_b32 s4, s4, 15")
        a("s_add_u32 s3, s3, s4")
        a("s_lshl_b32 s4, s%d, 9" % S_RT)
        a("s_add_u32 s3, s3, s4")
        a("s_and_b32 s4, s%d, 1" % S_WV)
        a("s_lshl_b32 s4, s4, 8")
        a("s_add_u32 s60, s3, s4")
        a("s_add_u32 s61, s60, 8192")
        a("s_add_u32 s62, s60, 16384")
        a("s_add_u32 s63, s60, 24576")
        a("v_lshlrev_b32 v13, 16, v9")
        a("v_lshl_add_u32 v13, v8, 3, v13")
        a.label(l2)


def build(cfg):
    ref = open("standalone__adm_resblock__diffusion.s.ref").read()
    head = []
    for l in ref.splitlines():
        if "@launch" in l:
            break
        head.append(l)
    g = Gen(cfg)
    name = g.build()
    out = list(head)
    if cfg.get("aslist"):
        out.append("; @launch kernel=%s grid=(256,1,1) block=(512,1,1) lds=%d" % (name, LDS_BYTES))
    else:
        out.append("; @launch grid=(256,1,1) block=(512,1,1) lds=%d" % LDS_BYTES)
    out.append('.amdgcn_target "amdgcn-amd-amdhsa--gfx950"')
    out.append(".text")
    out.append("""; One persistent launch, 256 workgroups (one per CU) x 8 waves; tile = 64 out-channels x 4 rows x 64 px.
;          streamed to registers; accumulators meet in LDS for the output transform. Same code runs both convs.
;   readers poll with sc1 loads and read the data with sc1 loads. All spins are bounded.""")
    s = "\n".join(out) + "\n" + g.a.text()
    s += """.section .rodata,"a"
.p2align 6
.amdhsa_kernel %s
  .amdhsa_next_free_vgpr 256
  .amdhsa_next_free_sgpr 102
  .amdhsa_accum_offset 256
  .amdhsa_group_segment_fixed_size 0
  .amdhsa_kernarg_size 96
  .amdhsa_user_sgpr_count 2
  .amdhsa_user_sgpr_kernarg_segment_ptr 1
  .amdhsa_system_sgpr_workgroup_id_x 1
  .amdhsa_float_denorm_mode_32 3
  .amdhsa_float_denorm_mode_16_64 3
.end_amdhsa_kernel
""" % name
    return s


if __name__ == "__main__":
    cfg = {}
    outp = "standalone__adm_resblock__diffusion.s"
    for arg in sys.argv[1:]:
        k, v = arg.split("=", 1)
        if k == "out":
            outp = v
        else:
            cfg[k] = eval(v)
    open(outp, "w").write(build(cfg))
    print("wrote", outp)
```

```python
import struct
import sys

WS_A1 = 0x0000000
WS_A2 = 0x0800000
WS_W1 = 0x1000000
WS_W2 = 0x1800000
WS_SYNC = 0x2000000
WS_EMB = 0x2040000
WS_DBG = 0x3000000
IMG_BYTES = 8 << 20
W_BYTES = 512 * 4608 * 2
UP_BYTES = 32 * 48 * 4096
SY_GA, SY_FB, SY_GC, SY_FD, SY_FW = 0, 0x8000, 0x10000, 0x18000, 0x20000

XPITCH = 4160
POFF = [0, 2112, 3136, 1088]
VB = 2 * XPITCH
RS = 4 * VB
FS = 1040
L_STAT = 4 * RS
L_BC = L_STAT + 256
L_WF = L_BC + 32
L_EMB = L_BC + 64
L_W1 = 0
L_XS = 20480
L_W2 = L_EMB + 256
LDS_BYTES = L_W2 + 2 * 9216

LOG2E = 1.4426950408889634

P_X, P_TEMB, P_G1, P_BE1, P_W1, P_WEMB, P_G2, P_BE2, P_W2, P_OUT, P_DBG, P_WS = [64 + 2 * i for i in range(12)]
S_OCT, S_B, S_RT, S_WV, S_PT = 40, 41, 42, 43, 44
S_TAG, S_PHASE, S_ISA, S_HISA, S_ISA2, S_NL2E, S_ISAO = 88, 89, 90, 91, 92, 93, 94
S_ST = 96
SRD_SY = 20


def f2u(f):
    return struct.unpack("<I", struct.pack("<f", f))[0]


def fx(f):
    return "0x%08x" % f2u(f)


class Asm:
    def __init__(self):
        self.lines = []
        self.uid = 0

    def __call__(self, s):
        for l in s.strip("\n").split("\n"):
            self.lines.append("    " + l.strip())

    def label(self, l):
        self.lines.append(l + ":")

    def raw(self, s):
        self.lines.append(s)

    def nl(self, base):
        self.uid += 1
        return "L_%s_%d" % (base, self.uid)

    def text(self):
        return "\n".join(self.lines) + "\n"


def srd(a, d, ptr, off, nbytes):
    if off:
        a("s_add_u32 s%d, s%d, 0x%x" % (d, ptr, off))
        a("s_addc_u32 s%d, s%d, 0" % (d + 1, ptr + 1))
    else:
        a("s_mov_b32 s%d, s%d" % (d, ptr))
        a("s_mov_b32 s%d, s%d" % (d + 1, ptr + 1))
    a("s_mov_b32 s%d, 0x%x" % (d + 2, nbytes))
    a("s_mov_b32 s%d, 0x20000" % (d + 3))


DPP_STEPS = [
    "quad_perm:[1,0,3,2] row_mask:0xf bank_mask:0xf",
    "quad_perm:[2,3,0,1] row_mask:0xf bank_mask:0xf",
    "row_half_mirror row_mask:0xf bank_mask:0xf",
    "row_mirror row_mask:0xf bank_mask:0xf",
    "row_bcast:15 row_mask:0xa bank_mask:0xf",
    "row_bcast:31 row_mask:0xc bank_mask:0xf",
]


def dpp_reduce(a, regs, nsteps, op="v_add_f32_dpp"):
    n = len(regs)
    a("s_nop 1")
    for st in DPP_STEPS[:nsteps]:
        for r in regs:
            a("%s v%d, v%d, v%d %s" % (op, r, r, r, st))
        if n == 1:
            a("s_nop 1")
        elif n == 2:
            a("s_nop 0")


def unpack(a, dst_lo, dst_hi, src):
    a("v_lshlrev_b32 v%d, 16, v%d" % (dst_lo, src))
    a("v_and_b32 v%d, 0xffff0000, v%d" % (dst_hi, src))


def silu_group(a, vals, tmps, s_isa=None):
    for v, t in zip(vals, tmps):
        a("v_mul_f32 v%d, s%d, v%d" % (t, S_NL2E, v))
    for v, t in zip(vals, tmps):
        a("v_exp_f32 v%d, v%d" % (t, t))
    for v, t in zip(vals, tmps):
        if s_isa is None:
            a("v_add_f32 v%d, 1.0, v%d" % (t, t))
        else:
            a("v_fma_f32 v%d, v%d, s%d, s%d" % (t, t, s_isa, s_isa))
    for v, t in zip(vals, tmps):
        a("v_rcp_f32 v%d, v%d" % (t, t))
    for v, t in zip(vals, tmps):
        a("v_mul_f32 v%d, v%d, v%d" % (v, v, t))


def pr(r):
    assert r % 2 == 0, r
    return "v[%d:%d]" % (r, r + 1)


def sbc(sreg):
    e = sreg & ~1
    return "s[%d:%d]" % (e, e + 1), sreg & 1


def vbc(vreg):
    e = vreg & ~1
    return "v[%d:%d]" % (e, e + 1), vreg & 1


def pk(a, op, dst, srcs, neg=None):
    txt, lo, hi = [], [], []
    for x in srcs:
        if isinstance(x, tuple):
            txt.append(x[0]); lo.append(x[1]); hi.append(x[1])
        else:
            txt.append(pr(x)); lo.append(0); hi.append(1)
    m = ""
    if any(lo):
        m += " op_sel:[%s]" % ",".join(map(str, lo))
    if not all(hi):
        m += " op_sel_hi:[%s]" % ",".join(map(str, hi))
    if neg and any(neg):
        n = ",".join(map(str, neg))
        m += " neg_lo:[%s] neg_hi:[%s]" % (n, n)
    a("v_pk_%s_f32 %s, %s%s" % (op, pr(dst), ", ".join(txt), m))


def silu_pk(a, pairs, tmps):
    for v, t in zip(pairs, tmps):
        pk(a, "mul", t, [v, sbc(S_NL2E)])
    for v, t in zip(pairs, tmps):
        a("v_exp_f32 v%d, v%d" % (t, t))
        a("v_exp_f32 v%d, v%d" % (t + 1, t + 1))
    for v, t in zip(pairs, tmps):
        pk(a, "fma", t, [t, sbc(S_ISA), sbc(S_ISA)])
    for v, t in zip(pairs, tmps):
        a("v_rcp_f32 v%d, v%d" % (t, t))
        a("v_rcp_f32 v%d, v%d" % (t + 1, t + 1))
    for v, t in zip(pairs, tmps):
        pk(a, "mul", v, [v, t])


class Gen:
    def __init__(self, cfg):
        self.cfg = cfg
        self.a = Asm()

    def stamp(self, real=True):
        if not self.cfg.get("stamp"):
            return
        a = self.a
        a("%s s[96:97]" % ("s_memrealtime" if real else "s_memtime"))
        a("s_waitcnt lgkmcnt(0)")
        a("s_mov_b32 m0, s98")
        a("s_nop 0")
        a("v_writelane_b32 v15, s96, m0")
        a("s_add_u32 s98, s98, 1")

    def stamp_flush(self):
        if not self.cfg.get("stamp"):
            return
        a = self.a
        a("s_mov_b64 exec, -1")
        srd(a, 8, P_WS, WS_DBG, 0x100000)
        a("s_lshl_b32 s3, s2, 11")
        a("s_lshl_b32 s4, s%d, 8" % S_WV)
        a("s_add_u32 s3, s3, s4")
        a("v_lshlrev_b32 v1, 2, v2")
        a("buffer_store_dword v15, v1, s[8:11], s3 offen")
        if self.cfg.get("stamp") == 2:
            l = a.nl("sd")
            a("s_cmp_lg_u32 s2, 5")
            a("s_cbranch_scc1 %s" % l)
            a("s_cmp_lg_u32 s%d, 0" % S_WV)
            a("s_cbranch_scc1 %s" % l)
            srd(a, 8, P_DBG, 0, 64)
            a("v_readlane_b32 s3, v15, 0")
            a("s_nop 3")
            a("v_subrev_u32 v15, s3, v15")
            a("buffer_store_dword v15, v1, s[8:11], 0 offen offset:4")
            a.label(l)

    def local_stats(self, vals, cpair):
        a = self.a
        for i, src in enumerate(vals):
            acc = 24 + 4 * (i % 2)
            if i < 2:
                pk(a, "add", acc, [src, vals[i + 2]])
                pk(a, "mul", acc + 2, [src, src])
            else:
                if i >= 4:
                    pk(a, "add", acc, [acc, src])
                pk(a, "fma", acc + 2, [src, src, acc + 2])
        a("v_pk_add_f32 v[24:25], v[24:25], v[28:29]")
        a("v_pk_add_f32 v[26:27], v[26:27], v[30:31]")
        a("v_add_f32 v24, v24, v25")
        a("v_add_f32 v25, v26, v27")
        dpp_reduce(a, [24, 25], 4)
        a("s_lshl_b32 s3, s%d, 5" % S_WV)
        a("s_add_u32 s3, s3, %d" % L_STAT)
        a("v_lshl_add_u32 v12, v9, 3, s3")
        a("ds_write_b64 v12, v[24:25]")
        a("s_waitcnt lgkmcnt(0)")

    def group_sync(self, csrc, s_own, s_grp, both=False, filler=None):
        a = self.a
        a("v_lshlrev_b32 v12, 4, v8")
        a("v_add_u32 v12, %d, v12" % L_STAT)
        a("ds_read_b128 v[24:27], v12")
        a("v_and_b32 v13, 31, v2")
        a("v_lshlrev_b32 v13, 7, v13")
        if both:
            a("s_xor_b32 s7, s%d, 0x4000" % s_grp)
            a("s_sub_u32 s7, s7, s%d" % s_grp)
            a("v_lshrrev_b32 v14, 5, v2")
            a("v_mul_lo_u32 v14, v14, s7")
            a("v_add_u32 v13, v13, v14")
            a("v_add_u32 v13, s%d, v13" % s_grp)
        a("v_mov_b32 v29, s%d" % S_TAG)
        a("v_mov_b32 v31, s%d" % S_TAG)
        a("v_mov_b32 v14, 0")
        a("s_waitcnt lgkmcnt(0)")
        a("v_add_f32 v24, v24, v26")
        a("v_add_f32 v25, v25, v27")
        dpp_reduce(a, [24, 25], 4)
        a("v_mul_f32 v26, %s, v24" % fx(1.0 / 16384))
        a("v_add_f32 v28, %s, v26" % csrc)
        a("v_fma_f32 v30, -v24, v26, v25")
        a("v_max_f32 v30, 0, v30")
        a("s_mov_b64 exec, 1")
        a("buffer_store_dwordx4 v[28:31], v14, s[%d:%d], s%d offen sc1" % (SRD_SY, SRD_SY + 3, s_own))
        a("s_mov_b64 exec, -1")
        self.stamp()
        if filler:
            filler()
        if self.cfg.get("presleep", 8):
            a("s_sleep %d" % self.cfg.get("presleep", 8))
        a("s_mov_b32 s5, 0")
        lp, ld = a.nl("poll"), a.nl("polld")
        a.label(lp)
        a("buffer_load_dwordx4 v[32:35], v13, s[%d:%d], %s offen sc1" % (SRD_SY, SRD_SY + 3, "0" if both else "s%d" % s_grp))
        a("s_waitcnt vmcnt(0)")
        a("v_cmp_ne_u32 vcc, s%d, v33" % S_TAG)
        a("v_cmp_ne_u32 s[6:7], s%d, v35" % S_TAG)
        a("s_or_b64 vcc, vcc, s[6:7]")
        a("s_cbranch_scc0 %s" % ld)
        a("s_add_u32 s5, s5, 1")
        a("s_cmp_lt_u32 s5, 0x80000")
        a("s_cbranch_scc0 %s" % ld)
        a("s_sleep 1")
        a("s_branch %s" % lp)
        a.label(ld)
        self.stamp()
        a("v_readfirstlane_b32 s6, v32")
        a("s_nop 1")
        a("v_subrev_f32 v36, s6, v32")
        a("v_mul_f32 v37, v36, v36")
        dpp_reduce(a, [36, 37, 34], 5)
        a("v_mul_f32 v41, %s, v36" % fx(1.0 / 32))
        a("v_fma_f32 v42, -v36, v41, v37")
        a("v_max_f32 v42, 0, v42")
        a("v_fmac_f32 v34, %s, v42" % fx(16384.0))
        a("v_mov_b32 v43, %s" % fx(1e-5))
        a("v_fmac_f32 v43, %s, v34" % fx(1.0 / 524288))
        a("v_add_f32 v42, s6, v41")
        a("v_rsq_f32 v43, v43")
        a("v_mov_b32 v12, %d" % L_BC)
        a("s_mov_b32 exec_lo, 0x80000000")
        a("s_mov_b32 exec_hi, 0")
        a("ds_write_b64 v12, v[42:43]")
        a("s_mov_b64 exec, -1")
        a("s_waitcnt lgkmcnt(0)")

    def granule_slot(self, area):
        a = self.a
        a("s_lshl_b32 s51, s%d, 2" % S_B)
        a("s_lshr_b32 s3, s%d, 1" % S_OCT)
        a("s_add_u32 s51, s51, s3")
        a("s_lshl_b32 s51, s51, 12")
        a("s_add_u32 s51, s51, %d" % area)
        a("s_and_b32 s50, s%d, 1" % S_OCT)
        a("s_lshl_b32 s50, s50, 4")
        a("s_add_u32 s50, s50, s%d" % S_RT)
        a("s_lshl_b32 s50, s50, 7")
        a("s_add_u32 s50, s50, s51")

    def flag_list(self, area, with_u):
        a = self.a
        a("v_lshrrev_b32 v12, 3, v2")
        a("v_min_u32 v12, 2, v12")
        a("v_add_u32 v12, s%d, v12" % S_RT)
        a("v_max_u32 v12, 1, v12")
        a("v_min_u32 v12, 16, v12")
        a("s_lshl_b32 s3, s%d, 4" % S_B)
        a("s_sub_u32 s3, s3, 1")
        a("v_add_u32 v12, s3, v12")
        a("v_and_b32 v13, 7, v2")
        a("v_lshl_add_u32 v12, v12, 3, v13")
        if with_u:
            a("v_subrev_u32 v13, 32, v2")
            a("v_lshlrev_b32 v13, 3, v13")
            a("v_add_u32 v13, s%d, v13" % S_OCT)
            a("v_cmp_gt_u32 vcc, 32, v2")
        a("s_lshl_b32 s50, s%d, 3" % S_PT)
        a("s_add_u32 s50, s50, s%d" % S_OCT)
        if with_u:
            a("v_cndmask_b32 v12, v13, v12, vcc")
        a("v_lshlrev_b32 v12, 7, v12")
        a("v_add_u32 v23, %d, v12" % area)
        a("s_lshl_b32 s50, s50, 7")
        a("s_add_u32 s50, s50, %d" % area)

    def flag_store(self, s_own):
        a = self.a
        a("s_mov_b64 exec, 1")
        a("buffer_store_dword v22, v14, s[%d:%d], s%d offen sc1" % (SRD_SY, SRD_SY + 3, s_own))
        a("s_mov_b64 exec, -1")
        self.stamp()

    def flag_poll(self, v_list):
        a = self.a
        if self.cfg.get("presleep2", 6):
            a("s_sleep %d" % self.cfg.get("presleep2", 6))
        a("s_mov_b32 s5, 0")
        lp, ld = a.nl("poll"), a.nl("polld")
        a.label(lp)
        a("buffer_load_dword v25, v%d, s[%d:%d], 0 offen sc1" % (v_list, SRD_SY, SRD_SY + 3))
        a("s_waitcnt vmcnt(0)")
        a("v_cmp_ne_u32 vcc, s%d, v25" % S_TAG)
        a("s_cmp_eq_u64 vcc, 0")
        a("s_cbranch_scc1 %s" % ld)
        a("s_add_u32 s5, s5, 1")
        a("s_cmp_lt_u32 s5, 0x80000")
        a("s_cbranch_scc0 %s" % ld)
        a("s_sleep 1")
        a("s_branch %s" % lp)
        a.label(ld)
        self.stamp()

    def w_dma(self, ptr, s_ob, s_cc, s_lds):
        a = self.a
        srd(a, 12, ptr, 0, W_BYTES)
        a("v_lshlrev_b32 v10, 3, v9")
        a("v_bfe_u32 v11, v2, 2, 2")
        a("v_add_u32 v10, v10, v11")
        a("v_mul_u32_u24 v10, 9216, v10")
        a("v_and_b32 v11, 3, v2")
        a("v_lshl_add_u32 v10, v11, 4, v10")
        a("s_lshr_b32 s3, s%d, 1" % s_ob)
        a("s_lshl_b32 s3, s3, 5")
        a("s_and_b32 s4, s%d, 1" % s_ob)
        a("s_lshl_b32 s4, s4, 2")
        a("s_add_u32 s3, s3, s4")
        a("s_mul_i32 s3, s3, 9216")
        a("s_mul_i32 s4, s%d, 576" % s_cc)
        a("s_add_u32 s3, s3, s4")
        for i in range(9):
            a("s_add_u32 m0, s%d, %d" % (s_lds, i * 960))
            a("s_nop 0")
            a("buffer_load_dwordx4 v10, s[12:15], s3 offen offset:%d%s lds" % (i * 64, self.cfg.get("wf", " nt")))

    def w_pack_part(self, ws_off, s_ob, s_cp, lds_base, R, s_u=None, defer=False):
        a = self.a
        T = R + 36
        O = T + 10
        if s_u is None:
            a("s_lshr_b32 s5, s%d, 2" % S_WV)
        else:
            a("s_mov_b32 s5, s%d" % s_u)
        a("s_mul_i32 s3, s5, 9216")
        a("s_add_u32 s3, s3, %d" % lds_base)
        a("v_mul_u32_u24 v%d, 9, v9" % T)
        a("v_lshl_add_u32 v%d, v8, 6, s3" % (T + 1))
        for i in range(4):
            a("v_add_u32 v%d, %d, v%d" % (T + 2, i, T))
            a("v_lshrrev_b32 v%d, 2, v%d" % (T + 3, T + 2))
            a("v_and_b32 v%d, 3, v%d" % (T + 2, T + 2))
            a("v_lshl_add_u32 v%d, v%d, 10, v%d" % (T + 3, T + 3, T + 1))
            a("v_lshl_add_u32 v%d, v%d, 4, v%d" % (10 + i, T + 2, T + 3))
        for i in range(9):
            a("ds_read_b128 v[%d:%d], v%d offset:%d" % (R + 4 * i, R + 4 * i + 3, 10 + i % 4, (i // 4) * 1024))
        a("s_lshr_b32 s3, s%d, 2" % s_ob)
        a("s_mul_i32 s3, s3, %d" % (4 * 48 * 4096))
        a("s_lshl_b32 s4, s%d, 1" % s_cp)
        a("s_add_u32 s4, s4, s5")
        a("s_lshl_b32 s4, s4, 2")
        a("s_and_b32 s5, s%d, 3" % s_ob)
        a("s_add_u32 s4, s4, s5")
        a("s_mul_i32 s4, s4, 3")
        a("s_and_b32 s5, s%d, 3" % S_WV)
        a("s_add_u32 s4, s4, s5")
        a("s_sub_u32 s4, s4, 1")
        a("s_lshl_b32 s4, s4, 10")
        a("s_add_u32 s39, s3, s4")
        a("s_mov_b32 s6, 0x07060100")
        a("s_mov_b32 s7, 0x05040302")
        ls = [a.nl("wp") for _ in range(4)]
        a("s_waitcnt lgkmcnt(0)")
        a("s_cmp_eq_u32 s5, 2")
        a("s_cbranch_scc1 %s" % ls[1])
        a("s_cmp_eq_u32 s5, 3")
        a("s_cbranch_scc1 %s" % ls[2])
        for dx in range(3):
            a.label(ls[dx])
            for xi, t in ((0, dx), (3, 6 + dx)):
                o = O + 4 * xi
                for k in range(4):
                    e0 = 2 * k * 9 + t
                    e1 = e0 + 9
                    sel = 6 if e0 % 2 == 0 else 7
                    a("v_perm_b32 v%d, v%d, v%d, s%d" % (o + k, R + e1 // 2, R + e0 // 2, sel))
            for k in range(4):
                for h in range(2):
                    j = 2 * k + h
                    for dy in range(3):
                        e = j * 9 + dy * 3 + dx
                        d = T + h * 3 + dy
                        if e % 2 == 0:
                            a("v_lshlrev_b32 v%d, 16, v%d" % (d, R + e // 2))
                        else:
                            a("v_and_b32 v%d, 0xffff0000, v%d" % (d, R + e // 2))
                for h in range(2):
                    a("v_add_f32 v%d, v%d, v%d" % (T + h * 3, T + h * 3, T + 2 + h * 3))
                for h in range(2):
                    a("v_add_f32 v%d, v%d, v%d" % (T + 6 + h, T + h * 3, T + 1 + h * 3))
                    a("v_sub_f32 v%d, v%d, v%d" % (T + 8 + h, T + h * 3, T + 1 + h * 3))
                a("v_cvt_pk_bf16_f32 v%d, v%d, v%d" % (O + 4 + k, T + 6, T + 7))
                a("v_cvt_pk_bf16_f32 v%d, v%d, v%d" % (O + 8 + k, T + 8, T + 9))
            if dx < 2:
                a("s_branch %s" % ls[3])
        a.label(ls[3])
        if not defer:
            self.w_pack_store(ws_off, R)

    def w_pack_store(self, ws_off, R):
        a = self.a
        O = R + 46
        srd(a, 12, P_WS, ws_off, UP_BYTES)
        for xi in range(4):
            a("buffer_store_dwordx4 v[%d:%d], v6, s[12:15], s39 offen sc1" % (O + 4 * xi, O + 4 * xi + 3))
            a("s_add_u32 s39, s39, %d" % (48 * 4096))
        a("s_nop 1")

    def norm_coeffs(self, G, BT, SC, SH):
        a = self.a
        for j in range(4):
            unpack(a, SC + 2 * j, SC + 2 * j + 1, G + j)
            unpack(a, SH + 2 * j, SH + 2 * j + 1, BT + j)
        a("s_waitcnt lgkmcnt(0)")
        a("v_sub_f32 v16, v16, v20")
        for j in range(4):
            pk(a, "mul", SC + 2 * j, [SC + 2 * j, vbc(17)])
        for j in range(4):
            pk(a, "fma", SH + 2 * j, [SC + 2 * j, vbc(16), SH + 2 * j], neg=[1, 0, 0])

    def build(self):
        a, cfg = self.a, self.cfg
        name = "standalone__adm_resblock__diffusion_kernel"
        a.raw(".globl %s" % name)
        a.raw(".p2align 8")
        a.raw(".type %s,@function" % name)
        a.label(name)
        a("s_cmp_ge_u32 s2, 256")
        a("s_cbranch_scc1 L_end")
        a("s_load_dwordx16 s[64:79], s[0:1], 0")
        a("s_load_dwordx8 s[80:87], s[0:1], 64")
        a("v_lshrrev_b32 v1, 6, v0")
        a("v_and_b32 v2, 63, v0")
        a("v_readfirstlane_b32 s%d, v1" % S_WV)
        a("v_lshlrev_b32 v6, 4, v2")
        a("v_and_b32 v8, 15, v2")
        a("v_lshrrev_b32 v9, 4, v2")
        a("v_mov_b32 v14, 0")
        if cfg.get("cpf", 1):
            a("s_getpc_b64 s[12:13]")
            a.label("L_pc")
            a("s_sub_u32 s12, s12, L_pc-%s" % name)
            a("s_subb_u32 s13, s13, 0")
            a("s_mov_b32 s14, L_codeend-%s" % name)
            a("s_mov_b32 s15, 0x20000")
            a("s_lshr_b32 s3, s2, 3")
            a("s_lshl_b32 s4, s%d, 4" % S_WV)
            a("s_add_u32 s3, s3, s4")
            a("s_and_b32 s3, s3, 31")
            a("s_lshl_b32 s3, s3, 10")
            a("s_cmp_lt_u32 s%d, 6" % S_WV)
            a("s_cbranch_scc1 L_nocpf")
            a("buffer_load_dwordx4 v[104:107], v6, s[12:15], s3 offen")
            a.label("L_nocpf")
        a("s_and_b32 s3, s2, 1")
        a("s_lshl_b32 s3, s3, 2")
        a("s_bfe_u32 s4, s2, 0x20003")
        a("s_add_u32 s%d, s3, s4" % S_OCT)
        a("s_bfe_u32 s3, s2, 0x20001")
        a("s_lshl_b32 s3, s3, 3")
        a("s_lshr_b32 s4, s2, 5")
        a("s_add_u32 s%d, s3, s4" % S_PT)
        a("s_lshr_b32 s%d, s%d, 4" % (S_B, S_PT))
        a("s_and_b32 s%d, s%d, 15" % (S_RT, S_PT))
        a("v_and_b32 v3, 3, v2")
        a("v_lshrrev_b32 v4, 2, v2")
        a("v_lshlrev_b32 v5, 16, v3")
        a("v_lshl_add_u32 v5, v4, 3, v5")
        a("s_lshl_b32 s47, s%d, 22" % S_B)
        a("s_lshl_b32 s3, s%d, 19" % S_OCT)
        a("s_add_u32 s47, s47, s3")
        a("s_lshl_b32 s3, s%d, 9" % S_RT)
        a("s_add_u32 s47, s47, s3")
        a("s_lshr_b32 s45, s%d, 2" % S_WV)
        a("s_and_b32 s46, s%d, 3" % S_WV)
        if cfg.get("stamp"):
            a("s_mov_b32 s98, 0")
            a("v_mov_b32 v15, 0")
        self.stamp()
        a("s_memrealtime s[4:5]")
        a("s_waitcnt lgkmcnt(0)")
        if cfg.get("trip"):
            a("s_mov_b32 s99, s4")
            a("s_mov_b32 s100, 0")
            a("s_add_u32 s6, s%d, 0x3f00000" % P_WS)
            a("s_addc_u32 s7, s%d, 0" % (P_WS + 1))
            a("s_load_dword s101, s[6:7], 0")
        a("s_lshl_b32 s3, s2, 3")
        a("s_add_u32 s3, s3, s%d" % S_WV)
        a("s_cmp_lg_u32 s3, 7")
        a("s_cbranch_scc1 L_nononce")
        srd(a, 32, P_DBG, 0, 256)
        a("s_or_b32 s4, s4, 1")
        a("v_mov_b32 v13, s4")
        a("s_mov_b64 exec, 1")
        a("buffer_store_dword v13, v14, s[32:35], 0 offen sc1")
        a("s_mov_b64 exec, -1")
        a.label("L_nononce")
        if cfg.get("tlb", 0):
            a("s_cmp_lg_u32 s%d, 5" % S_WV)
            a("s_cbranch_scc1 L_notlb")
            srd(a, 12, P_WS, 0, 0x2100000)
            srd(a, 16, P_OUT, 0, IMG_BYTES)
            a("v_lshlrev_b32 v10, %d, v2" % cfg.get("tlbs", 20))
            a("buffer_load_dword v104, v10, s[12:15], 0 offen")
            a("buffer_load_dword v105, v10, s[16:19], 0 offen")
            a.label("L_notlb")
        srd(a, 8, P_X, 0, IMG_BYTES)
        a("s_lshl_b32 s3, s45, 18")
        a("s_lshl_b32 s4, s46, 7")
        a("s_add_u32 s3, s3, s4")
        a("s_add_u32 s3, s3, s47")
        XR = 48
        for j in range(8):
            a("buffer_load_dwordx2 v[%d:%d], v5, s[8:11], s3 offen%s" % (XR + 2 * j, XR + 2 * j + 1, cfg.get("xf", " nt")))
            if j < 7:
                a("s_add_u32 s3, s3, 8192")
        a("s_add_u32 s6, s%d, s47" % P_X)
        a("s_addc_u32 s7, s%d, 0" % (P_X + 1))
        a("s_load_dword s48, s[6:7], 0")
        srd(a, 24, P_G1, 0, 1024)
        srd(a, 28, P_BE1, 0, 1024)
        a("s_lshl_b32 s3, s%d, 7" % S_OCT)
        a("s_lshl_b32 s4, s45, 6")
        a("s_add_u32 s3, s3, s4")
        a("v_lshlrev_b32 v10, 4, v3")
        a("buffer_load_dwordx4 v[64:67], v10, s[24:27], s3 offen")
        a("buffer_load_dwordx4 v[68:71], v10, s[28:31], s3 offen")
        srd(a, SRD_SY, P_WS, WS_SYNC, 0x28000)
        a("s_mov_b32 s%d, %s" % (S_NL2E, fx(-LOG2E)))
        a("s_mov_b32 s%d, 0" % S_PHASE)
        a("s_mov_b32 s%d, 0" % S_TAG)
        RR = 112
        if cfg.get("wflag", 1):
            a("v_mov_b32 v10, %d" % L_WF)
            a("v_mov_b32 v12, 0")
            a("v_mov_b32 v13, 0")
            a("ds_write_b64 v10, v[12:13]")
            a("s_waitcnt lgkmcnt(0)")
        a("s_barrier")
        a("s_lshl_b32 s36, s%d, 2" % S_OCT)
        a("s_lshr_b32 s3, s%d, 3" % S_PT)
        a("s_add_u32 s36, s36, s3")
        a("s_and_b32 s37, s%d, 7" % S_PT)
        a("s_cmp_eq_u32 s%d, 0" % S_WV)
        a("s_cbranch_scc1 L_r0")
        a("s_cmp_eq_u32 s%d, 1" % S_WV)
        a("s_cbranch_scc1 L_r1")
        a("s_cmp_lt_u32 s%d, 4" % S_WV)
        a("s_cbranch_scc1 L_rw")
        if cfg.get("w2p0", 2) == 2:
            a("s_cmp_gt_u32 s%d, 5" % S_WV)
            a("s_cbranch_scc1 L_rw2")
        a("s_cmp_lg_u32 s%d, 4" % S_WV)
        a("s_cbranch_scc1 L_rnone")
        a("s_bitcmp1_b32 s%d, 0" % S_PT)
        a("s_cbranch_scc1 L_rnone")
        a("s_lshr_b32 s49, s%d, 1" % S_PT)
        a("s_mul_i32 s3, s49, 48")
        a("v_lshrrev_b32 v10, 3, v2")
        a("v_mul_u32_u24 v10, 6, v10")
        a("v_add_u32 v10, s3, v10")
        a("v_lshlrev_b32 v11, 1, v10")
        a("v_lshlrev_b32 v10, 10, v10")
        a("v_and_b32 v12, 7, v2")
        a("v_lshl_add_u32 v10, v12, 4, v10")
        a("v_add_u32 v12, 4096, v10")
        a("s_lshl_b32 s3, s%d, 7" % S_OCT)
        srd(a, 12, P_TEMB, 0, 2 * 768 * 2)
        srd(a, 16, P_WEMB, 0, 768 * 512 * 2)
        a("buffer_load_dwordx3 v[%d:%d], v11, s[12:15], 0 offen" % (RR, RR + 2))
        a("buffer_load_dwordx3 v[%d:%d], v11, s[12:15], 0 offen offset:1536" % (RR + 4, RR + 6))
        for i in range(6):
            a("buffer_load_dwordx4 v[%d:%d], v%d, s[16:19], s3 offen offset:%d nt" %
              (RR + 8 + 4 * i, RR + 11 + 4 * i, 10 if i < 4 else 12, (i % 4) * 1024))
        a("s_waitcnt vmcnt(8)")
        a("s_branch L_rdone")
        a.label("L_rw")
        a("s_sub_u32 s51, s%d, 2" % S_WV)
        a("s_lshl_b32 s50, s37, 1")
        a("s_add_u32 s50, s50, s51")
        a("s_mul_i32 s51, s51, 9216")
        a("s_add_u32 s51, s51, %d" % L_W1)
        self.w_dma(P_W1, 36, 50, 51)
        a("s_waitcnt vmcnt(9)")
        a("s_branch L_rdone")
        if cfg.get("w2p0", 2) == 2:
            a.label("L_rw2")
            a("s_sub_u32 s51, s%d, 6" % S_WV)
            a("s_lshl_b32 s50, s37, 1")
            a("s_add_u32 s50, s50, s51")
            a("s_mul_i32 s51, s51, 9216")
            a("s_add_u32 s51, s51, %d" % L_W2)
            a("s_waitcnt vmcnt(%d)" % cfg.get("w2wait", 10))
            self.w_dma(P_W2, 36, 50, 51)
            a("s_waitcnt vmcnt(9)")
            a("s_branch L_rdone")
        a.label("L_r1")
        srd(a, 12, P_G2, 0, 1024)
        srd(a, 16, P_BE2, 0, 1024)
        a("buffer_load_dwordx4 v[%d:%d], v6, s[24:27], 0 offen" % (RR, RR + 3))
        a("buffer_load_dwordx4 v[%d:%d], v6, s[28:31], 0 offen" % (RR + 4, RR + 7))
        a("buffer_load_dwordx4 v[%d:%d], v6, s[12:15], 0 offen" % (RR + 8, RR + 11))
        a("buffer_load_dwordx4 v[%d:%d], v6, s[16:19], 0 offen" % (RR + 12, RR + 15))
        a("s_waitcnt vmcnt(4)")
        a("s_branch L_rdone")
        a.label("L_r0")
        srd(a, 32, P_DBG, 0, 256)
        a("s_waitcnt vmcnt(%d)" % cfg.get("nwait", 8))
        a("buffer_load_dword v%d, v14, s[32:35], 0 offen sc1" % RR)
        a("s_waitcnt vmcnt(1)")
        a("s_branch L_rdone")
        a.label("L_rnone")
        a("s_waitcnt vmcnt(0)")
        a.label("L_rdone")
        self.stamp()
        XF = 72

        def stash_write():
            a("s_mul_i32 s3, s45, %d" % (4 * 4224))
            a("s_lshl_b32 s4, s46, 7")
            a("s_add_u32 s3, s3, s4")
            a("s_add_u32 s3, s3, %d" % L_XS)
            a("v_mul_u32_u24 v10, 4224, v3")
            a("v_lshl_add_u32 v10, v4, 3, v10")
            a("v_add_u32 v10, s3, v10")
            for j in range(8):
                a("ds_write_b64 v10, v[%d:%d] offset:%d" % (XR + 2 * j, XR + 2 * j + 1, j * 512))

        for j in range(8):
            for d in range(2):
                unpack(a, XF + 4 * j + 2 * d, XF + 4 * j + 2 * d + 1, XR + 2 * j + d)
        a("s_waitcnt lgkmcnt(0)")
        a("s_lshl_b32 s48, s48, 16")
        a("s_mov_b32 s49, s48") if False else None
        a("v_mov_b32 v20, s48")
        for i in range(16):
            pk(a, "add", XF + 2 * i, [XF + 2 * i, sbc(48)], neg=[0, 1])
        self.local_stats([XF + 2 * i for i in range(16)], "v[20:21]")
        if not cfg.get("wflag", 1):
            a("s_and_b32 s3, s%d, 6" % S_WV)
            a("s_cmp_lg_u32 s3, 2")
            a("s_cbranch_scc1 L_nww")
            a("s_waitcnt vmcnt(0)")
            a.label("L_nww")
        a("s_barrier")
        a("s_cmp_eq_u32 s%d, 0" % S_WV)
        a("s_cbranch_scc1 L_s0")
        stash_write()
        a("s_cmp_eq_u32 s%d, 4" % S_WV)
        a("s_cbranch_scc1 L_semb")
        if cfg.get("wflag", 1):
            a("s_and_b32 s3, s%d, 6" % S_WV)
            a("s_cmp_lg_u32 s3, 2")
            a("s_cbranch_scc1 L_nww")
            a("s_lshl_b32 s3, s%d, 2" % S_WV)
            a("s_add_u32 s3, s3, %d" % (L_WF - 8))
            a("v_mov_b32 v10, s3")
            a("v_mov_b32 v11, 1")
            a("s_waitcnt vmcnt(0)")
            a("ds_write_b32 v10, v11")
            a.label("L_nww")
            a("s_lshl_b32 s3, s45, 2")
            a("s_add_u32 s3, s3, %d" % L_WF)
            a("v_mov_b32 v10, s3")
            a.label("L_wspin")
            a("ds_read_b32 v11, v10")
            a("s_waitcnt lgkmcnt(0)")
            a("v_readfirstlane_b32 s3, v11")
            a("s_nop 3")
            a("s_cmp_lg_u32 s3, 0")
            a("s_cbranch_scc1 L_wok")
            a("s_sleep 1")
            a("s_branch L_wspin")
            a.label("L_wok")
        self.w_pack_part(WS_W1, 36, 37, L_W1, 144, defer=True)
        a("s_cmp_eq_u32 s%d, 1" % S_WV)
        a("s_cbranch_scc1 L_s1")
        a("s_branch L_sdone")
        a.label("L_semb")
        a("s_waitcnt vmcnt(0) lgkmcnt(0)")
        a("s_bitcmp1_b32 s%d, 0" % S_PT)
        a("s_cbranch_scc1 L_sdone")
        E = 148
        for b in range(2):
            for d in range(3):
                unpack(a, E + 6 * b + 2 * d, E + 6 * b + 2 * d + 1, RR + 4 * b + d)
        silu_group(a, list(range(E, E + 12)), list(range(E + 12, E + 24)))
        EA = E + 24
        for i in range(6):
            for k in range(4):
                unpack(a, E + 12, E + 13, RR + 8 + 4 * i + k)
                for h in range(2):
                    j = 2 * k + h
                    for b in range(2):
                        if i == 0:
                            a("v_mul_f32 v%d, v%d, v%d" % (EA + 8 * b + j, E + 12 + h, E + 6 * b + i))
                        else:
                            a("v_fmac_f32 v%d, v%d, v%d" % (EA + 8 * b + j, E + 12 + h, E + 6 * b + i))
        a("s_nop 1")
        for j in range(8):
            a("v_permlane32_swap_b32 v%d, v%d" % (EA + j, EA + 8 + j))
        for j in range(8):
            a("v_add_f32 v%d, v%d, v%d" % (EA + j, EA + j, EA + 8 + j))
        a("s_nop 1")
        for j in range(4):
            a("v_permlane16_swap_b32 v%d, v%d" % (EA + j, EA + 4 + j))
        for j in range(4):
            a("v_add_f32 v%d, v%d, v%d" % (EA + j, EA + j, EA + 4 + j))
        a("s_nop 1")
        for j in range(4):
            a("v_add_f32_dpp v%d, v%d, v%d row_ror:8 row_mask:0xf bank_mask:0xf" % (EA + j, EA + j, EA + j))
        srd(a, 12, P_WS, WS_EMB, 65536)
        a("v_lshrrev_b32 v10, 5, v2")
        a("v_lshlrev_b32 v10, 11, v10")
        a("v_and_b32 v11, 7, v2")
        a("v_lshl_add_u32 v10, v11, 5, v10")
        a("v_and_b32 v11, 16, v2")
        a("v_add_u32 v10, v10, v11")
        a("s_lshl_b32 s3, s49, 12")
        a("s_lshl_b32 s4, s%d, 8" % S_OCT)
        a("s_add_u32 s3, s3, s4")
        a("buffer_store_dwordx4 v[%d:%d], v10, s[12:15], s3 offen sc1" % (EA, EA + 3))
        a("s_branch L_sdone")
        a.label("L_s1")
        a("s_waitcnt vmcnt(0)")
        a("s_mov_b32 s3, 0x7fff7fff")
        for arr in range(4):
            r = RR + 4 * arr
            for k in range(4):
                a("v_and_b32 v%d, s3, v%d" % (r + k, r + k))
            a("v_pk_max_u16 v%d, v%d, v%d" % (r, r, r + 1))
            a("v_pk_max_u16 v%d, v%d, v%d" % (r + 2, r + 2, r + 3))
            a("v_pk_max_u16 v%d, v%d, v%d" % (r, r, r + 2))
            a("v_lshrrev_b32 v%d, 16, v%d" % (r + 1, r))
            a("v_and_b32 v%d, 0xffff, v%d" % (r, r))
            a("v_max_u32 v%d, v%d, v%d" % (r, r, r + 1))
        dpp_reduce(a, [RR, RR + 4, RR + 8, RR + 12], 6, "v_max_u32_dpp")
        for k in range(2):
            g, bt = RR + 8 * k, RR + 8 * k + 4
            a("v_lshrrev_b32 v%d, 7, v%d" % (g, g))
            a("v_lshrrev_b32 v%d, 7, v%d" % (bt, bt))
            a("v_add_u32 v%d, 10, v%d" % (g, g))
            a("v_max_u32 v%d, v%d, v%d" % (g, g, bt))
            a("v_max_u32 v%d, 14, v%d" % (g, g))
            a("v_min_u32 v%d, 0x10a, v%d" % (g, g))
            a("v_subrev_u32 v%d, 13, v%d" % (g, g))
            a("v_lshlrev_b32 v%d, 23, v%d" % (RR + 16 + k, g))
        a("v_mov_b32 v12, %d" % (L_BC + 8))
        a("s_mov_b32 exec_lo, 0")
        a("s_mov_b32 exec_hi, 0x80000000")
        a("ds_write_b64 v12, v[%d:%d]" % (RR + 16, RR + 17))
        a("s_mov_b64 exec, -1")
        a("s_waitcnt lgkmcnt(0)")
        a("s_branch L_sdone")
        a.label("L_s0")
        a("s_mov_b32 s5, 0")
        a.label("L_nonce")
        a("s_waitcnt vmcnt(0)")
        a("v_readfirstlane_b32 s%d, v%d" % (S_TAG, RR))
        a("s_nop 3")
        a("s_cmp_lg_u32 s%d, 0" % S_TAG)
        a("s_cbranch_scc1 L_nonced")
        a("s_add_u32 s5, s5, 1")
        a("s_cmp_lt_u32 s5, 0x80000")
        a("s_cbranch_scc0 L_nonced")
        a("s_sleep 4")
        srd(a, 32, P_DBG, 0, 256)
        a("buffer_load_dword v%d, v14, s[32:35], 0 offen sc1" % RR)
        a("s_branch L_nonce")
        a.label("L_nonced")
        a("v_mov_b32 v12, %d" % (L_BC + 16))
        a("v_mov_b32 v13, s%d" % S_TAG)
        a("ds_write_b32 v12, v13")
        self.granule_slot(SY_GA)
        self.group_sync("v20", 50, 51, filler=stash_write)
        a.label("L_sdone")
        if cfg.get("stamp") == 3:
            self.stamp()
        a("s_barrier")
        if cfg.get("stamp") == 3:
            self.stamp()
        a("v_mov_b32 v12, %d" % L_BC)
        a("ds_read_b128 v[16:19], v12")
        a("ds_read_b32 v22, v12 offset:16")
        a("s_cmp_eq_u32 s46, 0")
        a("s_cbranch_scc1 L_nop1")
        self.w_pack_store(WS_W1, 144)
        if cfg.get("w2p0", 2) == 1:
            a("s_branch L_nop1b")
        a.label("L_nop1")
        if cfg.get("w2p0", 2) == 1:
            a("s_lshl_b32 s50, s37, 1")
            a("s_add_u32 s50, s50, s45")
            a("s_mul_i32 s51, s45, 9216")
            a("s_add_u32 s51, s51, %d" % L_W2)
            self.w_dma(P_W2, 36, 50, 51)
            a.label("L_nop1b")
        srd(a, 8, P_WS, WS_A1, IMG_BYTES)
        a("v_bfe_u32 v10, v4, 2, 1")
        a("v_lshlrev_b32 v10, 1, v10")
        a("v_xor_b32 v10, v10, v3")
        a("v_lshlrev_b32 v10, 4, v10")
        a("v_lshl_add_u32 v10, v4, 6, v10")
        a("s_lshl_b32 s47, s%d, 4" % S_B)
        a("s_lshl_b32 s3, s%d, 1" % S_OCT)
        a("s_add_u32 s47, s47, s3")
        a("s_add_u32 s47, s47, s45")
        a("s_lshl_b32 s47, s47, 18")
        a("s_lshl_b32 s3, s%d, 14" % S_RT)
        a("s_add_u32 s47, s47, s3")
        a("s_lshl_b32 s3, s46, 12")
        a("s_add_u32 s47, s47, s3")
        self.norm_coeffs(64, 68, 24, 32)
        a("v_readfirstlane_b32 s%d, v18" % S_ISA)
        a("v_readfirstlane_b32 s%d, v19" % S_ISA2)
        a("v_readfirstlane_b32 s%d, v22" % S_TAG)
        for d in range(2):
            prs = [XF + 4 * j + 2 * d for j in range(8)]
            tm = [40 + 2 * j for j in range(8)]
            for j in range(8):
                pk(a, "fma", prs[j], [prs[j], vbc(24 + j), vbc(32 + j)])
            silu_pk(a, prs, tm)
            for h in range(2):
                i = 2 * d + h
                o = 56 + 4 * i
                for k in range(4):
                    a("v_cvt_pk_f16_f32 v%d, v%d, v%d" % (o + k, prs[2 * k] + h, prs[2 * k + 1] + h))
                a("buffer_store_dwordx4 v[%d:%d], v10, s[8:11], s47 offen offset:%d sc1" % (o, o + 3, i * 1024))
        if cfg.get("stamp") == 3:
            self.stamp()
        if cfg.get("fuw", 0):
            a("s_cmp_lg_u32 s37, 0")
            a("s_cbranch_scc1 L_nofw")
            a("s_cmp_eq_u32 s46, 0")
            a("s_cbranch_scc1 L_nofw")
            a("s_lshl_b32 s3, s36, 3")
            a("s_add_u32 s3, s3, s%d" % S_WV)
            a("s_lshl_b32 s3, s3, 7")
            a("s_add_u32 s3, s3, %d" % SY_FW)
            a("v_mov_b32 v14, 0")
            a("s_waitcnt vmcnt(4)")
            a("s_mov_b64 exec, 1")
            a("buffer_store_dword v22, v14, s[%d:%d], s3 offen sc1" % (SRD_SY, SRD_SY + 3))
            a("s_mov_b64 exec, -1")
            a.label("L_nofw")
        a("s_cmp_lt_u32 s%d, 4" % S_WV)
        a("s_cbranch_scc1 L_nores")
        a("s_bfe_u32 s3, s%d, 0x10001" % S_WV)
        a("s_lshl_b32 s3, s3, 11")
        a("s_and_b32 s4, s%d, 1" % S_WV)
        a("s_lshl_b32 s4, s4, 8")
        a("s_add_u32 s3, s3, s4")
        a("s_add_u32 s3, s3, %d" % L_XS)
        a("v_mul_u32_u24 v10, 4224, v9")
        a("v_lshl_add_u32 v10, v8, 3, v10")
        a("v_add_u32 v10, s3, v10")
        a("v_add_u32 v11, %d, v10" % (4 * 4224))
        for j in range(4):
            a("ds_read2_b64 v[%d:%d], v11 offset0:%d offset1:%d" % (208 + 4 * j, 211 + 4 * j, j * 64, j * 64 + 16))
            a("ds_read2_b64 v[%d:%d], v10 offset0:%d offset1:%d" % (224 + 4 * j, 227 + 4 * j, j * 64, j * 64 + 16))
        a("s_waitcnt lgkmcnt(0)")
        a.label("L_nores")
        self.flag_list(SY_FB, True)
        if cfg.get("stamp") == 3:
            self.stamp()

        a.label("L_conv")
        VV = [3, 4, 5]
        VFR, USET, ACC, EXT = 16, 64, 128, 96
        a("v_mov_b32 v22, s%d" % S_TAG)
        a("v_mov_b32 v14, 0")
        a("s_cmp_lg_u32 s%d, 4" % S_WV)
        a("s_waitcnt vmcnt(0)")
        if cfg.get("stamp"):
            self.stamp()
            a("s_cmp_lg_u32 s%d, 4" % S_WV)
        a("s_barrier")
        a("s_cbranch_scc1 L_noflag")
        self.flag_store(50)
        a.label("L_noflag")
        a("s_sub_u32 s%d, s%d, 0x800000" % (S_HISA, S_ISA))
        a("s_lshl_b32 s3, s%d, 23" % S_PHASE)
        a("s_cmp_ge_u32 s%d, 4" % S_WV)
        a("s_cbranch_scc1 L_prod")

        def ureg(st, blk):
            return USET + 16 * st + 4 * blk

        def vreg_(rp, k):
            return VFR + 4 * (rp * 6 + k)

        def areg(blk, i):
            return ACC + 4 * (blk * 8 + i)

        a("s_lshl_b32 s4, s%d, 2" % S_OCT)
        a("s_add_u32 s4, s4, s%d" % S_WV)
        a("s_mul_i32 s4, s4, %d" % (48 * 4096))
        a("s_add_u32 s3, s3, s4")
        a("s_add_u32 s3, s3, 0x%x" % WS_W1)
        a("s_add_u32 s16, s%d, s3" % P_WS)
        a("s_addc_u32 s17, s%d, 0" % (P_WS + 1))
        a("s_mov_b32 s18, 0x%x" % (48 * 4096))
        a("s_mov_b32 s19, 0x20000")
        a("s_mov_b32 s52, 0")
        a("s_mul_i32 s3, s%d, %d" % (S_WV, RS))
        for sh in range(3):
            a("v_add_u32 v11, %d, v8" % (15 + sh))
            a("v_bfe_u32 v12, v11, 2, 1")
            a("v_lshlrev_b32 v12, 1, v12")
            a("v_xor_b32 v12, v12, v9")
            a("v_lshlrev_b32 v12, 4, v12")
            a("v_lshl_add_u32 v12, v8, 6, v12")
            a("v_add_u32 v%d, s3, v12" % VV[sh])
        a("v_bfe_u32 v11, v2, 2, 3")
        a("v_mul_u32_u24 v11, %d, v11" % XPITCH)
        a("v_and_b32 v12, 3, v2")
        a("v_lshl_add_u32 v11, v12, 4, v11")
        a("v_add_u32 v11, s3, v11")
        for r in range(ACC, ACC + 128):
            a("v_mov_b32 v%d, 0" % r)
        a("ds_write_b128 v11, v[%d:%d] offset:1024" % (ACC, ACC + 3))
        a("v_add_u32 v7, s3, v6")
        a("s_waitcnt lgkmcnt(0)")
        a("s_cmp_lg_u32 s%d, 0" % S_PHASE)
        a("s_cbranch_scc1 L_uerly")
        if cfg.get("fuw", 0):
            a("v_and_b32 v12, 31, v2")
            a("v_and_b32 v13, 3, v2")
            a("v_max_u32 v13, 1, v13")
            a("v_and_b32 v12, 28, v12")
            a("v_or_b32 v12, v12, v13")
            a("s_lshl_b32 s3, s%d, 12" % S_OCT)
            a("s_add_u32 s3, s3, %d" % SY_FW)
            a("v_lshl_add_u32 v12, v12, 7, s3")
            sv = self.cfg.get("presleep2", 6)
            self.cfg["presleep2"] = 0
            st = self.cfg.get("stamp")
            self.cfg["stamp"] = 0
            self.flag_poll(12)
            self.cfg["presleep2"] = sv
            self.cfg["stamp"] = st
        else:
            a("s_barrier")
        a.label("L_uerly")

        def uload(j, off):
            r = USET + 4 * (j % 16)
            return "buffer_load_dwordx4 v[%d:%d], v6, s[16:19], s52 offen offset:%d%s" % (r, r + 3, off, cfg.get("uf", " sc0 sc1"))

        def vread(rp, k, buf):
            r = vreg_(rp, k)
            sh, off = {0: (0, POFF[3] - 64), 5: (2, POFF[0] + 64)}.get(k, (1, POFF[(k - 1) % 4]))
            return "ds_read_b128 v[%d:%d], v%d offset:%d" % (r, r + 3, VV[sh], buf * VB + rp * XPITCH + off)

        def mfma(t, m):
            blk, rp, f, dx = t % 4, m // 12, (m % 12) // 3, m % 3
            if cfg.get("pal", 1) and f % 2 == 1:
                dx = 2 - dx
            d, u, x = areg(blk, rp * 4 + f), USET + 4 * ((3 * t + dx) % 16), vreg_(rp, f + dx)
            return "v_mfma_f32_16x16x32_bf16 v[%d:%d], v[%d:%d], v[%d:%d], v[%d:%d]" % (d, d + 3, u, u + 3, x, x + 3, d, d + 3)

        def dump(blk, i):
            r = areg(blk, i)
            return "ds_write_b128 v7, v[%d:%d] offset:%d" % (r, r + 3, (blk * 8 + i) * FS)

        ufirst = cfg.get("ufirst", 13)
        for j in range(ufirst):
            a(uload(j, (j % 4) * 1024))
            if j % 4 == 3:
                a("s_add_u32 s52, s52, 4096")
        if not cfg.get("fuw", 0):
            a("s_cmp_eq_u32 s%d, 0" % S_PHASE)
            a("s_cbranch_scc1 L_ulate")
        a("s_barrier")
        a.label("L_ulate")
        a("s_barrier")
        if cfg.get("trip") and cfg.get("tripat") == "b0":
            a("s_memrealtime s[96:97]")
            a("s_waitcnt lgkmcnt(0)")
            a("s_sub_u32 s96, s96, s99")
            a("s_cmp_eq_u32 s%d, 0" % S_PHASE)
            a("s_cselect_b32 s100, s96, s100")
        self.stamp()
        if cfg.get("stamp") == 4:
            self.stamp(False)
        for k in range(6):
            a(vread(0, k, 0))
        for k in range(3):
            a(vread(1, k, 0))
        for j in range(ufirst, 13):
            a(uload(j, (j % 4) * 1024))
            if j % 4 == 3:
                a("s_add_u32 s52, s52, 4096")
        a("s_add_u32 s52, s52, 1024")
        a("s_mov_b32 s53, 0")
        if cfg.get("prio"):
            a("s_setprio %d" % cfg["prio"])
        a.raw(".p2align 6")
        a.label("L_loop")
        upos = cfg.get("upos", (4, 10, 16))
        for t in range(16):
            blk, buf = t % 4, t // 4
            nbuf = (buf + 1) % 4
            after, before = {}, {}
            if blk == 0:
                for k in range(3):
                    after[k] = [vread(1, 3 + k, buf)]
                before[0] = "s_waitcnt vmcnt(10) lgkmcnt(6)"
                before[3] = "s_waitcnt lgkmcnt(6)"
                before[12] = "s_waitcnt lgkmcnt(3)"
                before[15] = "s_waitcnt lgkmcnt(0)"
            else:
                before[0] = "s_waitcnt vmcnt(10)"
            if blk == 3:
                after[1] = ["s_barrier"]
                for m, rp, k in ((3, 0, 0), (6, 0, 1), (9, 0, 2), (12, 0, 3), (13, 0, 4), (14, 0, 5), (15, 1, 0), (18, 1, 1), (21, 1, 2)):
                    after[m] = [vread(rp, k, nbuf)]
            for i, m in enumerate(upos):
                after.setdefault(m, []).append(uload(3 * t + 13 + i, i * 1024))
            after.setdefault(20, []).append("s_add_u32 s52, s52, 3072")
            if t == 12:
                after.setdefault(22, []).append("s_cmp_eq_u32 s53, 3")
            if t == 15:
                after.setdefault(22, []).append("s_add_u32 s53, s53, 1")
            if t == 13:
                a("s_cbranch_scc1 L_last")
            for m in range(24):
                if m in before:
                    a(before[m])
                a(mfma(t, m))
                for x in after.get(m, []):
                    a(x)
        a("s_branch L_loop")
        a.label("L_last")
        for t in range(13, 16):
            a("s_waitcnt vmcnt(%d)" % (10 - 3 * (t - 13)))
            for m in range(24):
                a(mfma(t, m))
                if m % 3 == 2:
                    a(dump(t % 4 - 1, m // 3))
                if t == 15 and m >= 12 and m % 3 == 0:
                    a(dump(3, (m - 12) // 3))
        if cfg.get("stamp") == 4:
            self.stamp(False)
        self.stamp()
        if cfg.get("prio"):
            a("s_setprio 0")
        a(dump(3, 4))
        a(dump(3, 5))
        a("s_nop 3")
        a(dump(3, 6))
        a("s_nop 1")
        a(dump(3, 7))
        a("s_waitcnt vmcnt(0)")
        self.epi_loads()
        a("s_waitcnt lgkmcnt(0)")
        a("s_branch L_epi")

        a.label("L_prod")
        D = 2
        RAW, TMP, OUT = 24, 72, 88
        a("s_lshl_b32 s4, s%d, 22" % S_B)
        a("s_add_u32 s3, s3, s4")
        a("s_add_u32 s16, s%d, s3" % P_WS)
        a("s_addc_u32 s17, s%d, 0" % (P_WS + 1))
        a("s_mov_b32 s18, 0x%x" % (IMG_BYTES // 2))
        a("s_mov_b32 s19, 0x20000")
        a("s_sub_u32 s4, s%d, 4" % S_WV)
        a("s_lshl_b32 s4, s4, 10")
        a("v_add_u32 v3, s4, v6")
        a("s_cmp_eq_u32 s%d, 7" % S_WV)
        a("s_cselect_b32 s4, 0, s4")
        a("s_add_u32 s4, s4, 1088")
        a("s_cmp_eq_u32 s%d, 4" % S_WV)
        a("s_cselect_b32 s4, 0, s4")
        a("v_add_u32 v4, s4, v6")
        a("v_add_u32 v5, %d, v4" % (2 * RS))
        a("s_lshl_b32 s3, s%d, 14" % S_RT)
        for r in range(6):
            a("s_add_u32 s%d, s3, 0x%x" % (52 + r, ((r - 1) * 4096) & 0xFFFFFFFF))
        a("s_cmp_eq_u32 s%d, 0" % S_RT)
        a("s_cselect_b32 s52, 0x40000000, s52")
        a("s_cmp_eq_u32 s%d, 15" % S_RT)
        a("s_cselect_b32 s57, 0x40000000, s57")
        a("s_cmp_lg_u32 s%d, 4" % S_WV)
        a("s_cbranch_scc1 L_u2c")
        self.flag_poll(23)
        a("s_branch L_nopoll")
        a.label("L_u2c")
        a("s_cmp_lg_u32 s%d, 0" % S_PHASE)
        a("s_cbranch_scc1 L_nopoll")
        a("s_mov_b32 s38, 0")
        a.label("L_pu2")
        self.w_pack_part(WS_W2, 36, 37, L_W2, 96, 38, defer=True)
        a("s_cmp_lg_u32 s38, 0")
        a("s_cbranch_scc1 L_pu2d")
        a("s_mov_b32 s60, s39")
        for k in range(16):
            a("v_mov_b32 v%d, v%d" % (160 + k, 142 + k))
        a("s_mov_b32 s38, 1")
        a("s_branch L_pu2")
        a.label("L_pu2d")
        a("s_mov_b32 s61, s39")
        a.label("L_nopoll")
        a("s_barrier")

        SPREAD = cfg.get("spread", 1)
        if SPREAD:
            RAW, TMP, OUT, NO, NS = 24, 176, 120, 4, 4
        else:
            NO, NS = 8, 2

        def rawrow(st, r):
            d = RAW + 24 * st + 4 * r
            a("buffer_load_dwordx4 v[%d:%d], v3, s[16:19], s%d offen%s" % (d, d + 3, 52 + r, cfg.get("rwf", " sc0 sc1")))

        def rawload(st):
            for r in range(6):
                rawrow(st, r)
            a("v_add_u32 v3, 0x40000, v3")

        COMB = [(0, 2, -1), (1, 2, 1), (2, 1, -1), (1, 3, -1)]
        lpos = cfg.get("lpos", (0, 1, 2, 4, 5, 6))

        def produce(j):
            st, buf = j % NS, j
            a("s_waitcnt vmcnt(6)")
            for rp in range(2):
                for xi in range(4):
                    n = rp * 4 + xi
                    ra, rb, sg = COMB[xi]
                    ra, rb = RAW + 24 * st + 4 * (ra + 2 * rp), RAW + 24 * st + 4 * (rb + 2 * rp)
                    o = OUT + 4 * (n % NO)
                    t = TMP + 8 * (xi % 2)
                    for d in range(4):
                        for h in range(2):
                            a("v_fma_mix_f32 v%d, v%d, 1.0, %sv%d op_sel:[%d,0,%d] op_sel_hi:[1,0,1]" %
                              (t + 2 * d + h, ra + d, "-" if sg < 0 else "", rb + d, h, h))
                        if SPREAD and d == 1 and n in lpos:
                            rawrow((j + 2) % NS, lpos.index(n))
                    for d in range(4):
                        a("v_cvt_pk_bf16_f32 v%d, v%d, v%d" % (o + d, t + 2 * d, t + 2 * d + 1))
                    a("ds_write_b128 v%d, v[%d:%d] offset:%d" %
                      (4 if xi < 2 else 5, o, o + 3, (xi & 1) * RS + buf * VB + rp * XPITCH))
                    if cfg.get("pgap"):
                        a("s_nop %d" % cfg["pgap"])
            if SPREAD:
                a("v_add_u32 v3, 0x40000, v3")
            else:
                rawload(st)
            a("s_waitcnt lgkmcnt(0)")

        for st in range(2):
            rawload(st)
        a("s_mov_b32 s58, 0")
        if cfg.get("palign"):
            a.raw(".p2align 6")
        a.label("L_ploop")
        for j in range(4):
            if cfg.get("stamp") == 4 and j < 2:
                self.stamp(False)
            produce(j)
            if cfg.get("stamp") == 4 and j < 2:
                self.stamp(False)
            a("s_barrier")
        a("s_add_u32 s58, s58, 1")
        a("s_cmp_lt_u32 s58, 4")
        a("s_cbranch_scc1 L_ploop")
        a("s_waitcnt vmcnt(0)")
        a("s_cmp_eq_u32 s%d, 0" % S_PHASE)
        a("s_cbranch_scc1 L_pph0")
        a("s_lshl_b32 s3, s%d, 12" % S_WV)
        a("s_add_u32 s3, s3, %d" % (L_W2 - 4 * 4096))
        a("v_add_u32 v10, s3, v6")
        for k in range(4):
            a("ds_write_b128 v10, v[%d:%d] offset:%d" % (224 + 4 * k, 227 + 4 * k, k * 1024))
        a("s_waitcnt lgkmcnt(0)")
        a("s_branch L_pextra_done")
        a.label("L_pph0")
        a("s_cmp_eq_u32 s%d, 4" % S_WV)
        a("s_cbranch_scc1 L_pemb")
        a("s_mov_b32 s39, s60")
        self.w_pack_store(WS_W2, 160 - 46)
        a("s_mov_b32 s39, s61")
        self.w_pack_store(WS_W2, 96)
        a("s_branch L_pextra_done")
        a.label("L_pemb")
        srd(a, 12, P_WS, WS_EMB, 65536)
        a("s_lshl_b32 s3, s%d, 11" % S_B)
        a("s_lshl_b32 s4, s%d, 8" % S_OCT)
        a("s_add_u32 s3, s3, s4")
        a("v_lshlrev_b32 v10, 2, v2")
        for er in range(16):
            a("buffer_load_dword v%d, v10, s[12:15], s3 offen sc1" % (24 + er))
            if er < 15:
                a("s_add_u32 s3, s3, 4096")
        a("s_waitcnt vmcnt(0)")
        for k in range(8):
            a("v_add_f32 v%d, v%d, v%d" % (24 + k, 24 + k, 32 + k))
        for k in range(4):
            a("v_add_f32 v%d, v%d, v%d" % (24 + k, 24 + k, 28 + k))
        a("v_add_f32 v24, v24, v26")
        a("v_add_f32 v25, v25, v27")
        a("v_add_f32 v24, v24, v25")
        a("v_add_u32 v10, %d, v10" % L_EMB)
        a("ds_write_b32 v10, v24")
        a("s_waitcnt lgkmcnt(0)")
        a.label("L_pextra_done")
        self.epi_loads(warm=True)

        a.label("L_epi")
        a("s_barrier")
        self.stamp()
        M, Y = 112, 176
        a("s_cmp_lg_u32 s%d, 0" % S_PHASE)
        a("s_cbranch_scc1 L_epi2")
        a("s_and_b32 s59, s%d, 1" % S_WV)
        a("s_lshr_b32 s3, s%d, 1" % S_WV)
        a("s_lshl_b32 s4, s59, 4")
        a("s_lshl_b32 s3, s3, 1")
        a("s_add_u32 s4, s4, s3")
        a("s_mul_i32 s4, s4, %d" % FS)
        a("v_add_u32 v10, s4, v6")
        a("v_add_u32 v11, %d, v10" % (2 * RS))
        a("v_mov_b32 v12, 0")
        a("ds_read_b32 v16, v12")
        a("ds_read_b32 v17, v12 offset:%d" % RS)
        a("v_mov_b32 v12, %d" % (2 * RS))
        a("ds_read_b32 v18, v12")
        a("s_lshl_b32 s3, s59, 7")
        a("s_add_u32 s3, s3, %d" % L_EMB)
        a("v_lshl_add_u32 v12, v9, 5, s3")
        a("ds_read_b128 v[48:51], v12")
        a("ds_read_b128 v[52:55], v12 offset:16")
        for u in range(2):
            for xi in range(4):
                for h in range(2):
                    r = M + 4 * ((u * 4 + xi) * 2 + h)
                    a("ds_read_b128 v[%d:%d], v%d offset:%d" %
                      (r, r + 3, 10 if xi < 2 else 11, (xi & 1) * RS + (h * 8 + u) * FS))
        a("s_waitcnt lgkmcnt(8)")
        a("v_add_f32 v17, v17, v18")
        a("v_fma_f32 v20, v17, 0.5, v16")
        a("v_mul_f32 v20, s%d, v20" % S_ISA)
        for j in range(4):
            pk(a, "add", 48 + 2 * j, [48 + 2 * j, vbc(20)], neg=[0, 1])
        for u in range(2):
            if u == 1:
                a("s_waitcnt lgkmcnt(0)")
            for j in range(0, 8, 2):
                m = [M + 4 * ((u * 4 + xi) * 2 + j // 4) + j % 4 for xi in range(4)]
                ye, yo = Y + u * 16 + j, Y + u * 16 + 8 + j
                pk(a, "add", ye, [m[1], m[2]])
                pk(a, "add", yo, [m[1], m[2]], neg=[0, 1])
                pk(a, "fma", m[0], [m[0], sbc(S_ISA), 48 + j])
                pk(a, "fma", m[3], [m[3], sbc(S_ISA), 48 + j], neg=[1, 0, 0])
                pk(a, "fma", ye, [ye, sbc(S_HISA), m[0]])
                pk(a, "fma", yo, [yo, sbc(S_HISA), m[3]])
        self.local_stats([Y + 2 * i for i in range(16)], "v[20:21]")
        a("s_waitcnt vmcnt(0)")
        a("s_barrier")
        a("s_cmp_lg_u32 s%d, 0" % S_WV)
        a("s_cbranch_scc1 L_edone")
        a.label("L_e0")
        self.granule_slot(SY_GC)
        self.group_sync("v20", 50, 51, both=True)
        a.label("L_edone")
        srd(a, 8, P_WS, WS_A2, IMG_BYTES)
        a("s_lshl_b32 s56, s%d, 4" % S_B)
        a("s_lshl_b32 s57, s%d, 1" % S_OCT)
        a("s_add_u32 s56, s56, s57")
        a("s_add_u32 s56, s56, s59")
        a("s_lshl_b32 s56, s56, 18")
        a("s_lshl_b32 s57, s%d, 14" % S_RT)
        a("s_add_u32 s56, s56, s57")
        a("s_lshr_b32 s57, s%d, 2" % S_WV)
        a("s_lshl_b32 s57, s57, 13")
        a("s_add_u32 s56, s56, s57")
        a("s_bfe_u32 s57, s%d, 0x10001" % S_WV)
        a("s_lshl_b32 s57, s57, 11")
        a("s_add_u32 s56, s56, s57")
        a("s_add_u32 s57, s56, 4096")
        a("v_bfe_u32 v11, v8, 2, 1")
        a("v_lshlrev_b32 v11, 1, v11")
        a("v_xor_b32 v11, v11, v9")
        a("v_lshlrev_b32 v11, 4, v11")
        a("v_lshl_add_u32 v11, v8, 6, v11")
        self.flag_list(SY_FD, False)
        a("v_mov_b32 v12, %d" % L_BC)
        a("s_barrier")
        a("ds_read_b64 v[16:17], v12")
        a("s_mov_b32 s%d, s%d" % (S_ISA, S_ISA2))
        a("s_mov_b32 s%d, 1" % S_PHASE)
        self.norm_coeffs(EXT + 8, EXT + 12, 24, 32)
        for u in range(2):
            prs = [Y + u * 16 + 2 * j for j in range(8)]
            tm = [40 + 2 * j for j in range(8)]
            for j in range(8):
                pk(a, "fma", prs[j], [prs[j], 24 + 2 * (j % 4), 32 + 2 * (j % 4)])
            silu_pk(a, prs, tm)
            for e in range(2):
                o = 56 + 4 * (u * 2 + e)
                for k in range(4):
                    a("v_cvt_pk_f16_f32 v%d, v%d, v%d" % (o + k, prs[e * 4 + k], prs[e * 4 + k] + 1))
                a("buffer_store_dwordx4 v[%d:%d], v11, s[8:11], s%d offen offset:%d sc1" % (o, o + 3, 56 + e, u * 1024))
        a("s_branch L_conv")

        a.label("L_epi2")
        a("s_cmp_ge_u32 s%d, 4" % S_WV)
        a("s_cbranch_scc1 L_haveres")
        a("s_lshl_b32 s3, s%d, 12" % S_WV)
        a("s_add_u32 s3, s3, %d" % L_W2)
        a("v_add_u32 v10, s3, v6")
        for k in range(4):
            a("ds_read_b128 v[%d:%d], v10 offset:%d" % (208 + 4 * k, 211 + 4 * k, k * 1024))
        a.label("L_haveres")
        a("s_lshl_b32 s3, s%d, 2" % S_WV)
        a("s_mul_i32 s3, s3, %d" % FS)
        a("v_add_u32 v10, s3, v6")
        a("v_add_u32 v11, %d, v10" % (2 * RS))
        for k in range(4):
            for xi in range(4):
                r = M + 4 * (k * 4 + xi)
                a("ds_read_b128 v[%d:%d], v%d offset:%d" % (r, r + 3, 10 if xi < 2 else 11, (xi & 1) * RS + k * FS))
        a("s_waitcnt lgkmcnt(15)")
        for j in range(4):
            for e in range(2):
                for d in range(2):
                    unpack(a, 48 + ((2 * d) * 2 + e) * 4 + j, 48 + ((2 * d + 1) * 2 + e) * 4 + j, 208 + (j * 2 + e) * 2 + d)
        for k in range(4):
            a("s_waitcnt lgkmcnt(%d)" % (12 - 4 * k))
            for j in range(0, 4, 2):
                m = [M + 4 * (k * 4 + xi) + j for xi in range(4)]
                ye, yo = Y + (k * 2) * 4 + j, Y + (k * 2 + 1) * 4 + j
                xe, xo = 48 + (k * 2) * 4 + j, 48 + (k * 2 + 1) * 4 + j
                pk(a, "add", ye, [m[1], m[2]])
                pk(a, "add", yo, [m[1], m[2]], neg=[0, 1])
                pk(a, "fma", m[0], [m[0], sbc(S_ISA), xe])
                pk(a, "fma", m[3], [m[3], sbc(S_ISA), xo], neg=[1, 0, 0])
                pk(a, "fma", ye, [ye, sbc(S_HISA), m[0]])
                pk(a, "fma", yo, [yo, sbc(S_HISA), m[3]])
        srd(a, 8, P_OUT, 0, IMG_BYTES)
        if cfg.get("trip"):
            if cfg.get("tripat") != "b0":
                a("s_memrealtime s[96:97]")
                a("s_waitcnt lgkmcnt(0)")
                a("s_sub_u32 s100, s96, s99")
            a("s_cmp_gt_u32 s100, %d" % int(cfg["trip"] * 100))
            a("s_cselect_b32 s96, 1.0, 0")
            a("s_cmp_eq_u32 s101, 0x13572468")
            a("s_cselect_b32 s96, 0, s96")
            srd(a, 12, P_WS, 0x3f00000, 64)
            a("v_mov_b32 v14, 0")
            a("v_mov_b32 v12, 0x13572468")
            a("buffer_store_dword v12, v14, s[12:15], 0 offen")
            a("v_add_f32 v%d, s96, v%d" % (Y, Y))
        for j in range(4):
            for e in range(2):
                o = 16 + 2 * (j * 2 + e)
                for d in range(2):
                    a("v_cvt_pk_bf16_f32 v%d, v%d, v%d" % (o + d, Y + ((2 * d) * 2 + e) * 4 + j, Y + ((2 * d + 1) * 2 + e) * 4 + j))
                a("buffer_store_dwordx2 v[%d:%d], v13, s[8:11], s%d offen offset:%d%s" % (o, o + 1, 60 + j, e * 128, cfg.get("of", " nt")))
        if cfg.get("stamp"):
            a("s_waitcnt vmcnt(0)")
        self.stamp()
        self.stamp_flush()
        a.label("L_end")
        a("s_endpgm")
        a.label("L_codeend")
        return name

    def epi_loads(self, warm=False):
        a = self.a
        EXT = 96
        l1, l2 = a.nl("el"), a.nl("eld")
        a("s_cmp_lg_u32 s%d, 0" % S_PHASE)
        a("s_cbranch_scc1 %s" % l1)
        srd(a, 24, P_G2, 0, 1024)
        srd(a, 28, P_BE2, 0, 1024)
        a("s_and_b32 s4, s%d, 1" % S_WV)
        a("s_lshl_b32 s4, s4, 6")
        a("s_lshl_b32 s3, s%d, 7" % S_OCT)
        a("s_add_u32 s3, s3, s4")
        a("v_lshlrev_b32 v13, 4, v9")
        a("buffer_load_dwordx4 v[%d:%d], v13, s[24:27], s3 offen" % (EXT + 8, EXT + 11))
        a("buffer_load_dwordx4 v[%d:%d], v13, s[28:31], s3 offen" % (EXT + 12, EXT + 15))
        a("s_branch %s" % l2)
        a.label(l1)
        a("s_lshl_b32 s3, s%d, 22" % S_B)
        a("s_lshl_b32 s4, s%d, 19" % S_OCT)
        a("s_add_u32 s3, s3, s4")
        a("s_lshr_b32 s4, s%d, 2" % S_WV)
        a("s_lshl_b32 s4, s4, 18")
        a("s_add_u32 s3, s3, s4")
        a("s_bfe_u32 s4, s%d, 0x10001" % S_WV)
        a("s_lshl_b32 s4, s4, 15")
        a("s_add_u32 s3, s3, s4")
        a("s_lshl_b32 s4, s%d, 9" % S_RT)
        a("s_add_u32 s3, s3, s4")
        a("s_and_b32 s4, s%d, 1" % S_WV)
        a("s_lshl_b32 s4, s4, 8")
        a("s_add_u32 s60, s3, s4")
        a("s_add_u32 s61, s60, 8192")
        a("s_add_u32 s62, s60, 16384")
        a("s_add_u32 s63, s60, 24576")
        a("v_lshlrev_b32 v13, 16, v9")
        a("v_lshl_add_u32 v13, v8, 3, v13")
        a.label(l2)


def build(cfg):
    ref = open("standalone__adm_resblock__diffusion.s.ref").read()
    head = []
    for l in ref.splitlines():
        if "@launch" in l:
            break
        head.append(l)
    g = Gen(cfg)
    name = g.build()
    out = list(head)
    if cfg.get("aslist"):
        out.append("; @launch kernel=%s grid=(256,1,1) block=(512,1,1) lds=%d" % (name, LDS_BYTES))
    else:
        out.append("; @launch grid=(256,1,1) block=(512,1,1) lds=%d" % LDS_BYTES)
    out.append('.amdgcn_target "amdgcn-amd-amdhsa--gfx950"')
    out.append(".text")
    out.append("""; One persistent launch, 256 workgroups (one per CU) x 8 waves; tile = 64 out-channels x 4 rows x 64 px.
;          streamed to registers; accumulators meet in LDS for the output transform. Same code runs both convs.
;   Cross-workgroup hand-offs: sc0 sc1 stores -> vmcnt(0) -> barrier -> tagged flag (tag = per-launch nonce in d_debug),
;   readers poll and read the data with sc0 sc1 loads. All spins are bounded.""")
    body = "\n".join(l.replace(" sc1", " sc0 sc1") if (" sc1" in l and " sc0" not in l) else l for l in g.a.lines) + "\n"
    s = "\n".join(out) + "\n" + body
    s += """.section .rodata,"a"
.p2align 6
.amdhsa_kernel %s
  .amdhsa_next_free_vgpr 256
  .amdhsa_next_free_sgpr 102
  .amdhsa_accum_offset 256
  .amdhsa_group_segment_fixed_size 0
  .amdhsa_kernarg_size 96
  .amdhsa_user_sgpr_count 2
  .amdhsa_user_sgpr_kernarg_segment_ptr 1
  .amdhsa_system_sgpr_workgroup_id_x 1
  .amdhsa_float_denorm_mode_32 3
  .amdhsa_float_denorm_mode_16_64 3
.end_amdhsa_kernel
""" % name
    return s


if __name__ == "__main__":
    cfg = {}
    outp = "standalone__adm_resblock__diffusion.s"
    for arg in sys.argv[1:]:
        k, v = arg.split("=", 1)
        if k == "out":
            outp = v
        else:
            cfg[k] = eval(v)
    open(outp, "w").write(build(cfg))
    print("wrote", outp)
```
